```python
import torch

def _softmax(x, axis=-1):
    return torch.softmax(x, dim=axis)
def _gelu(x):
    return torch.nn.functional.gelu(x, approximate="tanh")
def _silu(x):
    return torch.nn.functional.silu(x)
def _sigmoid(x):
    return torch.sigmoid(x)
def _layernorm(x, axis=-1, eps=1e-5):
    m = x.mean(dim=axis, keepdim=True)
    v = x.var(dim=axis, keepdim=True, unbiased=False)
    return (x - m) / torch.sqrt(v + eps)
def _scatter_add(tgt, idx, src, axis=0):
    return tgt.clone().index_add_(axis, idx, src)
def _segment_sum(src, seg, n):
    out = torch.zeros((n,) + src.shape[1:], dtype=src.dtype)
    return out.index_add_(0, seg, src)
def _pad(x, pw):
    flat = tuple(v for pair in reversed(pw) for v in pair)
    return torch.nn.functional.pad(x, flat)

kernel_name = 'sequential_preLN__ssm_conv_h3__glu_gated_glu__prompt'

def setup_inputs():

    _w = (lambda a: (lambda t: t.to(torch.bfloat16) if t.is_floating_point() else t)(torch.as_tensor(a)))
    def _A_setup():
        B, S, D = 1, 2048, 640
        ks = 4
        return {
            "q": _w((lambda *s: torch.randn(*s, dtype=torch.bfloat16) * 0.05)(B, S, D)),
            "k": _w((lambda *s: torch.randn(*s, dtype=torch.bfloat16) * 0.4)(B, S, D)),
            "v": _w((lambda *s: torch.randn(*s, dtype=torch.bfloat16) * 0.4)(B, S, D)),
            "shift_k": _w((lambda *s: torch.randn(*s, dtype=torch.bfloat16) * 0.4)(D, ks) * 0.5),
            "ssm_k": _w((lambda *s: torch.randn(*s, dtype=torch.bfloat16) * 0.4)(D, S) * (1.0 / S ** 0.5)),
            "ssm_D": _w((lambda *s: torch.randn(*s, dtype=torch.bfloat16) * 0.4)(D)),
        }
    _A_in = _A_setup()

    def _B_setup():
        B, S, D, F = 1, 2048, 640, 1728
        return {
            "x": _w((lambda *s: torch.randn(*s, dtype=torch.bfloat16) * 0.05)(B, S, D)),
            "w_gate": _w((lambda *s: torch.randn(*s, dtype=torch.bfloat16) * 0.05)(D, F)),
            "w_up": _w((lambda *s: torch.randn(*s, dtype=torch.bfloat16) * 0.05)(D, F)),
            "w_down": _w((lambda *s: torch.randn(*s, dtype=torch.bfloat16) * 0.05)(F, D)),
        }
    _B_in = _B_setup()

    return {
        "A_q": _A_in["q"],
        "A_k": _A_in["k"],
        "A_v": _A_in["v"],
        "A_shift_k": _A_in["shift_k"],
        "A_ssm_k": _A_in["ssm_k"],
        "A_ssm_D": _A_in["ssm_D"],
        "B_x": _B_in["x"],
        "B_w_gate": _B_in["w_gate"],
        "B_w_up": _B_in["w_up"],
        "B_w_down": _B_in["w_down"],
    }

def reference(A_q, A_k, A_v, A_shift_k, A_ssm_k, A_ssm_D, B_x, B_w_gate, B_w_up, B_w_down):
    def _A_ref(q, k, v, shift_k, ssm_k, ssm_D):
        B, S, D = q.shape
        ks = shift_k.shape[-1]
        k_pad = _pad(k, ((0, 0), (ks - 1, 0), (0, 0)))
        k_shift = torch.zeros_like(k)
        for t in range(ks):
            k_shift = k_shift + k_pad[:, t:t + S, :] * shift_k[:, ks - 1 - t][None, None, :]
        kv = k_shift * v
        L = 2 * S
        kv_pad = _pad(kv, ((0, 0), (0, S), (0, 0)))
        kf_pad = _pad(ssm_k, ((0, 0), (0, S)))
        kv_f = (lambda x, axes=(-2,-1): torch.fft.rfft2(x.float(), dim=axes))(kv_pad[:, None, :, :], axes=(1, 2))
        kf_f = (lambda x, axes=(-2,-1): torch.fft.rfft2(x.float(), dim=axes))(kf_pad[:, None, :], axes=(1, 2))
        kf_f = (lambda x, *d: x.permute(*d))(kf_f, 1, 2, 0)
        y_f = kv_f * kf_f[None, :, :, :]
        y = (lambda x, s, axes=(-2,-1): torch.fft.irfft2(x, s=s, dim=axes).to(torch.bfloat16))(y_f, (1, L), axes=(1, 2))[:, 0, :S, :]
        y = y + kv * ssm_D[None, None, :]
        return q * y

    def _B_ref(x, w_gate, w_up, w_down):
        g = torch.einsum("bsd,df->bsf", x, w_gate)
        u = torch.einsum("bsd,df->bsf", x, w_up)
        h = _sigmoid(g) * u
        return torch.einsum("bsf,fd->bsd", h, w_down)

    x = A_q
    h = x + _A_ref(_layernorm(x, axis=-1), A_k, A_v, A_shift_k, A_ssm_k, A_ssm_D)
    h2 = h + _B_ref(_layernorm(h, axis=-1), B_w_gate, B_w_up, B_w_down)
    return h2
```

```python
def v(lo, n=1):
    return f"v{lo}" if n == 1 else f"v[{lo}:{lo+n-1}]"
def a(lo, n=1):
    return f"a{lo}" if n == 1 else f"a[{lo}:{lo+n-1}]"
def s(lo, n=1):
    return f"s{lo}" if n == 1 else f"s[{lo}:{lo+n-1}]"

class Asm:
    def __init__(self):
        self.lines = []
    def __call__(self, text):
        for ln in text.split("\n"):
            ln = ln.strip()
            if ln:
                self.lines.append(ln)
    def extend(self, lst):
        for x in lst:
            self(x)
    def label(self, name):
        self.lines.append(name + ":")
    def text(self):
        out = []
        for ln in self.lines:
            if ln.endswith(":") or ln.startswith("."):
                out.append(ln)
            else:
                out.append("    " + ln)
        return "\n".join(out) + "\n"

def srd(A, d, base, nbytes):
    A(f"s_mov_b32 s{d}, s{base}")
    A(f"s_and_b32 s{d+1}, s{base+1}, 0xffff")
    A(f"s_mov_b32 s{d+2}, {nbytes}")
    A(f"s_mov_b32 s{d+3}, 0x20000")

def kernel_header(name):
    return (f".globl {name}\n.p2align 8\n.type {name},@function\n{name}:\n")

def kernel_desc(name, nv, na, nsg=102):
    acc = (nv + 3) // 4 * 4
    nfv = acc + na if na else nv
    return (f".amdhsa_kernel {name}\n"
            f"  .amdhsa_next_free_vgpr {nfv}\n"
            f"  .amdhsa_next_free_sgpr {nsg}\n"
            f"  .amdhsa_accum_offset {acc}\n"
            f"  .amdhsa_group_segment_fixed_size 0\n"
            f"  .amdhsa_kernarg_size 104\n"
            f"  .amdhsa_user_sgpr_count 2\n"
            f"  .amdhsa_user_sgpr_kernarg_segment_ptr 1\n"
            f"  .amdhsa_system_sgpr_workgroup_id_x 1\n"
            f"  .amdhsa_float_denorm_mode_32 3\n"
            f".end_amdhsa_kernel\n")

def module(launches, kernels):
    out = []
    for (n, g, b, l) in launches:
        out.append(f"; @launch kernel={n} grid=({g},1,1) block=({b},1,1) lds={l}")
    out.append('.amdgcn_target "amdgcn-amd-amdhsa--gfx950"')
    out.append(".text")
    for (n, A, nv, na) in kernels:
        out.append(kernel_header(n) + A.text())
    out.append('.section .rodata,"a"')
    for (n, A, nv, na) in kernels:
        out.append(".p2align 6")
        out.append(kernel_desc(n, nv, na))
    return "\n".join(out)

def interleave(main, fill, start=0, end=None):
    n = len(main)
    if end is None:
        end = n
    gaps = [[] for _ in range(n)]
    m = end - start
    for i, f in enumerate(fill):
        gaps[start + (i * m) // len(fill)].append(f)
    return gaps
```

```python
import re

REG = re.compile(r"^(-?)(abs\()?([vas])(\d+|\[(\d+):(\d+)\])\)?$")
TRANS = ("v_exp_f32", "v_log_f32", "v_rcp_f32", "v_rsq_f32", "v_sqrt_f32", "v_sin_f32", "v_cos_f32", "v_rcp_iflag_f32")

def regs(tok):
    tok = tok.strip()
    if tok in ("vcc",): return {("s", "vcc")}
    if tok in ("m0",): return {("s", "m0")}
    if tok in ("exec",): return {("s", "exec")}
    m = REG.match(tok)
    if not m: return set()
    k = m.group(3)
    if m.group(5) is not None:
        return {(k, i) for i in range(int(m.group(5)), int(m.group(6)) + 1)}
    return {(k, int(m.group(4)))}

class I:
    pass

def parse(line):
    line = line.split(";")[0].strip()
    if not line or line.endswith(":") or line.startswith("."): return None
    parts = line.split(None, 1)
    op = parts[0]; rest = parts[1] if len(parts) > 1 else ""
    toks = [t.strip() for t in rest.split(",")] if rest else []
    mods = ""
    if toks:
        rest2 = re.sub(r"(op_sel|op_sel_hi|neg_lo|neg_hi|quad_perm):\[[^\]]*\]", lambda m: m.group(0).replace(",", "|"), rest)
        toks = [t.strip() for t in rest2.split(",")]
        last = toks[-1].split()
        toks[-1] = last[0] if last else ""
        mods = " ".join(last[1:])
    ins = I(); ins.op = op; ins.line = line; ins.mods = mods; ins.toks = toks
    R = [regs(t) for t in toks]
    U = lambda L: set().union(*L) if L else set()
    ins.kind = "other"; ins.w = set(); ins.r = set(); ins.srcC = set(); ins.srcAB = set(); ins.data = set()
    if op.startswith("v_mfma"):
        ins.kind = "mfma"; ins.w = R[0]; ins.srcAB = R[1] | R[2]; ins.srcC = R[3]; ins.r = ins.srcAB | ins.srcC
        ins.passes = 8 if "32x32x16" in op else 4
    elif op.startswith("buffer_") or op.startswith("global_"):
        ins.kind = "vmem"
        if "lds" in mods.split() or op.startswith("global_load_lds"):
            ins.r = U(R) | {("s", "m0")}; ins.dma = True
        elif "load" in op:
            ins.w = R[0]; ins.r = U(R[1:])
        elif "atomic" in op:
            ins.r = U(R)
            if "sc0" in mods.split(): ins.w = R[0]
        elif "store" in op:
            ins.r = U(R)
            ins.data = R[0] if op.startswith("buffer_") else R[1]
            ins.wide = ("x3" in op or "x4" in op)
        else:
            ins.r = U(R)
    elif op.startswith("ds_"):
        ins.kind = "ds"
        if "read" in op or "bpermute" in op or "permute" in op or "swizzle" in op:
            ins.w = R[0]; ins.r = U(R[1:])
            if "d16" in op: ins.r |= R[0]
        else:
            ins.r = U(R)
    elif op.startswith("s_load") or op.startswith("s_memtime") or op.startswith("s_memrealtime"):
        ins.kind = "smem"; ins.w = R[0]; ins.r = U(R[1:])
    elif op.startswith("s_waitcnt"):
        ins.kind = "wait"
        m = re.search(r"vmcnt\((\d+)\)", line); ins.vm = int(m.group(1)) if m else None
        m = re.search(r"lgkmcnt\((\d+)\)", line); ins.lg = int(m.group(1)) if m else None
    elif op == "s_nop":
        ins.kind = "nop"; ins.n = int(toks[0], 0) + 1
    elif op.startswith("s_cmp") or op.startswith("s_bitcmp"):
        ins.kind = "salu"; ins.r = U(R)
    elif op.startswith("s_cbranch") or op in ("s_branch", "s_barrier", "s_endpgm", "s_sleep", "s_setprio"):
        ins.kind = "ctl"
        if "vcc" in op: ins.r = {("s", "vcc")}
    elif op.startswith("s_"):
        ins.kind = "salu"; ins.w = R[0] if R else set(); ins.r = U(R[1:])
        if "saveexec" in op: ins.w = ins.w | {("s", "exec")}
        if op in ("s_addk_i32", "s_mulk_i32"): ins.r |= R[0]
    elif op.startswith("v_"):
        ins.kind = "valu"
        ins.w = R[0]; ins.r = U(R[1:])
        if "_co_" in op: ins.w = R[0] | R[1]; ins.r = U(R[2:])
        if op.startswith("v_fmac") or op.startswith("v_dot2c") or op.startswith("v_writelane"): ins.r |= R[0]
        ins.dpp = "_dpp" in op
        if ins.dpp: ins.r |= R[0]
        ins.perm = op.startswith("v_permlane")
        if ins.perm: ins.w = R[0] | R[1]; ins.r = R[0] | R[1]
        ins.trans = any(op.startswith(t) for t in TRANS)
        ins.rdl = op.startswith("v_readlane") or op.startswith("v_readfirstlane")
        ins.sdwa = "_sdwa" in op
    else:
        raise ValueError("unknown op " + line)
    return ins

def autopad(lines, name=""):
    out = []
    check(lines, name, verbose=False, fix=out)
    return out

def check(lines, name="", verbose=True, fix=None):
    errs = []
    prog = []
    for l in lines:
        p = parse(l)
        if p is None:
            p = I(); p.kind = "label"; p.line = l
        p.raw = l
        prog.append(p)
    pos = 0
    hist = []
    vmq = []; lgq = []; smem_pending = []
    def err(ins, msg):
        errs.append(f"[{name}] {msg}: {ins.line}")
    for ins in prog:
        if ins.kind == "label":
            if fix is not None: fix.append(ins.raw)
            continue
        short = 0
        if ins.kind == "wait":
            if ins.vm is not None:
                while len(vmq) > ins.vm: vmq.pop(0)
            if ins.lg is not None:
                if any(q.kind == "smem" for q in lgq):
                    if ins.lg == 0: lgq.clear()
                else:
                    while len(lgq) > ins.lg: lgq.pop(0)
        touch = ins.r | ins.w
        for q in vmq + lgq:
            if q.w & touch:
                if (q.w & ins.r) or not (ins.kind == q.kind and ins.kind != "smem"):
                    err(ins, f"uses reg with load in flight ({q.line})")
        for (p, h) in reversed(hist):
            d = pos - p
            if d >= 20: break
            need = 0; why = ""
            vw = {x for x in h.w if x[0] in "va"}; sw = {x for x in h.w if x[0] == "s"}
            if h.kind == "valu":
                if ins.kind == "mfma" and vw & ins.r: need, why = 2, "valu->mfma"
                if ins.kind == "valu":
                    if h.trans and not ins.trans and vw & ins.r: need, why = max(need, 1), "trans->valu"
                    if ins.dpp and vw & ins.r: need, why = 2, "valu->dpp"
                    if ins.perm and vw & ins.r: need, why = 2, "valu->permlane"
                    if ins.rdl and vw & ins.r: need, why = max(need, 1), "valu->readlane"
                    if sw & ins.r: need, why = 2, "valu sgpr->valu"
                    if sw & ins.r and (ins.op.startswith("v_readlane") or ins.op.startswith("v_writelane")): need = 4
                    if h.sdwa and vw & ins.r: need, why = max(need, 1), "sdwa->valu"
                if ins.kind == "vmem" and sw & ins.r: need, why = 5, "valu sgpr->vmem"
                if ins.kind in ("salu", "ctl") and sw & ins.r: need, why = 1, "valu sgpr->salu(pad)"
            if h.kind == "mfma":
                big = h.passes == 8
                if ins.kind == "mfma":
                    if h.w & ins.srcAB: need, why = (12 if big else 8), "mfma->mfma AB"
                    elif h.w & ins.srcC and (h.w != ins.srcC or h.passes != ins.passes): need, why = (10 if big else 6), "mfma->mfma C overlap"
                    elif h.w & ins.w and h.w != ins.srcC: need, why = (10 if big else 6), "mfma->mfma WAW"
                elif ins.kind in ("valu", "vmem", "ds") and h.w & touch: need, why = (12 if big else 8), "mfma D->use"
                elif ins.kind == "valu" and h.srcC & ins.w: need, why = (7 if big else 3), "mfma C WAR"
            if h.kind == "salu" and ("s", "m0") in h.w and ins.kind == "vmem" and getattr(ins, "dma", False): need, why = 1, "m0->dma"
            if h.kind == "vmem" and getattr(h, "wide", False) and h.data & ins.w: need, why = 2, "wide store WAR"
            if d < need:
                short = max(short, need - d)
                if fix is None: err(ins, f"{why} needs {need} got {d} (after {h.line})")
        if fix is not None:
            if short:
                fix.append(f"s_nop {short-1}"); pos += short
            fix.append(ins.raw)
        if ins.kind == "vmem": vmq.append(ins)
        if ins.kind in ("ds", "smem") and not ins.op.startswith("s_mem"): lgq.append(ins)
        if len(vmq) > 63: err(ins, "more than 63 vmem outstanding (count saturates)")
        n = ins.n if ins.kind == "nop" else 1
        pos += n
        hist.append((pos, ins))
        if len(hist) > 40: hist.pop(0)
    if verbose:
        for e in errs[:40]: print(e)
    return errs
```

```python
from asmlib import *

WS_YP  = 0
WS_LNF = 4 << 20
WS_HR  = 8 << 20
WS_HHF = 12 << 20
WS_W2F = 20 << 20
WS_TS  = 200 << 20
WS_SIZE = 256 << 20
OOB = 0x80000000
NB_SD = 2048 * 640 * 2
NB_W = 640 * 1728 * 2

P_Q, P_K, P_V, P_SH, P_SK, P_SD, P_BX, P_WG, P_WU, P_WD, P_OUT, P_DBG, P_WS = range(4, 30, 2)
S_WAVE = 3
SRD_A, SRD_B, SRD_C, SRD_WS = 32, 36, 40, 44
S_TS = 80

class Ctx:
    def __init__(self, diag=False, sc1=False):
        self.diag = diag; self.nst = 0
        self.sc = " sc1" if sc1 else ""

def prologue(A, nwg, endlabel):
    A(f"s_cmp_ge_u32 s2, {nwg}")
    A(f"s_cbranch_scc1 {endlabel}")
    A("s_load_dwordx16 s[4:19], s[0:1], 0")
    A("s_load_dwordx8 s[20:27], s[0:1], 64")
    A("s_load_dwordx2 s[28:29], s[0:1], 96")
    A("v_lshrrev_b32 v1, 6, v0")
    A("s_nop 0")
    A(f"v_readfirstlane_b32 s{S_WAVE}, v1")
    A("v_and_b32 v1, 63, v0")
    A("s_waitcnt lgkmcnt(0)")
    srd(A, SRD_WS, P_WS, WS_SIZE)

def stamp(A, C, idx):
    if C.diag:
        A(f"s_memrealtime s[{S_TS+2*idx}:{S_TS+2*idx+1}]")

def stamps_out(A, C, kidx, n, tag):
    if not C.diag: return
    A("s_waitcnt lgkmcnt(0) vmcnt(0)")
    A(f"s_cmp_lg_u32 s{S_WAVE}, 0")
    A(f"s_cbranch_scc1 L_nost_{tag}")
    A("s_lshl_b32 s30, s2, 6")
    A(f"s_add_u32 s30, s30, {WS_TS + kidx * 65536}")
    A("v_mov_b32 v2, 0")
    A("s_mov_b64 exec, 1")
    for i in range(n):
        A(f"v_mov_b32 v3, s{S_TS+2*i}")
        A(f"buffer_store_dword v3, v2, {s(SRD_WS,4)}, s30 offen offset:{4*i}")
        A("s_nop 0")
    A("s_mov_b64 exec, -1")
    A.label(f"L_nost_{tag}")

def place(mf, fillers, cap=2):
    n = len(mf)
    flat = []
    for sq in fillers:
        for it in sq["items"]:
            flat.append((it, sq))
    gaps = [[] for _ in range(n)]
    cost = [0] * n
    starts = {}
    endg = n
    for idx in range(len(fillers) - 1, -1, -1):
        sq = fillers[idx]
        tot = sum(c for _, c in sq["items"])
        hi = min(sq.get("hi", n), endg)
        st = max(hi - (tot + cap - 1) // cap, 0)
        starts[idx] = max(sq.get("lo", 0), st if sq.get("align", "l") == "r" else 0)
        endg = st
    g = 0
    for idx, sq in enumerate(fillers):
        g = max(g, min(starts[idx], n - 1))
        for (t, c) in sq["items"]:
            while g < n - 1 and cost[g] + c > cap and cost[g] > 0:
                g += 1
            gaps[g].append(t); cost[g] += c
    out = []
    for i in range(n):
        out.append(mf[i]); out += gaps[i]
    return out

CV_CS = 4576
CV_XR = 0
CV_YS = 18304
CV_CB = 20608
CV_HC = 24704
CV_LDS = CV_HC + 4 * 8320

def conv(A, C, sG, npre=24):
    vKV, vXW, vXR, vHA, vYW, vYR, vYG, vCR, vT0, vT1, vT2 = range(2, 13)
    vW1, vW3 = 16, 20
    vAD = 24
    vACC = 28
    vB = 60
    vK = 124
    vH = 60
    vE = 76
    vHL = 156
    vCc = 160
    vt = 164
    vY = 180
    sW = 48
    sD = 56
    sW0, sW2 = 58, 62
    sT = 66
    srd(A, SRD_A, P_K, NB_SD); srd(A, SRD_B, P_V, NB_SD); srd(A, SRD_C, P_SK, NB_SD)
    A(f"s_lshl_b32 s{sT}, s{sG}, 5")
    A(f"s_load_dwordx8 {s(sW,8)}, {s(P_SH,2)}, s{sT}")
    A(f"s_lshl_b32 s{sT+1}, s{sG}, 3")
    A(f"s_load_dwordx2 {s(sD,2)}, {s(P_SD,2)}, s{sT+1}")
    A(f"s_lshl_b32 s{sT+2}, s{sG}, 2"); A(f"s_add_u32 s{sT+2}, s{sT+2}, s{S_WAVE}"); A(f"s_lshl_b32 s{sT+2}, s{sT+2}, 12")
    A(f"v_lshlrev_b32 v{vT0}, 4, v1")
    for i in range(4):
        A(f"buffer_load_dwordx4 {v(vH+4*i,4)}, v{vT0}, {s(SRD_C,4)}, s{sT+2} offen offset:{1024*i}")
    A(f"v_lshrrev_b32 v{vT1}, 3, v1"); A(f"v_lshlrev_b32 v{vT1}, 8, v{vT1}")
    A(f"v_and_b32 v{vT2}, 7, v1")
    A(f"s_lshl_b32 s{sT+3}, s{S_WAVE}, 6"); A(f"s_sub_u32 s{sT+3}, s{sT+3}, 3")
    A(f"v_add3_u32 v{vT1}, v{vT1}, v{vT2}, s{sT+3}")
    A(f"v_cmp_gt_u32 vcc, 3, v{vT2}")
    A(f"v_cmp_le_i32 s[30:31], 0, v{vT1}")
    A(f"v_mul_u32_u24 v{vT1}, 1280, v{vT1}")
    A(f"s_and_b64 vcc, vcc, s[30:31]")
    A(f"v_mov_b32 v{vT2}, {OOB}")
    A(f"v_cndmask_b32 v{vT1}, v{vT2}, v{vT1}, vcc")
    A(f"buffer_load_dwordx2 {v(vHL,2)}, v{vT1}, {s(SRD_A,4)}, s{sT+1} offen")
    A(f"v_mul_u32_u24 v{vKV}, 1280, v0")
    for nu in range(8):
        A(f"buffer_load_dwordx2 {v(vK+4*nu,2)}, v{vKV}, {s(SRD_A,4)}, s{sT+1} offen")
        A(f"buffer_load_dwordx2 {v(vK+4*nu+2,2)}, v{vKV}, {s(SRD_B,4)}, s{sT+1} offen")
        if nu < 7: A(f"s_add_u32 s{sT+1}, s{sT+1}, {256*1280}")
    A(f"v_sub_u32 v{vXW}, 255, v0"); A(f"v_lshlrev_b32 v{vXW}, 1, v{vXW}")
    if CV_XR: A(f"v_add_u32 v{vXW}, {CV_XR}, v{vXW}")
    A(f"v_and_b32 v{vT1}, 15, v1")
    A(f"v_lshrrev_b32 v{vT2}, 4, v1")
    A(f"s_mul_i32 s{sT+3}, s{S_WAVE}, {CV_CS}"); A(f"s_add_u32 s{sT+3}, s{sT+3}, {CV_XR+480}")
    A(f"v_lshlrev_b32 v{vXR}, 5, v{vT1}"); A(f"v_sub_u32 v{vXR}, s{sT+3}, v{vXR}")
    A(f"v_lshl_add_u32 v{vXR}, v{vT2}, 4, v{vXR}")
    A(f"s_mul_i32 s{sT+4}, s{S_WAVE}, 8320"); A(f"s_add_u32 s{sT+4}, s{sT+4}, {CV_HC}")
    A(f"v_and_b32 v{vHA}, 1, v1"); A(f"v_mul_u32_u24 v{vHA}, 4160, v{vHA}")
    A(f"v_lshrrev_b32 v{vYW}, 1, v{vT1}"); A(f"v_lshl_add_u32 v{vHA}, v{vYW}, 2, v{vHA}")
    A(f"v_lshl_add_u32 v{vHA}, v{vT2}, 4, v{vHA}"); A(f"v_add3_u32 v{vHA}, v{vHA}, s{sT+4}, 4")
    A(f"s_and_b32 s{sT+5}, s{S_WAVE}, 1"); A(f"s_mul_i32 s{sT+5}, s{sT+5}, 520")
    A(f"s_lshr_b32 s{sT+6}, s{S_WAVE}, 1"); A(f"s_mul_i32 s{sT+6}, s{sT+6}, 1152")
    A(f"s_add_u32 s{sT+5}, s{sT+5}, s{sT+6}"); A(f"s_add_u32 s{sT+5}, s{sT+5}, {CV_YS}")
    A(f"v_lshlrev_b32 v{vYW}, 5, v{vT1}"); A(f"v_lshl_add_u32 v{vYW}, v{vT2}, 3, v{vYW}"); A(f"v_add_u32 v{vYW}, s{sT+5}, v{vYW}")
    A(f"v_bfe_u32 v{vYR}, v1, 2, 1"); A(f"v_mul_u32_u24 v{vYR}, 520, v{vYR}")
    A(f"v_bfe_u32 v{vYG}, v1, 3, 1"); A(f"v_mul_u32_u24 v{vYG}, 1152, v{vYG}"); A(f"v_add_u32 v{vYR}, v{vYR}, v{vYG}")
    A(f"v_bfe_u32 v{vYG}, v1, 4, 1"); A(f"v_lshl_add_u32 v{vYR}, v{vYG}, 6, v{vYR}")
    A(f"v_and_b32 v{vYG}, 3, v1"); A(f"v_lshl_add_u32 v{vYR}, v{vYG}, 4, v{vYR}")
    A(f"s_lshl_b32 s{sT+6}, s{S_WAVE}, 7"); A(f"s_add_u32 s{sT+6}, s{sT+6}, {CV_YS}"); A(f"v_add_u32 v{vYR}, s{sT+6}, v{vYR}")
    A(f"v_lshrrev_b32 v{vCR}, 2, v1"); A(f"v_mul_u32_u24 v{vCR}, 10240, v{vCR}"); A(f"v_lshl_add_u32 v{vYG}, v{vYG}, 4, v{vCR}")
    A(f"v_cmp_gt_u32 vcc, 32, v1"); A(f"v_mov_b32 v{vCR}, {OOB}"); A("s_nop 0"); A(f"v_cndmask_b32 v{vYG}, v{vCR}, v{vYG}, vcc")
    sY = sT + 7
    A(f"s_mul_i32 s{sY}, s{S_WAVE}, {8*10240}"); A(f"s_lshl_b32 s{sT+6}, s{sG}, 6"); A(f"s_add_u32 s{sY}, s{sY}, s{sT+6}")
    if WS_YP: A(f"s_add_u32 s{sY}, s{sY}, {WS_YP}")
    A(f"s_lshl_b32 s{sT+6}, s{S_WAVE}, 10"); A(f"s_add_u32 s{sT+6}, s{sT+6}, {CV_CB}")
    A(f"v_min_u32 v{vCR}, 3, v1"); A(f"v_lshlrev_b32 v{vCR}, 4, v{vCR}"); A(f"v_add3_u32 v{vCR}, v{vCR}, s{sT+6}, 48")
    for i in range(4): A(f"v_mov_b32 v{vCc+i}, 0")
    A(f"s_sub_u32 s{sT+3}, s{sT+3}, 480")
    A(f"v_add_u32 v{vt}, s{sT+3}, v{vT0}")
    A("s_mov_b64 exec, 0x3fffffff")
    A(f"ds_write_b128 v{vt}, {v(vCc,4)} offset:4096")
    A("s_mov_b64 exec, -1")
    A(f"v_add_u32 v{vt+1}, s{sT+4}, v{vT0}")
    A("s_mov_b64 exec, 3")
    A(f"ds_write_b128 v{vt+1}, {v(vCc,4)}")
    A(f"ds_write_b128 v{vt+1}, {v(vCc,4)} offset:4160")
    A("s_mov_b64 exec, -1")
    A("s_waitcnt lgkmcnt(0)")
    for c in range(4):
        A(f"s_lshl_b32 s{sW0+c}, s{sW+2*c}, 16")
        A(f"s_and_b32 s30, s{sW+2*c}, 0xffff0000"); A(f"v_mov_b32 v{vW1+c}, s30")
        A(f"s_lshl_b32 s{sW2+c}, s{sW+2*c+1}, 16")
        A(f"s_and_b32 s30, s{sW+2*c+1}, 0xffff0000"); A(f"v_mov_b32 v{vW3+c}, s30")
    A(f"s_lshl_b32 s30, s{S_WAVE}, 4"); A(f"s_lshr_b64 {s(sD,2)}, {s(sD,2)}, s30"); A(f"s_and_b32 s{sD}, s{sD}, 0xffff")
    A(f"v_lshl_add_u32 v{vt+2}, v{vT2}, 3, v{vT1}"); A(f"v_sub_u32 v{vt+2}, 15, v{vt+2}")
    A(f"v_and_b32 v{vt+3}, 1, v{vt+2}"); A(f"v_lshlrev_b32 v{vt+3}, 4, v{vt+3}"); A(f"v_lshlrev_b32 v{vt+3}, v{vt+3}, s{sD}")
    A(f"v_ashrrev_i32 v{vt+2}, 1, v{vt+2}")
    for j in range(4):
        A(f"v_cmp_eq_u32 vcc, {j}, v{vt+2}"); A("s_nop 1"); A(f"v_cndmask_b32 v{vAD+j}, 0, v{vt+3}, vcc")
    A("s_waitcnt vmcnt(17)")
    stamp(A, C, 1)
    for i in range(4):
        A(f"ds_write_b128 v{vt+1}, {v(vH+4*i,4)} offset:{4160+32+1024*i}")
    for i in range(4):
        if i: A(f"v_readlane_b32 s{sT+8+i}, v{vH+4*i-1}, 63")
    A(f"v_mov_b32 v{vt+4}, 0")
    for i in range(1, 4): A(f"v_mov_b32 v{vt+4+i}, s{sT+8+i}")
    for i in range(4):
        A(f"v_mov_b32_dpp v{vt+4+i}, v{vH+4*i+3} wave_shr:1 row_mask:0xf bank_mask:0xf")
    for i in range(4):
        A(f"v_alignbit_b32 v{vE+4*i}, v{vH+4*i}, v{vt+4+i}, 16")
        for j in range(1, 4): A(f"v_alignbit_b32 v{vE+4*i+j}, v{vH+4*i+j}, v{vH+4*i+j-1}, 16")
        A(f"ds_write_b128 v{vt+1}, {v(vE+4*i,4)} offset:{32+1024*i}")
    def aread(m):
        out = []
        if m and m % 16 == 0: out.append(f"v_add_u32 v{vHA}, 1024, v{vHA}")
        o = 16 * (m % 16)
        out.append(f"ds_read2_b32 {a(4*m,2)}, v{vHA} offset0:{o} offset1:{o+1}")
        out.append(f"ds_read2_b32 {a(4*m+2,2)}, v{vHA} offset0:{o+2} offset1:{o+3}")
        return out
    for m in range(8): A.extend(aread(m))
    DP = "wave_shr:1 row_mask:0xf bank_mask:0xf bound_ctrl:0"
    T1, T2, kk, mm, ac = vt, vt + 2, vt + 4, vt + 8, vt + 12
    def shiftconv(kd, cinit):
        o = []
        o += [f"v_mov_b32_dpp v{T1}, v{kd} {DP}", f"v_mov_b32_dpp v{T1+1}, v{kd+1} {DP}"]
        o += [f"v_lshlrev_b32 v{kk}, 16, v{kd}", f"v_and_b32 v{kk+1}, 0xffff0000, v{kd}", f"v_lshlrev_b32 v{kk+2}, 16, v{kd+1}", f"v_and_b32 v{kk+3}, 0xffff0000, v{kd+1}"]
        o += [f"v_mov_b32_dpp v{T2}, v{T1} {DP}", f"v_mov_b32_dpp v{T2+1}, v{T1+1} {DP}"]
        for c in range(4):
            o.append(f"v_fma_f32 v{ac+c}, v{kk+c}, s{sW0+c}, v{vCc+c}" if cinit else f"v_mul_f32 v{ac+c}, s{sW0+c}, v{kk+c}")
        o += [f"v_lshlrev_b32 v{mm}, 16, v{T2}", f"v_and_b32 v{mm+1}, 0xffff0000, v{T2}", f"v_lshlrev_b32 v{mm+2}, 16, v{T2+1}", f"v_and_b32 v{mm+3}, 0xffff0000, v{T2+1}"]
        for c in range(4): o.append(f"v_fmac_f32_dpp v{ac+c}, v{kk+c}, v{vW1+c} {DP}")
        for c in range(4): o.append(f"v_fmac_f32 v{ac+c}, s{sW2+c}, v{mm+c}")
        for c in range(4): o.append(f"v_fmac_f32_dpp v{ac+c}, v{mm+c}, v{vW3+c} {DP}")
        return o
    A("s_waitcnt vmcnt(16)")
    A.extend(shiftconv(vHL, False))
    A(f"v_add_u32 v{T1}, s{sT+6}, v{vT0}")
    A(f"ds_write_b128 v{T1}, {v(ac,4)}")
    for m in range(8, npre): A.extend(aread(m))
    def kvstage(nu, nstores):
        kd = vK + 4 * nu
        o = [f"ds_read_b128 {v(vCc,4)}, v{vCR} offset:{128*nu}", f"s_waitcnt vmcnt({2*(7-nu)+nstores}) lgkmcnt(0)"]
        o += shiftconv(kd, True)
        o += [f"v_lshlrev_b32 v{kk}, 16, v{kd+2}", f"v_and_b32 v{kk+1}, 0xffff0000, v{kd+2}", f"v_lshlrev_b32 v{kk+2}, 16, v{kd+3}", f"v_and_b32 v{kk+3}, 0xffff0000, v{kd+3}"]
        for c in range(4): o.append(f"v_mul_f32 v{ac+c}, v{ac+c}, v{kk+c}")
        o += [f"v_cvt_pk_bf16_f32 v{T1}, v{ac}, v{ac+1}", f"v_cvt_pk_bf16_f32 v{T1+1}, v{ac+2}, v{ac+3}"]
        for c in range(4):
            op = "ds_write_b16_d16_hi" if c & 1 else "ds_write_b16"
            o.append(f"{op} v{vXW}, v{T1+(c>>1)} offset:{c*CV_CS+512*(7-nu)}")
        o += ["s_waitcnt lgkmcnt(0)", "s_barrier"]
        for rho in range(8):
            o.append(f"ds_read_b128 {v(vB+32*(nu&1)+4*rho,4)}, v{vXR} offset:{512*(7-nu)+64*rho}")
        return o
    A.extend(kvstage(0, 0))
    stamp(A, C, 2)
    for nu in range(8):
        bb = vB + 32 * (nu & 1)
        mf = []
        for n in range(nu, 8):
            acc = v(vACC + 4 * n, 4)
            for rho in range(8):
                c = "0" if (nu == 0 and rho == 0) else acc
                mf.append(f"v_mfma_f32_16x16x32_bf16 {acc}, {a(4*(8*(n-nu)+rho),4)}, {v(bb+4*rho,4)}, {c}")
            if n == nu: mf.append(f"v_mfma_f32_16x16x32_bf16 {acc}, {v(vAD,4)}, {v(bb,4)}, {acc}")
        an = vACC + 4 * nu
        pub = [f"v_cvt_pk_bf16_f32 v{vY}, v{an}, v{an+1}", f"v_cvt_pk_bf16_f32 v{vY+1}, v{an+2}, v{an+3}",
               f"ds_write_b64 v{vYW}, {v(vY,2)}", "s_waitcnt lgkmcnt(0)", "s_barrier",
               f"ds_read_b64_tr_b16 {v(vY+2,2)}, v{vYR}", f"ds_read_b64_tr_b16 {v(vY+4,2)}, v{vYR} offset:8"]
        pub2 = ["s_waitcnt lgkmcnt(0)", f"buffer_store_dwordx4 {v(vY+2,4)}, v{vYG}, {s(SRD_WS,4)}, s{sY} offen{C.sc}", f"s_add_u32 s{sY}, s{sY}, {32*10240}"]
        A("s_waitcnt lgkmcnt(4)")
        head = mf[:4] + ["s_waitcnt lgkmcnt(0)"] + mf[4:9]
        rest = mf[9:]
        A.extend(head)
        seqs = []
        if nu == 0:
            m_next = npre
            out = []
            first = True
            for n in range(1, 8):
                ch = rest[8*(n-1):8*n]
                fl = []
                if n == 1: fl.append(dict(items=[(x, 1) for x in pub], lo=3))
                if n == 2: fl.append(dict(items=[(x, 1) for x in pub2], lo=0))
                rd = []
                tgt = min(64, max(8 * (n + 2), m_next + 8)) if m_next < 64 else 64
                while m_next < tgt: rd += aread(m_next); m_next += 1
                if rd: fl.append(dict(items=[(x, 1) for x in rd], lo=0))
                if n == 5: kv1 = kvstage(1, 1); parts = [kv1[:18], kv1[18:36], kv1[36:]]
                if n >= 5: fl.append(dict(items=[(x, 1) for x in parts[n-5]], lo=0))
                if 8 * (n + 1) > npre: out.append("s_waitcnt lgkmcnt(0)")
                out += place(ch, fl, cap=3)
            A.extend(out)
        elif rest:
            seqs.append(dict(items=[(x, 1) for x in pub], lo=3))
            seqs.append(dict(items=[(x, 1) for x in pub2], lo=min(10, len(rest) - 1)))
            seqs.append(dict(items=[(x, 1) for x in kvstage(nu + 1, nu + 1)], align="r", hi=len(rest) - 3))
            A.extend(place(rest, seqs, cap=2))
        else:
            A.extend(pub + pub2)
        if nu in (0, 3): stamp(A, C, 3 if nu == 0 else 4)
    stamp(A, C, 5)

def repack(A, C, sK):
    srd(A, SRD_A, P_WD, NB_W)
    A(f"v_lshlrev_b32 v2, 4, v1")
    A(f"s_mul_i32 s48, s{sK}, 40960"); A(f"s_mul_i32 s49, s{S_WAVE}, 10240"); A("s_add_u32 s48, s48, s49")
    for i in range(10):
        if i % 4 == 0:
            A(f"s_add_u32 m0, s49, {1024*i}"); A(f"s_add_u32 s50, s48, {1024*i}")
        A(f"buffer_load_dwordx4 v2, {s(SRD_A,4)}, s50 offen offset:{1024*(i%4)} lds")
    A("v_lshrrev_b32 v3, 4, v1"); A("v_bfe_u32 v4, v1, 2, 2"); A("v_lshl_add_u32 v3, v3, 3, v4"); A("v_mul_u32_u24 v3, 1280, v3")
    A("v_and_b32 v4, 3, v1"); A("v_lshl_add_u32 v3, v4, 3, v3")
    A(f"s_mul_i32 s50, s{S_WAVE}, 320"); A("v_add_u32 v3, s50, v3")
    A(f"s_mul_i32 s50, s{S_WAVE}, 108"); A(f"s_add_u32 s50, s50, s{sK}"); A("s_mul_i32 s50, s50, 5120"); A(f"s_add_u32 s50, s50, {WS_W2F}")
    A("s_waitcnt vmcnt(0)"); A("s_barrier")
    for i in range(10):
        A(f"ds_read_b64_tr_b16 {v(8+4*i,2)}, v3 offset:{32*i}")
        A(f"ds_read_b64_tr_b16 {v(10+4*i,2)}, v3 offset:{32*i+5120}")
    A("s_waitcnt lgkmcnt(0)")
    for i in range(10):
        if i == 4: A("s_add_u32 s50, s50, 4096")
        if i == 5: A(f"s_add_u32 s50, s50, {54*5120-4096}")
        if i == 9: A("s_add_u32 s50, s50, 4096")
        A(f"buffer_store_dwordx4 {v(8+4*i,4)}, v2, {s(SRD_WS,4)}, s50 offen offset:{1024*((i%5)%4)}{C.sc}")

def unpack(dst, src, n):
    o = []
    for i in range(n):
        o.append(f"v_lshlrev_b32 v{dst+2*i}, 16, v{src+i}")
        o.append(f"v_and_b32 v{dst+2*i+1}, 0xffff0000, v{src+i}")
    return o

def rnd_bf16(r):
    return [f"v_cvt_pk_bf16_f32 v{r}, v{r}, v{r}", f"v_and_b32 v{r}, 0xffff0000, v{r}"]

def rowstats(A, xs, vS, vLW, vLR, ldsoff):
    A(f"v_pk_add_f32 {v(vS,2)}, {v(xs,2)}, {v(xs+2,2)}")
    A(f"v_pk_mul_f32 {v(vS+2,2)}, {v(xs,2)}, {v(xs,2)}")
    A(f"v_pk_fma_f32 {v(vS+2,2)}, {v(xs+2,2)}, {v(xs+2,2)}, {v(vS+2,2)}")
    for i in range(2, 10):
        A(f"v_pk_add_f32 {v(vS,2)}, {v(vS,2)}, {v(xs+2*i,2)}")
        A(f"v_pk_fma_f32 {v(vS+2,2)}, {v(xs+2*i,2)}, {v(xs+2*i,2)}, {v(vS+2,2)}")
    A(f"v_add_f32 v{vS}, v{vS}, v{vS+1}")
    A(f"v_add_f32 v{vS+1}, v{vS+2}, v{vS+3}")
    for j in range(2): A(f"v_add_f32_dpp v{vS+j}, v{vS+j}, v{vS+j} row_ror:8 row_mask:0xf bank_mask:0xf")
    for op in ("v_permlane16_swap_b32", "v_permlane32_swap_b32"):
        for j in range(2): A(f"v_mov_b32 v{vS+2+j}, v{vS+j}")
        for j in range(2): A(f"{op} v{vS+j}, v{vS+2+j}")
        for j in range(2): A(f"v_add_f32 v{vS+j}, v{vS+j}, v{vS+2+j}")
    A(f"ds_write_b64 v{vLW}, {v(vS,2)} offset:{ldsoff}")
    A("s_waitcnt lgkmcnt(0)"); A("s_barrier")
    A(f"ds_read_b128 {v(vS+4,4)}, v{vLR} offset:{ldsoff}")
    A(f"ds_read_b128 {v(vS+8,4)}, v{vLR} offset:{ldsoff+16}")
    A("s_waitcnt lgkmcnt(0)")
    A(f"v_pk_add_f32 {v(vS+4,2)}, {v(vS+4,2)}, {v(vS+6,2)}")
    A(f"v_pk_add_f32 {v(vS+8,2)}, {v(vS+8,2)}, {v(vS+10,2)}")
    A(f"v_pk_add_f32 {v(vS,2)}, {v(vS+4,2)}, {v(vS+8,2)}")
    import struct
    inv = struct.unpack("<I", struct.pack("<f", 1.0 / 640))[0]
    eps = struct.unpack("<I", struct.pack("<f", 1e-5))[0]
    A(f"v_mul_f32 v{vS}, {inv:#x}, v{vS}")
    A(f"v_mul_f32 v{vS+1}, {inv:#x}, v{vS+1}")
    A(f"v_fma_f32 v{vS+1}, -v{vS}, v{vS}, v{vS+1}")
    A(f"v_max_f32 v{vS+1}, 0, v{vS+1}")
    A(f"v_cvt_pk_bf16_f32 v{vS+1}, v{vS}, v{vS+1}")
    A(f"v_lshlrev_b32 v{vS}, 16, v{vS+1}")
    A(f"v_and_b32 v{vS+1}, 0xffff0000, v{vS+1}")
    A(f"v_add_f32 v{vS+1}, {eps:#x}, v{vS+1}")
    A.extend(rnd_bf16(vS + 1))
    A(f"v_sqrt_f32 v{vS+1}, v{vS+1}")
    A.extend(rnd_bf16(vS + 1))
    A(f"v_rcp_f32 v{vS+1}, v{vS+1}")

def rphase(A, C, sT):
    vYA, vYB, vXA, vXB, vLA, vLB, vHB, vLW, vLR, vr, vq = range(2, 13)
    vXr = 16
    vYr = 28
    vX = 40; vQ = 60; vYf = 80; vS = 100; vP = 112; vP2 = 124
    srd(A, SRD_A, P_Q, NB_SD)
    A(f"v_lshrrev_b32 v{vq}, 3, v0")
    A(f"v_and_b32 v{vLR}, 7, v1")
    A(f"v_lshrrev_b32 v{vr}, 1, v{vLR}"); A(f"v_and_b32 v{vXA}, 1, v1"); A(f"v_lshl_add_u32 v{vr}, v{vXA}, 2, v{vr}")
    A(f"v_mul_u32_u24 v{vXB}, 1280, v{vr}")
    A(f"v_lshl_add_u32 v{vXA}, v{vq}, 4, v{vXB}")
    A(f"v_lshl_add_u32 v{vXB}, v{vq}, 3, v{vXB}")
    A(f"s_mul_i32 s48, s{sT}, 10240")
    A(f"buffer_load_dwordx4 {v(vXr,4)}, v{vXA}, {s(SRD_A,4)}, s48 offen")
    A(f"buffer_load_dwordx4 {v(vXr+4,4)}, v{vXA}, {s(SRD_A,4)}, s48 offen offset:512")
    A(f"buffer_load_dwordx2 {v(vXr+8,2)}, v{vXB}, {s(SRD_A,4)}, s48 offen offset:1024")
    A(f"v_lshlrev_b32 v{vYB}, 3, v{vLR}")
    A(f"v_lshl_add_u32 v{vYA}, v{vq}, 7, v{vYB}")
    A(f"v_lshl_add_u32 v{vYB}, v{vq}, 6, v{vYB}")
    A(f"s_add_u32 s49, s48, {WS_YP}"); A(f"s_add_u32 s50, s48, {WS_YP+4096}"); A(f"s_add_u32 s51, s48, {WS_YP+8192}")
    A(f"buffer_load_dwordx2 {v(vYr,2)}, v{vYA}, {s(SRD_WS,4)}, s49 offen{C.sc}")
    A(f"buffer_load_dwordx2 {v(vYr+2,2)}, v{vYA}, {s(SRD_WS,4)}, s49 offen offset:64{C.sc}")
    A(f"buffer_load_dwordx2 {v(vYr+4,2)}, v{vYA}, {s(SRD_WS,4)}, s50 offen{C.sc}")
    A(f"buffer_load_dwordx2 {v(vYr+6,2)}, v{vYA}, {s(SRD_WS,4)}, s50 offen offset:64{C.sc}")
    A(f"buffer_load_dwordx2 {v(vYr+8,2)}, v{vYB}, {s(SRD_WS,4)}, s51 offen{C.sc}")
    A(f"v_lshlrev_b32 v{vLB}, 4, v{vr}")
    A(f"v_lshl_add_u32 v{vLA}, v{vq}, 8, v{vLB}")
    A(f"v_lshl_add_u32 v{vLB}, v{vq}, 7, v{vLB}")
    A(f"v_and_b32 v{vLW}, 8, v1"); A(f"v_cmp_eq_u32 vcc, 0, v{vLW}"); A(f"v_mov_b32 v{vLW}, {OOB}"); A("s_nop 0")
    A(f"v_cndmask_b32 v{vLB}, v{vLW}, v{vLB}, vcc"); A(f"v_cndmask_b32 v{vHB}, v{vLW}, v{vXB}, vcc")
    A(f"v_lshlrev_b32 v{vLR}, 5, v{vLR}")
    A(f"s_lshl_b32 s52, s{S_WAVE}, 3"); A(f"v_add_u32 v{vLW}, s52, v{vLR}")
    A(f"s_lshr_b32 s52, s{sT}, 1"); A("s_mul_i32 s52, s52, 20480"); A(f"s_and_b32 s53, s{sT}, 1"); A("s_lshl_b32 s53, s53, 7")
    A("s_add_u32 s52, s52, s53"); A(f"s_add_u32 s52, s52, {WS_LNF}"); A("s_add_u32 s53, s52, 8192"); A("s_add_u32 s54, s52, 16384")
    A(f"s_add_u32 s55, s48, {WS_HR}")
    A("s_waitcnt vmcnt(5)")
    stamp(A, C, 1)
    A.extend(unpack(vX, vXr, 10))
    rowstats(A, vX, vS, vLW, vLR, 0)
    A(f"v_mul_f32 v{vS}, v{vS}, v{vS+1}")
    for i in range(10):
        A(f"v_pk_fma_f32 {v(vQ+2*i,2)}, {v(vX+2*i,2)}, {v(vS,2)}, {v(vS,2)} op_sel:[0,1,0] op_sel_hi:[1,1,0] neg_lo:[0,0,1] neg_hi:[0,0,1]")
    A("s_waitcnt vmcnt(0)")
    stamp(A, C, 2)
    A.extend(unpack(vYf, vYr, 10))
    for i in range(10):
        A(f"v_pk_fma_f32 {v(vX+2*i,2)}, {v(vQ+2*i,2)}, {v(vYf+2*i,2)}, {v(vX+2*i,2)}")
    def packstore(P, src, va, vb, s0, o0, s1, o1, s2, o2):
        for i in range(10): A(f"v_cvt_pk_bf16_f32 v{P+i}, v{src+2*i}, v{src+2*i+1}")
        A(f"buffer_store_dwordx4 {v(P,4)}, v{va}, {s(SRD_WS,4)}, s{s0} offen offset:{o0}{C.sc}")
        A(f"buffer_store_dwordx4 {v(P+4,4)}, v{va}, {s(SRD_WS,4)}, s{s1} offen offset:{o1}{C.sc}")
        for j in range(2): A(f"v_mov_b32_dpp v{P+10+j}, v{P+8+j} row_shl:8 row_mask:0xf bank_mask:0xf bound_ctrl:0")
        A(f"buffer_store_dwordx4 {v(P+8,4)}, v{vb}, {s(SRD_WS,4)}, s{s2} offen offset:{o2}{C.sc}")
    rowstats(A, vX, vS, vLW, vLR, 256)
    A(f"v_mul_f32 v{vS}, v{vS}, v{vS+1}")
    for i in range(10):
        A(f"v_pk_fma_f32 {v(vQ+2*i,2)}, {v(vX+2*i,2)}, {v(vS,2)}, {v(vS,2)} op_sel:[0,1,0] op_sel_hi:[1,1,0] neg_lo:[0,0,1] neg_hi:[0,0,1]")
    packstore(vP, vQ, vLA, vLB, 52, 0, 53, 0, 54, 0)
    packstore(vP2, vX, vXA, vHB, 55, 0, 55, 512, 55, 1024)
    stamp(A, C, 3)

G1_LDS = 163840
def g1(A, C, sC, sU0, ustride, nunits, tag="g1"):
    vL16, vWa, vWb, vTR, vRD, vST, vT0, vT1 = range(2, 10)
    vACC = 12
    vE = 44
    vP = 52
    FR = 56
    depth = 8; grp = 2; ahead = depth - grp
    sSrc, sWb, sRd, sDm, sSt, sCnt, sTm, sNL = 48, 49, 50, 51, 52, 53, 54, 55
    srd(A, SRD_A, P_WG, NB_W); srd(A, SRD_B, P_WU, NB_W)
    A(f"v_lshlrev_b32 v{vL16}, 4, v1")
    A(f"v_lshrrev_b32 v{vT0}, 3, v1"); A(f"v_mul_u32_u24 v{vWa}, 3456, v{vT0}")
    A(f"v_and_b32 v{vT0}, 2, v{vT0}"); A(f"v_and_b32 v{vT1}, 7, v1"); A(f"v_xor_b32 v{vT0}, v{vT0}, v{vT1}")
    A(f"v_xor_b32 v{vT1}, 4, v{vT0}")
    A(f"v_lshl_add_u32 v{vWb}, v{vT1}, 4, v{vWa}"); A(f"v_lshl_add_u32 v{vWa}, v{vT0}, 4, v{vWa}")
    A(f"s_and_b32 s{sTm}, s{S_WAVE}, 1"); A(f"s_mul_i32 s{sSrc}, s{sTm}, {80*3456}")
    A(f"s_lshl_b32 s{sTm}, s{sC}, 7"); A(f"s_add_u32 s{sSrc}, s{sSrc}, s{sTm}")
    A(f"s_mul_i32 s{sWb}, s{S_WAVE}, 10240")
    A(f"s_cmp_ge_u32 s{S_WAVE}, 2")
    A(f"s_cselect_b32 s{SRD_C}, s{SRD_B}, s{SRD_A}"); A(f"s_cselect_b32 s{SRD_C+1}, s{SRD_B+1}, s{SRD_A+1}")
    A(f"s_mov_b32 s{SRD_C+2}, {NB_W}"); A(f"s_mov_b32 s{SRD_C+3}, 0x20000")
    for qd in range(4):
        for i in range(10):
            if i % 4 == 0: A(f"s_add_u32 m0, s{sWb}, {qd*40960+1024*i}")
            A(f"s_add_u32 s{sTm}, s{sSrc}, {(160*qd+8*i)*3456-1024*(i%4)}")
            A(f"buffer_load_dwordx4 v{vWb if i&1 else vWa}, {s(SRD_C,4)}, s{sTm} offen offset:{1024*(i%4)} lds")
    A(f"v_lshrrev_b32 v{vT0}, 4, v1"); A(f"v_bfe_u32 v{vT1}, v1, 2, 2"); A(f"v_lshl_add_u32 v{vTR}, v{vT0}, 3, v{vT1}"); A(f"v_lshlrev_b32 v{vTR}, 7, v{vTR}")
    A(f"v_bfe_u32 v{vT0}, v1, 3, 2")
    A(f"v_xor_b32 v{vT0}, s{S_WAVE}, v{vT0}"); A(f"v_lshl_add_u32 v{vTR}, v{vT0}, 5, v{vTR}")
    A(f"v_and_b32 v{vT0}, 3, v1"); A(f"v_lshl_add_u32 v{vTR}, v{vT0}, 3, v{vTR}")
    A(f"v_bfe_u32 v{vT0}, v1, 4, 1"); A(f"v_mul_u32_u24 v{vST}, 55296, v{vT0}")
    A(f"v_lshrrev_b32 v{vT0}, 5, v1"); A(f"v_lshl_add_u32 v{vST}, v{vT0}, 8, v{vST}")
    A(f"v_and_b32 v{vT0}, 15, v1"); A(f"v_lshl_add_u32 v{vST}, v{vT0}, 4, v{vST}")
    A(f"s_mul_i32 s{sSt}, s{sU0}, {2*55296}"); A(f"s_lshl_b32 s{sTm}, s{sC}, 11"); A(f"s_add_u32 s{sSt}, s{sSt}, s{sTm}")
    A(f"s_lshl_b32 s{sTm}, s{S_WAVE}, 9"); A(f"s_add_u32 s{sSt}, s{sSt}, s{sTm}"); A(f"s_add_u32 s{sSt}, s{sSt}, {WS_HHF}")
    A(f"s_mul_i32 s{sSrc}, s{sU0}, 40960"); A(f"s_add_u32 s{sSrc}, s{sSrc}, s{sWb}"); A(f"s_add_u32 s{sSrc}, s{sSrc}, {WS_LNF}")
    A(f"s_mov_b32 s{sDm}, s{sWb}"); A(f"s_mov_b32 s{sRd}, 0")
    A(f"s_mov_b32 s{sNL}, 0xbfb8aa3b")
    def dma_instrs():
        out = []
        for i in range(10):
            pre = [f"s_add_u32 m0, s{sDm}, {i*1024}", f"s_add_u32 s{sTm}, s{sSrc}, {i*1024}"] if i % 4 == 0 else []
            out.append((pre, f"buffer_load_dwordx4 v{vL16}, {s(SRD_WS,4)}, s{sTm} offen offset:{(i%4)*1024}{C.sc} lds"))
        return out
    def adv():
        return [f"s_add_u32 s{sSrc}, s{sSrc}, {ustride*40960}", f"s_add_u32 s{sDm}, s{sDm}, 40960", f"s_cmp_ge_u32 s{sDm}, {3*40960}", f"s_cselect_b32 s{sDm}, s{sWb}, s{sDm}"]
    def dma_now():
        for pre, d in dma_instrs(): A.extend(pre); A(d)
        A.extend(adv())
    def trq(qd):
        for kk in range(5):
            for mat in range(2):
                for hh in range(2):
                    A(f"ds_read_b64_tr_b16 {a(8*(5*qd+kk)+4*mat+2*hh,2)}, v{vTR} offset:{mat*20480+(32*kk+4*hh)*128}")
        if qd < 3: A(f"v_add_u32 v{vTR}, 40960, v{vTR}")
    A("s_waitcnt vmcnt(30)"); A("s_barrier"); stamp(A, C, 1); trq(0)
    A("s_waitcnt vmcnt(20) lgkmcnt(0)"); A("s_barrier"); dma_now(); trq(1)
    A("s_waitcnt vmcnt(20) lgkmcnt(0)"); A("s_barrier"); dma_now(); trq(2)
    A("s_waitcnt vmcnt(20) lgkmcnt(0)"); A("s_barrier"); trq(3)
    A("s_waitcnt vmcnt(10) lgkmcnt(0)"); A("s_barrier")
    stamp(A, C, 2)
    A(f"v_mov_b32 v{vRD}, v{vL16}")
    for i in range(ahead): A(f"ds_read_b128 {v(FR+4*i,4)}, v{vRD} offset:{i*1024}")
    def epi(pacc):
        o = []
        G = lambda i: pacc + 8 * (i >> 2) + (i & 3)
        U = lambda i: G(i) + 4
        for i in range(8): o.append((f"v_mul_f32 v{vE+i}, s{sNL}, v{G(i)}", 1))
        for i in range(8): o.append((f"v_exp_f32 v{vE+i}, v{vE+i}", 2))
        for i in range(8): o.append((f"v_add_f32 v{vE+i}, 1.0, v{vE+i}", 1))
        for i in range(8): o.append((f"v_rcp_f32 v{vE+i}, v{vE+i}", 2))
        for i in range(8): o.append((f"v_mul_f32 v{vE+i}, v{vE+i}, v{U(i)}", 1))
        for i in range(4): o.append((f"v_cvt_pk_bf16_f32 v{vP+i}, v{vE+2*i}, v{vE+2*i+1}", 1))
        o.append((f"v_permlane16_swap_b32 v{vP}, v{vP+2}", 1)); o.append((f"v_permlane16_swap_b32 v{vP+1}, v{vP+3}", 1))
        o.append((f"buffer_store_dwordx4 {v(vP,4)}, v{vST}, {s(SRD_WS,4)}, s{sSt} offen{C.sc}", 1))
        o.append((f"s_add_u32 s{sSt}, s{sSt}, {ustride*2*55296}", 1))
        return o
    def unit(half, do_epi, do_dma, do_next, nvm):
        acc = vACC + 16 * half; pacc = vACC + 16 * (1 - half)
        mf = []
        for st in range(2):
            for k0 in range(0, 20, grp):
                for gu in range(2):
                    for kk in range(k0, k0 + grp):
                        i = st * 20 + kk; ac = acc + 8 * st + 4 * gu
                        c = "0" if kk == 0 else v(ac, 4)
                        mf.append((f"v_mfma_f32_16x16x32_bf16 {v(ac,4)}, {a(8*kk+4*gu,4)}, {v(FR+4*(i%depth),4)}, {c}", i))
        n = len(mf); cap = 2
        last_use = {}
        for idx, (_, f) in enumerate(mf): last_use[f] = idx
        gaps = [[] for _ in range(n)]; cost = [0] * n
        nxt = ahead; waited = -1; lim = 40 + ahead if do_next else 40
        bar_idx = None
        for idx, (_, f) in enumerate(mf):
            if nxt < lim and (nxt - depth < 0 or last_use[nxt - depth] < idx):
                if nxt == 40:
                    gaps[idx] += [f"s_waitcnt lgkmcnt(0) vmcnt({nvm})", "s_barrier", f"v_add_u32 v{vRD}, s{sRd}, v{vL16}"]
                    cost[idx] += 3; waited = 39; bar_idx = idx
                gaps[idx].append(f"ds_read_b128 {v(FR+4*(nxt%depth),4)}, v{vRD} offset:{(nxt%40)*1024}"); cost[idx] += 1
                nxt += 1
            if f > waited:
                tgt = min(f + 1, 39)
                gaps[idx].append(f"s_waitcnt lgkmcnt({nxt-1-tgt})"); cost[idx] += 1; waited = tgt
        assert nxt == lim
        span = 56
        if do_dma:
            for i, (pre, d) in enumerate(dma_instrs()):
                pos = 1 + (i * span) // 10
                while cost[pos] >= cap: pos += 1
                if pre: gaps[pos-1] += pre; cost[pos-1] += 2
                gaps[pos].append(d); cost[pos] += 1
        sal = (adv() if do_dma else []) + ([f"s_add_u32 s{sRd}, s{sRd}, 40960", f"s_cmp_ge_u32 s{sRd}, {3*40960}", f"s_cselect_b32 s{sRd}, 0, s{sRd}"] if do_next else [])
        pos = span + 2
        for x in sal:
            gaps[pos].append(x); cost[pos] += 1
            if not x.startswith("s_cmp") and cost[pos] >= cap: pos += 1
        assert bar_idx is None or pos < bar_idx
        stpos = None
        if do_epi:
            pos = 5
            for x, c in epi(pacc):
                if x.startswith("buffer_store") and bar_idx is not None: pos = max(pos, bar_idx + 1)
                while pos < n - 1 and cost[pos] + c > cap: pos += 1
                gaps[pos].append(x); cost[pos] += c
                if x.startswith("buffer_store"): stpos = pos
            assert bar_idx is None or stpos > bar_idx, (stpos, bar_idx)
        out = []
        for idx, (m, f) in enumerate(mf):
            out += gaps[idx]; out.append(m)
        return out
    assert nunits >= 4 and nunits % 2 == 0
    A.extend(unit(0, False, True, True, 10))
    A.extend(unit(1, True, True, True, 10))
    nloop = (nunits - 4) // 2
    if nloop:
        A(f"s_mov_b32 s{sCnt}, {nloop}")
        A.label(f"L_{tag}_loop")
        body = unit(0, True, True, True, 11) + unit(1, True, True, True, 11)
        A.extend(body)
        A(f"s_sub_u32 s{sCnt}, s{sCnt}, 1"); A(f"s_cmp_lg_u32 s{sCnt}, 0"); A(f"s_cbranch_scc1 L_{tag}_loop")
    A.extend(unit(0, True, False, True, 1))
    A.extend(unit(1, True, False, False, 0))
    stamp(A, C, 3)
    A.extend([x for x, _ in epi(vACC + 16)])
    stamp(A, C, 4)

G2_LDS = 2 * 20480
def g2(A, C, sRT, sCB):
    vL16, vLast, vRW, vRR, vO, vT0, vT1 = range(2, 9)
    vWX = 12
    vHH = 36
    vACC = 92
    vR = 132
    vRes = 164
    vTm = 172
    sW, sH, sTm, sO, sK0, sHR = 48, 49, 50, 51, 52, 53
    srd(A, SRD_A, P_OUT, NB_SD)
    def W(t, dt):
        f = 5 * t + dt
        return a(4 * f, 4) if f < 64 else v(vWX + 4 * (f - 64), 4)
    A(f"v_lshlrev_b32 v{vL16}, 4, v1")
    A(f"s_mul_i32 s{sK0}, s{S_WAVE}, 14"); A(f"s_cmp_eq_u32 s{S_WAVE}, 3"); A(f"s_cselect_b32 s{sK0}, 41, s{sK0}")
    A(f"s_cmp_ge_u32 s{S_WAVE}, 2"); A(f"s_cselect_b32 s{sTm}, {OOB}, 0"); A(f"v_or_b32 v{vLast}, s{sTm}, v{vL16}")
    A(f"s_mul_i32 s{sW}, s{sCB}, 54"); A(f"s_add_u32 s{sW}, s{sW}, s{sK0}"); A(f"s_mul_i32 s{sW}, s{sW}, 5120"); A(f"s_add_u32 s{sW}, s{sW}, {WS_W2F}")
    A(f"s_mul_i32 s{sH}, s{sRT}, 54"); A(f"s_add_u32 s{sH}, s{sH}, s{sK0}"); A(f"s_lshl_b32 s{sH}, s{sH}, 10"); A(f"s_add_u32 s{sH}, s{sH}, {WS_HHF}")
    def hload(p, t, force=False):
        pre = [f"s_add_u32 s{sTm}, s{sH}, {p*32*55296+1024*(t-t%4)}"] if (t % 4 == 0 or force) else []
        return pre + [f"buffer_load_dwordx4 {v(vHH+4*t,4)}, v{vLast if t==13 else vL16}, {s(SRD_WS,4)}, s{sTm} offen offset:{1024*(t%4)}{C.sc}"]
    def wload(t):
        o = [f"s_add_u32 s30, s{sW}, {5120*t}", f"s_add_u32 s31, s{sW}, {5120*t+4096}"]
        for dt in range(5):
            o.append(f"buffer_load_dwordx4 {W(t,dt)}, v{vLast if t==13 else vL16}, {s(SRD_WS,4)}, s{31 if dt==4 else 30} offen offset:{1024*(dt%4)}{C.sc}")
        return o
    NPRE = 9
    for t in range(NPRE):
        A.extend(hload(0, t)); A.extend(wload(t))
    A(f"s_mul_i32 s30, s{S_WAVE}, 5120"); A(f"v_add_u32 v{vRW}, s30, v{vL16}")
    A(f"v_mul_u32_u24 v{vT0}, 205, v1"); A(f"v_lshrrev_b32 v{vT0}, 11, v{vT0}")
    A(f"v_mul_u32_u24 v{vT1}, 10, v{vT0}"); A(f"v_sub_u32 v{vT1}, v1, v{vT1}")
    A(f"v_and_b32 v{vT0}, 3, v{vT0}")
    A(f"s_lshl_b32 s30, s{S_WAVE}, 2"); A(f"v_add_u32 v{vT0}, s30, v{vT0}")
    A(f"v_lshlrev_b32 v{vRR}, 4, v{vT0}"); A(f"v_lshl_add_u32 v{vRR}, v{vT1}, 9, v{vRR}")
    A(f"v_mul_u32_u24 v{vO}, 1280, v{vT0}"); A(f"v_lshl_add_u32 v{vO}, v{vT1}, 4, v{vO}")
    A(f"v_cmp_gt_u32 vcc, 40, v1"); A(f"v_mov_b32 v{vT0}, {OOB}"); A("s_nop 0"); A(f"v_cndmask_b32 v{vO}, v{vT0}, v{vO}, vcc")
    A(f"s_mul_i32 s{sO}, s{sRT}, {16*1280}"); A(f"s_mul_i32 s30, s{sCB}, 160"); A(f"s_add_u32 s{sO}, s{sO}, s30")
    A(f"s_add_u32 s{sHR}, s{sO}, {WS_HR}")
    def red1(p):
        acc = vACC + 20 * (p & 1)
        o = [f"ds_write_b128 v{vRW}, {v(acc+4*dt,4)} offset:{(p&1)*20480+1024*dt}" for dt in range(5)]
        o += ["s_waitcnt lgkmcnt(0)", "s_barrier"]
        for w in range(4):
            for j in range(2):
                o.append(f"ds_read_b128 {v(vR+8*w+4*j,4)}, v{vRR} offset:{(p&1)*20480+5120*w+256*j}")
        return o
    def red2(p):
        rr = vRes + 4 * (p & 1)
        o = unpack(vTm, rr, 4)
        o.append("s_waitcnt lgkmcnt(0)")
        for w in range(4):
            for j in range(8): o.append(f"v_add_f32 v{vTm+j}, v{vTm+j}, v{vR+8*w+j}")
        for j in range(4): o.append(f"v_cvt_pk_bf16_f32 v{vR+j}, v{vTm+2*j}, v{vTm+2*j+1}")
        o.append(f"buffer_store_dwordx4 {v(vR,4)}, v{vO}, {s(SRD_A,4)}, s{sO} offen")
        o.append(f"s_add_u32 s{sO}, s{sO}, {512*1280}")
        return o
    def resload(p):
        return [f"buffer_load_dwordx4 {v(vRes+4*(p&1),4)}, v{vO}, {s(SRD_WS,4)}, s{sHR} offen{C.sc}", f"s_add_u32 s{sHR}, s{sHR}, {512*1280}"]
    stream = []
    issued = []
    for t in range(NPRE):
        issued.append(("h", 0, t)); issued += [("w", t)] * 5
    def emit(x, tg=None):
        stream.append(x)
        if x.startswith("buffer_"): issued.append(tg)
    def need(tags):
        last = max(i for i, tg in enumerate(issued) if tg in tags)
        stream.append(f"s_waitcnt vmcnt({len(issued)-1-last})")
    for p in range(4):
        acc = vACC + 20 * (p & 1)
        extra = []
        if p > 0: extra = [(x, None) for x in red1(p - 1)] + [("NEEDRES", p - 1)] + [(x, "st") for x in red2(p - 1)]
        extra = [(x, ("r", p)) for x in resload(p)] + extra
        ei = 0
        for t in range(14):
            need([("h", p, t)] + ([("w", t)] if p == 0 else []))
            if p == 0 and t == 0: stream.append("STAMP1")
            fl = []
            if p == 0 and t + NPRE < 14:
                fl += [(x, ("h", 0, t + NPRE)) for x in hload(0, t + NPRE, True)] + [(x, ("w", t + NPRE)) for x in wload(t + NPRE)]
            for dt in range(5):
                c = "0" if t == 0 else v(acc + 4 * dt, 4)
                emit(f"v_mfma_f32_16x16x32_bf16 {v(acc+4*dt,4)}, {W(t,dt)}, {v(vHH+4*t,4)}, {c}")
                k = 0
                lim = 2 if dt < 4 else 0
                while k < lim and fl:
                    x, tg = fl.pop(0); emit(x, tg); k += 1
                while k < lim and ei < len(extra) and (5 * t + dt >= 3):
                    x, tg = extra[ei]; ei += 1
                    if x == "NEEDRES": need([("r", tg)])
                    else: emit(x, tg)
                    k += 1
            for x, tg in fl: emit(x, tg)
            if p < 3:
                hl = hload(p + 1, t, p == 0 and t + NPRE < 14)
                for x in hl: emit(x, ("h", p + 1, t))
        assert ei == len(extra)
    for x in red1(3): emit(x)
    need([("r", 3)])
    for x in red2(3): emit(x, "st")
    for x in stream:
        if x == "STAMP1": stamp(A, C, 1)
        else: A(x)
    stamp(A, C, 2)
```

```python
import sys
from asmlib import *
from phases import *
import hazcheck

def fin(A, name):
    A.lines = hazcheck.autopad(A.lines, name)
    errs = hazcheck.check(A.lines, name)
    assert not errs
    return A

def build(diag, extra_empty=0):
    C = Ctx(diag)
    A = Asm(); stamp(A, C, 0); prologue(A, 256, "L_k1_end")
    A("s_and_b32 s30, s2, 7"); A("s_lshr_b32 s31, s2, 3")
    A("s_cmp_ge_u32 s31, 20"); A("s_cbranch_scc1 L_k1_rep")
    A("s_mul_i32 s79, s30, 20"); A("s_add_u32 s79, s79, s31")
    conv(A, C, 79)
    stamps_out(A, C, 0, 6, "k1")
    A("s_endpgm")
    A.label("L_k1_rep")
    A("s_waitcnt vmcnt(0) lgkmcnt(0)")
    A("s_sub_u32 s79, s2, 160"); A("s_cmp_ge_u32 s79, 54"); A("s_cbranch_scc1 L_k1_end")
    repack(A, C, 79)
    A.label("L_k1_end"); A("s_endpgm")
    K1 = fin(A, "k1")
    A = Asm(); stamp(A, C, 0); prologue(A, 256, "L_k2_end")
    rphase(A, C, 2)
    stamps_out(A, C, 1, 4, "k2")
    A.label("L_k2_end"); A("s_endpgm")
    K2 = fin(A, "k2")
    A = Asm(); stamp(A, C, 0); prologue(A, 216, "L_k3_end")
    A("s_and_b32 s30, s2, 7"); A("s_lshr_b32 s31, s2, 3"); A("s_mul_i32 s30, s30, 27"); A("s_add_u32 s30, s30, s31")
    A("s_lshr_b32 s78, s30, 3"); A("s_and_b32 s79, s30, 7")
    g1(A, C, 78, 79, 8, 8)
    stamps_out(A, C, 2, 5, "k3")
    A.label("L_k3_end"); A("s_endpgm")
    K3 = fin(A, "k3")
    A = Asm(); stamp(A, C, 0); prologue(A, 256, "L_k4_end")
    A("s_and_b32 s30, s2, 7"); A("s_lshr_b32 s31, s2, 3")
    A("s_lshr_b32 s78, s30, 1"); A("s_lshl_b32 s78, s78, 3"); A("s_lshr_b32 s79, s31, 2"); A("s_add_u32 s78, s78, s79")
    A("s_and_b32 s79, s30, 1"); A("s_lshl_b32 s79, s79, 2"); A("s_and_b32 s31, s31, 3"); A("s_add_u32 s79, s79, s31")
    g2(A, C, 78, 79)
    stamps_out(A, C, 3, 3, "k4")
    A.label("L_k4_end"); A("s_endpgm")
    K4 = fin(A, "k4")
    launches = [("conv_kernel", 256, 256, CV_LDS), ("ln_kernel", 256, 256, 512), ("g1_kernel", 216, 256, G1_LDS), ("g2_kernel", 256, 256, G2_LDS)]
    kernels = [("conv_kernel", K1, 188, 256), ("ln_kernel", K2, 136, 0), ("g1_kernel", K3, 88, 160), ("g2_kernel", K4, 180, 256)]
    if extra_empty:
        E = Asm(); E("s_endpgm")
        launches += [("empty_kernel", 256, 256, 0)] * extra_empty
        kernels.append(("empty_kernel", E, 8, 0))
    return module(launches, kernels)

if __name__ == "__main__":
    open("m_diag.s", "w").write(build(True))
    open("m.s", "w").write(build(False))
    open("m_e2.s", "w").write(build(False, 2))
```

```python
from asmlib import *
from phases import *
from fe import *

S_C, S_I, S_RT, S_CB = 78, 77, 76, 75
vL16, vTag, vFLa, vPoll, vPA = 10, 11, 9, 8, 7
def W2(f):
    if f < 40: return v(96 + 4 * f, 4)
    if f < 64: return a(160 + 4 * (f - 40), 4)
    return a(4 * (f - 64), 4)
sW2, sHH, sK0 = 72, 73, 74
vLast = 6

def spin(tail, name, load, check, sleep=0):
    tail.label(f"L_{name}r"); tail(f"s_mov_b32 s{S_SPIN}, {SPIN_MAX}")
    tail.label(f"L_{name}l")
    if sleep: tail(f"s_sleep {sleep}")
    for x in load: tail(x[0] if isinstance(x, tuple) else x)
    tail(f"s_sub_u32 s{S_SPIN}, s{S_SPIN}, 1"); tail("s_waitcnt vmcnt(0)"); tail(f"s_cbranch_scc1 L_{name}b")
    tail.extend(check); tail("s_nop 0"); tail(f"s_cbranch_vccnz L_{name}l"); tail(f"s_branch L_{name}b")
    return check + [f"s_cbranch_vccnz L_{name}r", f"L_{name}b:"]

def g2_setup(A):
    A(f"s_lshr_b32 s{S_RT}, s{S_X}, 1"); A(f"s_lshl_b32 s{S_RT}, s{S_RT}, 3"); A(f"s_lshr_b32 s30, s{S_J}, 2"); A(f"s_add_u32 s{S_RT}, s{S_RT}, s30")
    A(f"s_and_b32 s{S_CB}, s{S_X}, 1"); A(f"s_lshl_b32 s{S_CB}, s{S_CB}, 2"); A(f"s_and_b32 s30, s{S_J}, 3"); A(f"s_add_u32 s{S_CB}, s{S_CB}, s30")
    A(f"s_mul_i32 s{sK0}, s{S_WAVE}, 14"); A(f"s_cmp_eq_u32 s{S_WAVE}, 3"); A(f"s_cselect_b32 s{sK0}, 41, s{sK0}")
    A(f"s_mul_i32 s{sW2}, s{S_CB}, 54"); A(f"s_add_u32 s{sW2}, s{sW2}, s{sK0}"); A(f"s_mul_i32 s{sW2}, s{sW2}, 5120"); A(f"s_add_u32 s{sW2}, s{sW2}, {WS_W2F}")
    A(f"s_mul_i32 s{sHH}, s{S_RT}, 54"); A(f"s_add_u32 s{sHH}, s{sHH}, s{sK0}"); A(f"s_lshl_b32 s{sHH}, s{sHH}, 10"); A(f"s_add_u32 s{sHH}, s{sHH}, {WS_HHF}")
    A(f"v_lshlrev_b32 v{vL16}, 4, v1"); A(f"v_mov_b32 v{vTag}, s{S_TAG32}")

def w2load(f0, f1):
    o = []
    for f in range(f0, f1):
        if f == f0 or f % 4 == 0: o.append(f"s_add_u32 s31, s{sW2}, {1024*(f-f%4)}")
        o.append((f"buffer_load_dwordx4 {W2(f)}, v{vLast if f>=65 else vL16}, {s(SRD_WS,4)}, s31 offen offset:{1024*(f%4)} sc1", ("w2", f)))
    return o

def w2_wait(S, tail, name):
    ld = [f"s_mov_b32 s30, {FL_W2}", (f"buffer_load_dword v{vPoll}, v{vPA}, {s(SRD_WS,4)}, s30 offen sc1", "pw")]
    S(f"v_min_u32 v{vPA}, 53, v1"); S(f"v_lshlrev_b32 v{vPA}, 2, v{vPA}")
    S.extend(ld)
    return [("need", ["pw"])] + spin(tail, name, ld, [f"v_cmp_ne_u32 vcc, v{vTag}, v{vPoll}"], 4)

vWa, vWb, vTR = 2, 3, 4
sWsrc, sWb = 48, 49
def w1_setup(A, t0, t1, va=vWa, vb=vWb):
    A(f"s_mul_i32 s30, s{S_X}, 27"); A(f"s_add_u32 s30, s30, s{S_J}"); A(f"s_lshr_b32 s{S_C}, s30, 3"); A(f"s_and_b32 s{S_I}, s30, 7")
    A(f"v_lshrrev_b32 v{t0}, 3, v1"); A(f"v_mul_u32_u24 v{va}, 3456, v{t0}")
    A(f"v_and_b32 v{t0}, 2, v{t0}"); A(f"v_and_b32 v{t1}, 7, v1"); A(f"v_xor_b32 v{t0}, v{t0}, v{t1}")
    A(f"v_xor_b32 v{t1}, 4, v{t0}")
    A(f"v_lshl_add_u32 v{vb}, v{t1}, 4, v{va}"); A(f"v_lshl_add_u32 v{va}, v{t0}, 4, v{va}")
    A(f"s_and_b32 s30, s{S_WAVE}, 1"); A(f"s_mul_i32 s{sWsrc}, s30, {80*3456}")
    A(f"s_lshl_b32 s30, s{S_C}, 7"); A(f"s_add_u32 s{sWsrc}, s{sWsrc}, s30")
    A(f"s_mul_i32 s{sWb}, s{S_WAVE}, 10240")
    A(f"s_cmp_ge_u32 s{S_WAVE}, 2")
    A(f"s_cselect_b32 s{SRD_C}, s{P_WU}, s{P_WG}"); A(f"s_cselect_b32 s{SRD_C+1}, s{P_WU+1}, s{P_WG+1}")
    A(f"s_and_b32 s{SRD_C+1}, s{SRD_C+1}, 0xffff"); A(f"s_mov_b32 s{SRD_C+2}, {NB_W}"); A(f"s_mov_b32 s{SRD_C+3}, 0x20000")
W1SLOT = [1, 2, 3, 0]
def w1_dma(qd, va=vWa, vb=vWb):
    o = []
    for i in range(10):
        if i % 4 == 0: o.append(f"s_add_u32 m0, s{sWb}, {W1SLOT[qd]*40960+1024*i}")
        o.append(f"s_add_u32 s31, s{sWsrc}, {(160*qd+8*i)*3456-1024*(i%4)}")
        o.append((f"buffer_load_dwordx4 v{vb if i&1 else va}, {s(SRD_C,4)}, s31 offen offset:{1024*(i%4)} lds", ("w1", qd)))
    return o
def w1_traddr(A, t0, t1):
    A(f"v_lshrrev_b32 v{t0}, 4, v1"); A(f"v_bfe_u32 v{t1}, v1, 2, 2"); A(f"v_lshl_add_u32 v{vTR}, v{t0}, 3, v{t1}"); A(f"v_lshlrev_b32 v{vTR}, 7, v{vTR}")
    A(f"v_bfe_u32 v{t0}, v1, 3, 2"); A(f"v_xor_b32 v{t0}, s{S_WAVE}, v{t0}"); A(f"v_lshl_add_u32 v{vTR}, v{t0}, 5, v{vTR}")
    A(f"v_and_b32 v{t0}, 3, v1"); A(f"v_lshl_add_u32 v{vTR}, v{t0}, 3, v{vTR}")
def w1_tr(qd, tmp):
    o = [f"v_add_u32 v{tmp}, {W1SLOT[qd]*40960}, v{vTR}"]
    for kk in range(5):
        for mat in range(2):
            for hh in range(2):
                o.append(f"ds_read_b64_tr_b16 {a(8*(5*qd+kk)+4*mat+2*hh,2)}, v{tmp} offset:{mat*20480+(32*kk+4*hh)*128}")
    return o

def hh_poll(p2, reg):
    return [f"s_lshr_b32 s30, s{S_RT}, 1", "s_lshl_b32 s30, s30, 7", f"s_add_u32 s30, s30, {FL_HH+p2*4096}",
            (f"buffer_load_dword v{reg}, v{vPA}, {s(SRD_WS,4)}, s30 offen sc1", ("hp", p2))]
def hh_polladdr(t0):
    return [f"v_and_b32 v{vPA}, 31, v1", f"v_min_u32 v{vPA}, 26, v{vPA}", f"v_lshlrev_b32 v{vPA}, 2, v{vPA}", f"v_lshrrev_b32 v{t0}, 5, v1", f"v_lshl_add_u32 v{vPA}, v{t0}, 11, v{vPA}"]

def g1f(S, C, tail, NU=8, ustride=8, pf=True):
    A = S
    vRD0, vRD1, vST, vT0, vT1 = 2, 3, 5, 88, 89
    vACC = 12; vE = 44; vP = 52; FR = 56
    depth = 8; grp = 2; ahead = depth - grp
    sSrc, sSt, sNL, sLF, sHF = 50, 51, 52, 53, 54
    SL = [1, 2]
    w1_traddr(S.A, vT0, vT1)
    A(f"s_mul_i32 s{sSt}, s{S_I}, {2*55296}"); A(f"s_lshl_b32 s30, s{S_C}, 11"); A(f"s_add_u32 s{sSt}, s{sSt}, s30")
    A(f"s_lshl_b32 s30, s{S_WAVE}, 9"); A(f"s_add_u32 s{sSt}, s{sSt}, s30"); A(f"s_add_u32 s{sSt}, s{sSt}, {WS_HHF}")
    A(f"s_mul_i32 s{sSrc}, s{S_I}, 40960"); A(f"s_add_u32 s{sSrc}, s{sSrc}, s{sWb}"); A(f"s_add_u32 s{sSrc}, s{sSrc}, {WS_LNF}")
    A(f"s_mov_b32 s{sNL}, 0xbfb8aa3b")
    A(f"s_lshl_b32 s{sLF}, s{S_I}, 7"); A(f"s_lshl_b32 s30, s{S_C}, 2"); A(f"s_add_u32 s{sHF}, s{sLF}, s30")
    A(f"s_add_u32 s{sLF}, s{sLF}, {FL_LN}"); A(f"s_add_u32 s{sHF}, s{sHF}, {FL_HH}")
    A.need([("w1", 0), ("w1", 1), ("w1", 2)], " lgkmcnt(0)"); A("s_barrier")
    A.extend(w1_dma(3))
    chk = w2_wait(S, tail, "g1w2")
    for qd in range(3): A.extend(w1_tr(qd, vT0))
    A(f"v_bfe_u32 v{vT1}, v1, 4, 1"); A(f"v_mul_u32_u24 v{vST}, 55296, v{vT1}")
    A(f"v_lshrrev_b32 v{vT1}, 5, v1"); A(f"v_lshl_add_u32 v{vST}, v{vT1}, 8, v{vST}")
    A(f"v_and_b32 v{vT1}, 15, v1"); A(f"v_lshl_add_u32 v{vST}, v{vT1}, 4, v{vST}")
    A(f"v_cmp_eq_u32 vcc, 0, v0"); A(f"v_bfrev_b32 v{vFLa}, 1"); A("s_nop 0"); A(f"v_cndmask_b32 v{vFLa}, v{vFLa}, 0, vcc")
    A.extend(chk)
    A(f"v_lshlrev_b32 v{vPA}, 2, v{vT1}")
    def lpoll(j): return [f"s_add_u32 s30, s{sLF}, {j*ustride*128}", (f"buffer_load_dword v{vPoll}, v{vPA}, {s(SRD_WS,4)}, s30 offen sc1", ("lp", j))]
    def lcheck(j): return spin(tail, f"g1l{j}", lpoll(j), [f"v_cmp_ne_u32 vcc, v{vTag}, v{vPoll}"], 1)
    def dma(j):
        out = []
        for i in range(10):
            pre = [f"s_add_u32 m0, s{sWb}, {SL[j&1]*40960+i*1024}", f"s_add_u32 s55, s{sSrc}, {j*ustride*40960+i*1024}"] if i % 4 == 0 else []
            out.append(pre + [(f"buffer_load_dwordx4 v{vL16}, {s(SRD_WS,4)}, s55 offen offset:{(i%4)*1024} sc1 lds", ("ln", j))])
        return out
    def hflag(j): return [f"s_add_u32 s30, s{sHF}, {j*ustride*128}", (f"buffer_store_dword v{vTag}, v{vFLa}, {s(SRD_WS,4)}, s30 offen sc1", "hf")]
    A.extend(lpoll(0))
    A(f"v_add_u32 v{vRD0}, {SL[0]*40960}, v{vL16}"); A(f"v_add_u32 v{vRD1}, {SL[1]*40960}, v{vL16}")
    A.need([("lp", 0)], " lgkmcnt(0)"); A("s_barrier")
    A.extend(w1_tr(3, vT0))
    A.extend(lcheck(0))
    stamp(S.A, C, 7)
    for d in dma(0): A.extend(d)
    A.extend(lpoll(1))
    A.need([("lp", 1)], " lgkmcnt(0)"); A("s_barrier")
    for i in range(ahead): A(f"ds_read_b128 {v(FR+4*i,4)}, v{vRD0} offset:{i*1024}")
    A.extend(lcheck(1))
    stamp(S.A, C, 8)
    def epi(j):
        pacc = vACC + 16 * (j & 1); o = []
        G = lambda i: pacc + 8 * (i >> 2) + (i & 3)
        for i in range(8): o.append((f"v_mul_f32 v{vE+i}, s{sNL}, v{G(i)}", 1))
        for i in range(8): o.append((f"v_exp_f32 v{vE+i}, v{vE+i}", 2))
        for i in range(8): o.append((f"v_add_f32 v{vE+i}, 1.0, v{vE+i}", 1))
        for i in range(8): o.append((f"v_rcp_f32 v{vE+i}, v{vE+i}", 2))
        for i in range(8): o.append((f"v_mul_f32 v{vE+i}, v{vE+i}, v{G(i)+4}", 1))
        for i in range(4): o.append((f"v_cvt_pk_bf16_f32 v{vP+i}, v{vE+2*i}, v{vE+2*i+1}", 1))
        o.append((f"s_add_u32 s56, s{sSt}, {j*ustride*2*55296}", 1))
        o.append((f"v_permlane16_swap_b32 v{vP}, v{vP+2}", 1)); o.append((f"v_permlane16_swap_b32 v{vP+1}, v{vP+3}", 1))
        o.append(((f"buffer_store_dwordx4 {v(vP,4)}, v{vST}, {s(SRD_WS,4)}, s56 offen sc1", ("hs", j)), 1))
        return o
    pend = dma(1)
    for j in range(NU):
        acc = vACC + 16 * (j & 1); last = j == NU - 1
        mf = []
        for st in range(2):
            for k0 in range(0, 20, grp):
                for gu in range(2):
                    for kk in range(k0, k0 + grp):
                        i = st * 20 + kk; ac = acc + 8 * st + 4 * gu
                        c = "0" if kk == 0 else v(ac, 4)
                        mf.append((f"v_mfma_f32_16x16x32_bf16 {v(ac,4)}, {a(8*kk+4*gu,4)}, {v(FR+4*(i%depth),4)}, {c}", i))
        n = len(mf); cap = 2
        last_use = {}
        for idx, (_, f) in enumerate(mf): last_use[f] = idx
        gaps = [[] for _ in range(n)]; cost = [0] * n
        nxt = ahead; waited = -1; lim = 40 if last else 40 + ahead
        bar = None
        for idx, (_, f) in enumerate(mf):
            if nxt <= lim and (nxt - depth < 0 or last_use[nxt - depth] < idx):
                if nxt == 40 and bar is None:
                    tags = [("ln", j + 1), ("lp", j + 2), ("hs", j - 2)]
                    gaps[idx] += [("need", tags, " lgkmcnt(0)"), "s_barrier"]; cost[idx] += 2; waited = 39; bar = idx
                if nxt < lim:
                    rv = (vRD0, vRD1)[(j + (nxt >= 40)) & 1]
                    gaps[idx].append(f"ds_read_b128 {v(FR+4*(nxt%depth),4)}, v{rv} offset:{(nxt%40)*1024}"); cost[idx] += 1
                    nxt += 1
            if f > waited:
                tgt = min(f + 1, 39)
                gaps[idx].append(f"s_waitcnt lgkmcnt({nxt-1-tgt})"); cost[idx] += 1; waited = tgt
        def put(pos, items, step=0):
            for x in items:
                c = 0 if (isinstance(x, str) and x.endswith(":")) else 1
                while c and pos < n - 1 and cost[pos] >= cap: pos += 1
                gaps[pos].append(x); cost[pos] += c
            return pos + step
        pos = 0
        for d in pend: pos = put(pos, d, 2)
        pend = []
        if j + 2 < NU: pos = put(pos, lpoll(j + 2), 2)
        if last: pos = put(pos, hh_polladdr(vT0) + hh_poll(0, vPoll), 2)
        if pf:
            L = w2load(8 * j, 8 * j + 8); grpL = []
            for x in L:
                grpL.append(x)
                if isinstance(x, tuple): pos = put(pos, grpL, 3); grpL = []
        assert pos < bar + 3, (pos, bar)
        pos = bar + 1
        if j + 2 < NU: pos = put(pos, lcheck(j + 2))
        if j >= 2: pos = put(pos, hflag(j - 2))
        if j + 2 < NU:
            pend = dma(j + 2)
            while pos < n - 3 and len(pend) > 6: pos = put(pos, pend.pop(0), 2)
        if j >= 1:
            pos = 5
            for x, c in epi(j - 1):
                if isinstance(x, tuple) and not last: pos = max(pos, bar + 1)
                while pos < n - 1 and cost[pos] + c > cap: pos += 1
                gaps[pos].append(x); cost[pos] += c
        for idx, (m, f) in enumerate(mf):
            A.extend(gaps[idx]); A(m)
        if j == 3: stamp(S.A, C, 9)
    stamp(S.A, C, 10)
    A.extend([x for x, _ in epi(NU - 1)])
    A(f"s_add_u32 s57, s{sHF}, {(NU-2)*ustride*128}"); A(f"s_add_u32 s58, s{sHF}, {(NU-1)*ustride*128}")

def g2f(S, C, tail, npf):
    A = S
    vRW, vRR, vO, vT0, vT1, vPoll2 = 2, 3, 4, 88, 89, 5
    aHH = 24; aACC = 80; vR = 12; vRes = 44; vTm = 52
    sTm, sO, sHR = 50, 51, 52
    RS = 288; WR = 20 * RS; BUF = 4 * WR
    srd(S.A, SRD_A, P_OUT, NB_SD)
    A(f"s_cmp_ge_u32 s{S_WAVE}, 2"); A(f"s_cselect_b32 s30, {OOB}, 0"); A(f"v_or_b32 v{vLast}, s30, v{vL16}")
    def hload(p, t, force=False):
        pre = [f"s_add_u32 s{sTm}, s{sHH}, {p*32*55296+1024*(t-t%4)}"] if (t % 4 == 0 or force) else []
        return pre + [(f"buffer_load_dwordx4 {a(aHH+4*t,4)}, v{vLast if t==13 else vL16}, {s(SRD_WS,4)}, s{sTm} offen offset:{1024*(t%4)} sc1", ("h", p, t))]
    A.need([("hp", 0)])
    A.extend(spin(tail, "g2p0", hh_poll(0, vPoll), [f"v_cmp_ne_u32 vcc, v{vTag}, v{vPoll}"], 8))
    for t in range(14): A.extend(hload(0, t))
    A.extend(w2load(npf, 70))
    A(f"v_lshrrev_b32 v{vT0}, 4, v1"); A(f"v_mul_u32_u24 v{vRW}, {RS}, v{vT0}"); A(f"v_and_b32 v{vT0}, 15, v1"); A(f"v_lshl_add_u32 v{vRW}, v{vT0}, 4, v{vRW}")
    A(f"s_mul_i32 s30, s{S_WAVE}, {WR}"); A(f"v_add_u32 v{vRW}, s30, v{vRW}")
    A(f"v_mul_u32_u24 v{vT0}, 205, v1"); A(f"v_lshrrev_b32 v{vT0}, 11, v{vT0}")
    A(f"v_mul_u32_u24 v{vT1}, 10, v{vT0}"); A(f"v_sub_u32 v{vT1}, v1, v{vT1}")
    A(f"v_and_b32 v{vT0}, 3, v{vT0}"); A(f"s_lshl_b32 s30, s{S_WAVE}, 2"); A(f"v_add_u32 v{vT0}, s30, v{vT0}")
    A(f"v_mul_u32_u24 v{vRR}, {2*RS}, v{vT1}"); A(f"v_lshl_add_u32 v{vRR}, v{vT0}, 4, v{vRR}")
    A(f"v_mul_u32_u24 v{vO}, 1280, v{vT0}"); A(f"v_lshl_add_u32 v{vO}, v{vT1}, 4, v{vO}")
    A(f"v_cmp_gt_u32 vcc, 40, v1"); A(f"v_bfrev_b32 v{vT0}, 1"); A("s_nop 0"); A(f"v_cndmask_b32 v{vO}, v{vT0}, v{vO}, vcc")
    A(f"s_mul_i32 s{sO}, s{S_RT}, {16*1280}"); A(f"s_mul_i32 s30, s{S_CB}, 160"); A(f"s_add_u32 s{sO}, s{sO}, s30")
    A(f"s_add_u32 s{sHR}, s{sO}, {WS_HR}")
    S.A(f"s_waitcnt vmcnt({14 + 70 - npf})"); A("s_barrier")
    A(f"buffer_store_dword v{vTag}, v{vFLa}, {s(SRD_WS,4)}, s58 offen sc1", "hf"); A(f"buffer_store_dword v{vTag}, v{vFLa}, {s(SRD_WS,4)}, s57 offen sc1", "hf")
    stamp(S.A, C, 11)
    def wr(p): return [f"ds_write_b128 v{vRW}, {a(aACC+20*(p&1)+4*dt,4)} offset:{(p&1)*BUF+4*RS*dt}" for dt in range(5)]
    def rd(p): return [f"ds_read_b128 {v(vR+8*w+4*j,4)}, v{vRR} offset:{(p&1)*BUF+WR*w+RS*j}" for w in range(4) for j in range(2)]
    def fin1(p): return [("need", [("r", p)])] + unpack(vTm, vRes + 4 * (p & 1), 4)
    def fin2(p):
        o = ["s_waitcnt lgkmcnt(0)"]
        for w in range(4):
            for j in range(8): o.append(f"v_add_f32 v{vTm+j}, v{vTm+j}, v{vR+8*w+j}")
        for j in range(4): o.append(f"v_cvt_pk_bf16_f32 v{vR+j}, v{vTm+2*j}, v{vTm+2*j+1}")
        o += [f"s_add_u32 s30, s{sO}, {p*512*1280}", (f"buffer_store_dwordx4 {v(vR,4)}, v{vO}, {s(SRD_A,4)}, s30 offen", "st")]
        return o
    def resload(p): return [f"s_add_u32 s30, s{sHR}, {p*512*1280}", (f"buffer_load_dwordx4 {v(vRes+4*(p&1),4)}, v{vO}, {s(SRD_WS,4)}, s30 offen sc1", ("r", p))]
    for p in range(4):
        acc = aACC + 20 * (p & 1)
        n = 70; gaps = [[] for _ in range(n)]; cost = [0] * n
        for t in range(14):
            g = 5 * t + 4
            if p < 3: gaps[g] += hload(p + 1, t); cost[g] += 1
            if t < 13:
                gaps[g].append(("need", [("h", p, t + 1)] + ([("w2", f) for f in range(5*t+10)] if p == 0 else []))); cost[g] += 1
        def put(pos, items, step=0, cap=2):
            for x in items:
                while pos < n - 1 and cost[pos] >= cap: pos += 1
                gaps[pos].append(x); cost[pos] += 1; pos += step
            return pos
        put(0, resload(p))
        if p in (0, 1): put(40, hh_poll(1, vPoll2))
        if p > 0:
            put(5, wr(p - 1), 4)
            put(12, fin1(p - 1))
            pos = put(28, ["s_waitcnt lgkmcnt(0)", "s_barrier"])
            put(pos + 1, rd(p - 1), 1)
            put(43, fin2(p - 1))
        if p in (1, 2):
            A.need([("hp", 1)])
            m = "0xffffffff" if p == 1 else "-1"
            A.extend(spin(tail, f"g2p{p+1}", hh_poll(1, vPoll2), [f"v_cmp_ne_u32 vcc, v{vTag}, v{vPoll2}"] + (["s_nop 0", "s_lshl_b64 vcc, vcc, 32"] if p == 1 else []), 2))
        A.need([("h", p, 0)])
        for t in range(14):
            for dt in range(5):
                c = "0" if t == 0 else a(acc + 4 * dt, 4)
                A(f"v_mfma_f32_16x16x32_bf16 {a(acc+4*dt,4)}, {W2(5*t+dt)}, {a(aHH+4*t,4)}, {c}")
                A.extend(gaps[5 * t + dt])
        if p in (0, 3): stamp(S.A, C, 12 if p == 0 else 13)
    A.extend(fin1(3)); A.extend(wr(3)); A("s_waitcnt lgkmcnt(0)"); A("s_barrier"); A.extend(rd(3)); A.extend(fin2(3))
    stamp(S.A, C, 14)
```

```python
from asmlib import *
from phases import *

WS_KT = 24 << 20
WS_YT = 32 << 20
WS_FL = 40 << 20
FL_E = WS_FL
FL_LN = WS_FL + 4096
FL_HH = WS_FL + 16384
FL_W2 = WS_FL + 28672
S_TAG32, S_TAG16, S_TAGF, S_X, S_J, S_SPIN = 100, 99, 98, 97, 96, 95
SPIN_MAX = 1 << 14

class Stream:
    def __init__(self, A):
        self.A = A; self.issued = []
    def __call__(self, x, tag=None):
        if isinstance(x, tuple):
            if x[0] == "need": return self.need(*x[1:])
            x, tag = x
        self.A(x)
        if x.startswith("buffer_") or x.startswith("global_"): self.issued.append(tag)
    def extend(self, L, tag=None):
        for x in L: self(x, tag)
    def need(self, tags, extra=""):
        idx = [i for i, tg in enumerate(self.issued) if tg in tags]
        assert idx, tags
        n = len(self.issued) - 1 - max(idx)
        self.A(f"s_waitcnt vmcnt({min(n,63)})" + extra)
    def label(self, l): self.A.label(l)

def epoch_load(A):
    A(f"s_add_u32 s30, s{P_WS}, {FL_E}"); A(f"s_addc_u32 s31, s{P_WS+1}, 0")
    A(f"s_load_dword s{S_TAG32}, s[30:31], 0")

def epoch_finish(A):
    A(f"s_mul_i32 s{S_TAG32}, s{S_TAG32}, 0x41c64e6d"); A(f"s_add_u32 s{S_TAG32}, s{S_TAG32}, 12345")
    A(f"s_and_b32 s{S_TAG16}, s{S_TAG32}, 0x1fff"); A(f"s_or_b32 s{S_TAG16}, s{S_TAG16}, 0x4000")
    A(f"s_lshl_b32 s{S_TAGF}, s{S_TAG16}, 16")

P0_K, P0_V, P0_W = 100, 128, 144
P0_WF, P0_T, P0_O = 160, 192, 216
def p0_addr(A):
    A(f"s_lshl_b32 s50, s{S_X}, 3"); A(f"s_lshr_b32 s51, s{S_J}, 2"); A("s_add_u32 s50, s50, s51")
    A(f"s_and_b32 s51, s{S_J}, 3")
    A("v_and_b32 v3, 7, v0"); A("v_lshrrev_b32 v4, 3, v0")
    A("v_mul_u32_u24 v5, 5120, v3"); A("v_lshl_add_u32 v5, v4, 4, v5")
    A("s_mul_i32 s52, s50, 40960"); A("s_mul_i32 s53, s51, 320"); A("s_add_u32 s52, s52, s53")
    A("v_add_u32 v5, s52, v5")
    A("v_cmp_gt_u32 vcc, 20, v4"); A(f"v_bfrev_b32 v8, 1"); A("v_subrev_u32 v6, 3840, v5")
    A("v_cndmask_b32 v5, v8, v5, vcc")
    A("v_lshlrev_b32 v7, 6, v4"); A("v_cndmask_b32 v7, v8, v7, vcc"); A("v_cndmask_b32 v6, v8, v6, vcc")
    A("v_lshlrev_b32 v2, 13, v4"); A("v_lshl_add_u32 v2, v3, 4, v2"); A("v_cndmask_b32 v2, v8, v2, vcc")
    A("v_min_u32 v6, v6, v8")
    A("s_mul_i32 s53, s51, 1280")

def p0_loads(S):
    A = S
    srd(S.A, SRD_A, P_K, NB_SD)
    for r in range(4): A(f"buffer_load_dwordx4 {v(P0_K+12+4*r,4)}, v5, {s(SRD_A,4)}, 0 offen offset:{1280*r}", "p0")
    srd(S.A, SRD_B, P_V, NB_SD)
    for r in range(4): A(f"buffer_load_dwordx4 {v(P0_V+4*r,4)}, v5, {s(SRD_B,4)}, 0 offen offset:{1280*r}", "p0")
    srd(S.A, SRD_C, P_SH, 5120)
    for i in range(4): A(f"buffer_load_dwordx4 {v(P0_W+4*i,4)}, v7, {s(SRD_C,4)}, s53 offen offset:{16*i}", "p0")
    for r in range(3): A(f"buffer_load_dwordx4 {v(P0_K+4*r,4)}, v6, {s(SRD_A,4)}, 0 offen offset:{1280*r}", "p0")

def p0_staddr(A):
    A("s_lshr_b32 s48, s50, 3"); A("s_mul_i32 s48, s48, 655360"); A("s_mul_i32 s49, s51, 163840"); A("s_add_u32 s48, s48, s49")
    A("s_and_b32 s49, s50, 7"); A("s_lshl_b32 s49, s49, 7"); A("s_add_u32 s48, s48, s49"); A(f"s_add_u32 s48, s48, {WS_KT}")
    A("s_add_u32 s49, s48, 4096")

def p0_compute(S):
    A = S
    Wf = lambda j, c: P0_WF + 8 * j + c
    for c in range(8):
        for hlf in range(2):
            A(f"v_lshlrev_b32 v{Wf(2*hlf,c)}, 16, v{P0_W+2*c+hlf}"); A(f"v_and_b32 v{Wf(2*hlf+1,c)}, 0xffff0000, v{P0_W+2*c+hlf}")
    for p in range(4):
        K = P0_T; acc = P0_T + 14; vv = P0_T + 22
        for r in range(7):
            A(f"v_lshlrev_b32 v{K+2*r}, 16, v{P0_K+4*r+p}"); A(f"v_and_b32 v{K+2*r+1}, 0xffff0000, v{P0_K+4*r+p}")
        for r in range(4): A(f"v_pk_mul_f32 {v(acc+2*r,2)}, {v(K+2*r,2)}, {v(Wf(3,2*p),2)}")
        for j in (2, 1, 0):
            for r in range(4): A(f"v_pk_fma_f32 {v(acc+2*r,2)}, {v(K+2*(r+3-j),2)}, {v(Wf(j,2*p),2)}, {v(acc+2*r,2)}")
        for r in range(4):
            A(f"v_lshlrev_b32 v{K+2*r}, 16, v{P0_V+4*r+p}"); A(f"v_and_b32 v{K+2*r+1}, 0xffff0000, v{P0_V+4*r+p}")
        for r in range(4): A(f"v_pk_mul_f32 {v(acc+2*r,2)}, {v(acc+2*r,2)}, {v(K+2*r,2)}")
        for cc in range(2):
            c = 2 * p + cc; o = P0_O + 4 * c
            for r in range(4): A(f"v_cvt_pk_bf16_f32 v{o+r}, s{S_TAGF}, v{acc+2*r+cc}")
            A(f"buffer_store_dwordx4 {v(o,4)}, v2, {s(SRD_WS,4)}, s{48+(c>>2)} offen offset:{1024*(c&3)} sc1", "p0st")

def tagcheck(regs, tmp):
    o = [f"v_xor_b32 v{tmp}, s{S_TAG16}, v{regs[0]}"]
    for r in regs[1:]: o.append(f"v_bitop3_b32 v{tmp}, v{r}, s{S_TAG16}, v{tmp} bitop3:0xbe")
    o.append(f"v_cmp_ne_u16 vcc, 0, v{tmp}")
    return o

C2_XR = 0; C2_YS = 18304; C2_HC = 40960
C2_H = 60; C2_E = 76
def conv_hload(S, sG):
    A = S
    srd(S.A, 52, P_SK, NB_SD)
    A(f"s_lshl_b32 s56, s{sG}, 2"); A(f"s_add_u32 s56, s56, s{S_WAVE}"); A("s_lshl_b32 s57, s56, 12")
    for i in range(4): A(f"buffer_load_dwordx4 {v(C2_H+4*i,4)}, v10, s[52:55], s57 offen offset:{1024*i}", "h")
    A(f"s_lshl_b32 s57, s{sG}, 3"); A(f"s_load_dwordx2 s[58:59], {s(P_SD,2)}, s57")

def conv2(S, C, sG, tail, poll_at=40, fill=None):
    A = S
    vXW, vXR, vHA, vYW, vYR, vYG = range(2, 8)
    vT1, vT2, vL16 = 8, 9, 10
    vt = 12
    vAD = 24; vACC = 28; vB = 60; vK = 124; vY = 156
    vH, vE = C2_H, C2_E
    sT = 60; sKT = 68; sY = 69; sPm = 70
    A(f"v_and_b32 v{vT1}, 15, v1"); A(f"v_lshrrev_b32 v{vT2}, 4, v1")
    A(f"s_mul_i32 s{sT}, s{S_WAVE}, {CV_CS}"); A(f"s_add_u32 s{sT+1}, s{sT}, {C2_XR+480}")
    A(f"v_lshlrev_b32 v{vXR}, 5, v{vT1}"); A(f"v_sub_u32 v{vXR}, s{sT+1}, v{vXR}"); A(f"v_lshl_add_u32 v{vXR}, v{vT2}, 4, v{vXR}")
    A(f"s_add_u32 s{sT+1}, s{sT}, {C2_XR+504}"); A(f"v_lshlrev_b32 v{vXW}, 3, v1"); A(f"v_sub_u32 v{vXW}, s{sT+1}, v{vXW}")
    A(f"s_mul_i32 s{sT+4}, s{S_WAVE}, 8320"); A(f"s_add_u32 s{sT+4}, s{sT+4}, {C2_HC}")
    A(f"v_and_b32 v{vHA}, 1, v1"); A(f"v_mul_u32_u24 v{vHA}, 4160, v{vHA}")
    A(f"v_lshrrev_b32 v{vYW}, 1, v{vT1}"); A(f"v_lshl_add_u32 v{vHA}, v{vYW}, 2, v{vHA}")
    A(f"v_lshl_add_u32 v{vHA}, v{vT2}, 4, v{vHA}"); A(f"v_add3_u32 v{vHA}, v{vHA}, s{sT+4}, 4")
    A(f"s_mul_i32 s{sT+5}, s{S_WAVE}, 576"); A(f"s_add_u32 s{sT+5}, s{sT+5}, {C2_YS}")
    A(f"v_lshlrev_b32 v{vYW}, 5, v{vT1}"); A(f"v_lshl_add_u32 v{vYW}, v{vT2}, 3, v{vYW}"); A(f"v_add_u32 v{vYW}, s{sT+5}, v{vYW}")
    A(f"v_bfe_u32 v{vYR}, v1, 2, 2"); A(f"v_mul_u32_u24 v{vYR}, 576, v{vYR}"); A(f"v_lshl_add_u32 v{vYR}, v{vT2}, 5, v{vYR}")
    A(f"v_and_b32 v{vYG}, 3, v1"); A(f"v_lshl_add_u32 v{vYR}, v{vYG}, 3, v{vYR}")
    A(f"s_lshl_b32 s{sT+6}, s{S_WAVE}, 7"); A(f"s_add_u32 s{sT+6}, s{sT+6}, {C2_YS}"); A(f"v_add_u32 v{vYR}, s{sT+6}, v{vYR}")
    A(f"v_lshrrev_b32 v{vYG}, 3, v1"); A(f"v_mul_u32_u24 v{vYG}, 20480, v{vYG}"); A(f"v_and_b32 v{vt}, 7, v1"); A(f"v_lshl_add_u32 v{vYG}, v{vt}, 4, v{vYG}")
    A(f"s_mul_i32 s{sY}, s{S_WAVE}, {8*20480}"); A(f"s_lshl_b32 s{sT+6}, s{sG}, 7"); A(f"s_add_u32 s{sY}, s{sY}, s{sT+6}"); A(f"s_add_u32 s{sY}, s{sY}, {WS_YT}")
    A(f"s_lshl_b32 s{sKT}, s56, 10"); A(f"s_add_u32 s{sKT}, s{sKT}, {WS_KT}")
    A(f"s_mov_b32 s{sPm}, 0x07060302")
    for i in range(4): A(f"v_mov_b32 v{vt+4+i}, 0")
    A(f"v_add_u32 v{vt}, s{sT}, v{vL16}")
    A("s_mov_b64 exec, 0x3fffffff"); A(f"ds_write_b128 v{vt}, {v(vt+4,4)} offset:{C2_XR+4096}"); A("s_mov_b64 exec, -1")
    A(f"v_add_u32 v{vt+1}, s{sT+4}, v{vL16}")
    A("s_mov_b64 exec, 3"); A(f"ds_write_b128 v{vt+1}, {v(vt+4,4)}"); A(f"ds_write_b128 v{vt+1}, {v(vt+4,4)} offset:4160"); A("s_mov_b64 exec, -1")
    A(f"s_lshl_b32 s30, s{S_WAVE}, 4"); A("s_lshr_b64 s[58:59], s[58:59], s30"); A("s_and_b32 s58, s58, 0xffff")
    A(f"v_lshl_add_u32 v{vt+2}, v{vT2}, 3, v{vT1}"); A(f"v_sub_u32 v{vt+2}, 15, v{vt+2}")
    A(f"v_and_b32 v{vt+3}, 1, v{vt+2}"); A(f"v_lshlrev_b32 v{vt+3}, 4, v{vt+3}"); A(f"v_lshlrev_b32 v{vt+3}, v{vt+3}, s58")
    A(f"v_ashrrev_i32 v{vt+2}, 1, v{vt+2}")
    for j in range(4):
        A(f"v_cmp_eq_u32 vcc, {j}, v{vt+2}"); A("s_nop 1"); A(f"v_cndmask_b32 v{vAD+j}, 0, v{vt+3}, vcc")
    for i in range(4): A(f"ds_write_b128 v{vt+1}, {v(vH+4*i,4)} offset:{4160+32+1024*i}")
    for i in range(1, 4): A(f"v_readlane_b32 s{sT+i}, v{vH+4*i-1}, 63")
    for i in range(1, 4): A(f"v_mov_b32 v{vt+4+i}, s{sT+i}")
    for i in range(4): A(f"v_mov_b32_dpp v{vt+4+i}, v{vH+4*i+3} wave_shr:1 row_mask:0xf bank_mask:0xf")
    for i in range(4):
        A(f"v_alignbit_b32 v{vE+4*i}, v{vH+4*i}, v{vt+4+i}, 16")
        for j in range(1, 4): A(f"v_alignbit_b32 v{vE+4*i+j}, v{vH+4*i+j}, v{vH+4*i+j-1}, 16")
        A(f"ds_write_b128 v{vt+1}, {v(vE+4*i,4)} offset:{32+1024*i}")
    AI = lambda m: 4 * (63 - m)
    def kload(nu):
        return [f"s_add_u32 s30, s{sKT}, {nu*655360}", (f"buffer_load_dwordx4 {v(vK+4*nu,4)}, v{vL16}, {s(SRD_WS,4)}, s30 offen sc1", ("k", nu))]
    for m in range(64):
        if m == poll_at: A.extend(kload(0))
        if m and m % 16 == 0: A(f"v_add_u32 v{vHA}, 1024, v{vHA}")
        o = 16 * (m % 16)
        A(f"ds_read2_b32 {a(AI(m),2)}, v{vHA} offset0:{o} offset1:{o+1}")
        A(f"ds_read2_b32 {a(AI(m)+2,2)}, v{vHA} offset0:{o+2} offset1:{o+3}")
    stamp(S.A, C, 2)
    def kvstage(nu):
        kd = vK + 4 * nu
        o = [("need", [("k", nu)])] + tagcheck([kd, kd+1, kd+2, kd+3], vt)
        o += [f"s_cbranch_vccnz L_cvr{nu}", f"L_cvb{nu}:"]
        if nu == 0:
            for n2 in range(1, 8): o += kload(n2)
        o += [f"v_perm_b32 v{vt}, v{kd+2}, v{kd+3}, s{sPm}", f"v_perm_b32 v{vt+1}, v{kd}, v{kd+1}, s{sPm}",
              f"ds_write_b64 v{vXW}, {v(vt,2)} offset:{512*(7-nu)}"]
        if nu == 0:
            o = o[:8] + o[-3:] + o[8:-3]
        rd = [f"ds_read_b128 {v(vB+32*(nu&1)+4*rho,4)}, v{vXR} offset:{512*(7-nu)+64*rho}" for rho in range(8)]
        if nu == 0: o = o[:11] + rd + o[11:]
        else: o += rd
        tail.label(f"L_cvr{nu}"); tail(f"s_mov_b32 s{S_SPIN}, {SPIN_MAX}")
        tail.label(f"L_cvl{nu}")
        for x in kload(nu): tail(x[0] if isinstance(x, tuple) else x)
        tail(f"s_sub_u32 s{S_SPIN}, s{S_SPIN}, 1"); tail("s_waitcnt vmcnt(0)"); tail(f"s_cbranch_scc1 L_cvb{nu}")
        tail.extend(tagcheck([kd, kd+1, kd+2, kd+3], vt)); tail("s_nop 0"); tail(f"s_cbranch_vccnz L_cvl{nu}"); tail(f"s_branch L_cvb{nu}")
        return o
    A.extend(kvstage(0))
    stamp(S.A, C, 3)
    for nu in range(8):
        bb = vB + 32 * (nu & 1); yo = 2304 * (nu & 1)
        mf = []
        for n in range(nu, 8):
            acc = v(vACC + 4 * n, 4)
            for rho in range(8):
                c = "0" if (nu == 0 and rho == 0) else acc
                mf.append(f"v_mfma_f32_16x16x32_bf16 {acc}, {a(AI(8*(n-nu)+rho),4)}, {v(bb+4*rho,4)}, {c}")
            if n == nu: mf.append(f"v_mfma_f32_16x16x32_bf16 {acc}, {v(vAD,4)}, {v(bb,4)}, {acc}")
        an = vACC + 4 * nu
        pub1 = [f"v_cvt_pk_bf16_f32 v{vY}, v{an}, v{an+1}", f"v_cvt_pk_bf16_f32 v{vY+1}, v{an+2}, v{an+3}", f"ds_write_b64 v{vYW}, {v(vY,2)} offset:{yo}"]
        pub2 = ["s_waitcnt lgkmcnt(0)", "s_barrier", f"ds_read_b64_tr_b16 {v(vY+2,2)}, v{vYR} offset:{yo}"]
        pub3 = ["s_waitcnt lgkmcnt(0)",
                f"v_lshl_or_b32 v{vY+4}, v{vY+2}, 16, s{S_TAG16}", f"v_bfi_b32 v{vY+5}, v{vT1}, s{S_TAG16}, v{vY+2}",
                f"v_lshl_or_b32 v{vY+6}, v{vY+3}, 16, s{S_TAG16}", f"v_bfi_b32 v{vY+7}, v{vT1}, s{S_TAG16}, v{vY+3}",
                (f"buffer_store_dwordx4 {v(vY+4,4)}, v{vYG}, {s(SRD_WS,4)}, s{sY} offen sc1", "yst"), f"s_add_u32 s{sY}, s{sY}, {32*20480}"]
        if nu == 0:
            A(f"v_mov_b32 v{vT1}, 0xffff")
            A("s_waitcnt lgkmcnt(4)"); A.extend(mf[:4]); A("s_waitcnt lgkmcnt(0)"); mf = mf[4:]; h = 5
        else:
            A("s_waitcnt lgkmcnt(0)"); h = 9
        n = len(mf)
        W = lambda L: [(x, 0 if (isinstance(x, str) and x.endswith(":")) else 1) for x in L]
        seqs = []
        late = nu >= 4
        if late and nu < 7: seqs.append(dict(items=W(kvstage(nu + 1)), lo=0))
        seqs.append(dict(items=W(pub1), lo=min(h + 2, n - 1)))
        seqs.append(dict(items=W(pub2), lo=min(h + 7, n - 1)))
        seqs.append(dict(items=W(pub3), lo=min(h + 12, n - 1)))
        if fill and nu in fill: seqs.append(dict(items=W(fill[nu]), lo=0))
        if not late: seqs.append(dict(items=W(kvstage(nu + 1)), align="r", hi=n - 6))
        A.extend(place(mf, seqs, cap=2))
        if nu in (0, 3): stamp(S.A, C, 4 if nu == 0 else 5)
    stamp(S.A, C, 6)

R_X = 16
def r_xload(S, sR):
    A = S
    srd(S.A, 52, P_Q, NB_SD)
    A("v_and_b32 v13, 7, v0"); A("v_lshrrev_b32 v14, 3, v0"); A("v_mul_u32_u24 v12, 1280, v13")
    A("v_lshl_add_u32 v11, v14, 4, v12"); A("v_lshl_add_u32 v12, v14, 3, v12")
    A(f"s_mul_i32 s56, s{sR}, 10240")
    for j in range(8):
        A(f"s_add_u32 s57, s56, {j*327680}")
        A(f"buffer_load_dwordx4 {v(R_X+10*j,4)}, v11, s[52:55], s57 offen", ("x", j))
        A(f"buffer_load_dwordx4 {v(R_X+10*j+4,4)}, v11, s[52:55], s57 offen offset:512", ("x", j))
        A(f"buffer_load_dwordx2 {v(R_X+10*j+8,2)}, v12, s[52:55], s57 offen offset:1024", ("x", j))

def sums(xs, vS):
    o = [f"v_pk_add_f32 {v(vS,2)}, {v(xs,2)}, {v(xs+2,2)}", f"v_pk_mul_f32 {v(vS+2,2)}, {v(xs,2)}, {v(xs,2)}",
         f"v_pk_fma_f32 {v(vS+2,2)}, {v(xs+2,2)}, {v(xs+2,2)}, {v(vS+2,2)}"]
    for i in range(2, 10):
        o.append(f"v_pk_add_f32 {v(vS,2)}, {v(vS,2)}, {v(xs+2*i,2)}")
        o.append(f"v_pk_fma_f32 {v(vS+2,2)}, {v(xs+2*i,2)}, {v(xs+2*i,2)}, {v(vS+2,2)}")
    o += [f"v_add_f32 v{vS}, v{vS}, v{vS+1}", f"v_add_f32 v{vS+1}, v{vS+2}, v{vS+3}"]
    for j in range(2): o.append(f"v_add_f32_dpp v{vS+j}, v{vS+j}, v{vS+j} row_ror:8 row_mask:0xf bank_mask:0xf")
    o += [f"v_permlane16_swap_b32 v{vS}, v{vS+1}", f"v_add_f32 v{vS}, v{vS}, v{vS+1}"]
    return o

def finalize(vS, vP):
    import struct
    inv = struct.unpack("<I", struct.pack("<f", 1.0 / 640))[0]
    eps = struct.unpack("<I", struct.pack("<f", 1e-5))[0]
    o = []
    for st in range(2):
        b = vP + 8 * st
        o += [f"v_pk_add_f32 {v(b,2)}, {v(b,2)}, {v(b+2,2)}", f"v_pk_add_f32 {v(b+4,2)}, {v(b+4,2)}, {v(b+6,2)}"]
    for st in range(2):
        b = vP + 8 * st
        o += [f"v_pk_add_f32 {v(b,2)}, {v(b,2)}, {v(b+4,2)}"]
    o += [f"v_add_f32 v{vS}, v{vP}, v{vP+1}", f"v_add_f32 v{vS+1}, v{vP+8}, v{vP+9}"]
    o += [f"v_mul_f32 v{vS}, {inv:#x}, v{vS}", f"v_mul_f32 v{vS+1}, {inv:#x}, v{vS+1}",
          f"v_fma_f32 v{vS+1}, -v{vS}, v{vS}, v{vS+1}", f"v_max_f32 v{vS+1}, 0, v{vS+1}",
          f"v_cvt_pk_bf16_f32 v{vS+1}, v{vS}, v{vS+1}", f"v_lshlrev_b32 v{vS}, 16, v{vS+1}", f"v_and_b32 v{vS+1}, 0xffff0000, v{vS+1}",
          f"v_add_f32 v{vS+1}, {eps:#x}, v{vS+1}", f"v_cvt_pk_bf16_f32 v{vS+1}, 0, v{vS+1}",
          f"v_sqrt_f32 v{vS+1}, v{vS+1}", f"v_cvt_pk_bf16_f32 v{vS+1}, 0, v{vS+1}", f"v_rcp_f32 v{vS+1}, v{vS+1}",
          f"v_mul_f32 v{vS}, v{vS}, v{vS+1}"]
    return o

def rworker(S, C, sR, tail):
    A = S
    vYA, vYB, vLA, vLB, vHB, vLW, vLR, vFL, vTag = range(2, 11)
    vXA, vXB, vrow, vq = 11, 12, 13, 14
    vSX = 96
    vX = 112; vQ = 132; vYr = 152; vS = 172; vPt = 176; vP = 192; vP2 = 204; vtmp = 15
    sYs, sLs, sHs, sF = 60, 63, 66, 67
    A(f"v_lshlrev_b32 v{vYB}, 4, v{vrow}")
    A(f"v_lshl_add_u32 v{vYA}, v{vq}, 8, v{vYB}")
    A(f"v_lshl_add_u32 v{vYB}, v{vq}, 7, v{vYB}")
    A(f"v_and_b32 v{vLW}, 8, v1"); A(f"v_cmp_eq_u32 vcc, 0, v{vLW}"); A(f"v_mov_b32 v{vLW}, {OOB}"); A("s_nop 0")
    A(f"v_cndmask_b32 v{vLB}, v{vLW}, v{vYB}, vcc"); A(f"v_cndmask_b32 v{vHB}, v{vLW}, v{vXB}, vcc")
    A(f"v_cmp_eq_u32 vcc, 0, v1"); A(f"v_mov_b32 v{vTag}, s{S_TAG32}"); A(f"v_mov_b32 v{vFL}, 0"); A(f"v_cndmask_b32 v{vFL}, v{vLW}, v{vFL}, vcc")
    A(f"v_mul_u32_u24 v{vLR}, 80, v{vrow}")
    A(f"v_bfe_u32 v{vLW}, v1, 4, 1"); A(f"v_lshl_add_u32 v{vLW}, v{vLW}, 5, v{vLR}")
    A(f"v_lshrrev_b32 v{vtmp}, 5, v1"); A(f"v_lshl_add_u32 v{vLW}, v{vtmp}, 2, v{vLW}")
    A(f"s_lshl_b32 s30, s{S_WAVE}, 3"); A(f"v_add_u32 v{vLW}, s30, v{vLW}")
    A(f"s_mul_i32 s{sYs}, s{sR}, 20480"); A(f"s_add_u32 s{sYs}, s{sYs}, {WS_YT}")
    A(f"s_lshr_b32 s{sLs}, s{sR}, 1"); A(f"s_mul_i32 s{sLs}, s{sLs}, 20480"); A(f"s_and_b32 s30, s{sR}, 1"); A("s_lshl_b32 s30, s30, 7")
    A(f"s_add_u32 s{sLs}, s{sLs}, s30"); A(f"s_add_u32 s{sLs}, s{sLs}, {WS_LNF}")
    A(f"s_add_u32 s{sHs}, s56, {WS_HR}")
    A(f"s_lshr_b32 s{sF}, s{sR}, 2"); A(f"s_lshl_b32 s{sF}, s{sF}, 7"); A(f"s_and_b32 s30, s{sR}, 3"); A("s_lshl_b32 s30, s30, 2")
    A(f"s_add_u32 s30, s30, s{S_WAVE}"); A("s_lshl_b32 s30, s30, 2"); A(f"s_add_u32 s{sF}, s{sF}, s30"); A(f"s_add_u32 s{sF}, s{sF}, {FL_LN}")
    def rdpart(off):
        return [f"ds_read_b128 {v(vPt+4*i,4)}, v{vLR} offset:{off+16*i}" for i in range(4)]
    for j in range(8):
        A.need([("x", j)])
        A.extend(unpack(vX, R_X + 10 * j, 10)); A.extend(sums(vX, vS))
        A(f"ds_write_b32 v{vLW}, v{vS} offset:{640*j}")
    def yload(j):
        o = [f"s_add_u32 s{sYs+1}, s{sYs}, {j*655360}", f"s_add_u32 s{sYs+2}, s{sYs}, {j*655360+8192}", f"s_add_u32 s30, s{sYs}, {j*655360+16384}"]
        o += [(f"buffer_load_dwordx4 {v(vYr+4*i,4)}, v{vYA}, {s(SRD_WS,4)}, s{sYs+1+(i>>1)} offen offset:{128*(i&1)} sc1", ("y", j)) for i in range(4)]
        o.append((f"buffer_load_dwordx4 {v(vYr+16,4)}, v{vYB}, {s(SRD_WS,4)}, s30 offen sc1", ("y", j)))
        return o
    A.extend(yload(0))
    A("s_waitcnt lgkmcnt(0)"); A("s_barrier")
    for j in range(8):
        A.extend(rdpart(640 * j)); A("s_waitcnt lgkmcnt(0)"); A.extend(finalize(vSX + 2 * j, vPt))
    stamp(S.A, C, 2)
    NRM = "op_sel:[0,1,0] op_sel_hi:[1,1,0] neg_lo:[0,0,1] neg_hi:[0,0,1]"
    def flag(j): return [f"s_add_u32 s30, s{sF}, {j*1024}", (f"buffer_store_dword v{vTag}, v{vFL}, {s(SRD_WS,4)}, s30 offen sc1", "fl")]
    def packstore(P, src, va, vb, sb, o0, o1, o2, tg):
        A(f"s_add_u32 s{sLs+1}, s{sb}, {o0}"); A(f"s_add_u32 s{sLs+2}, s{sb}, {o1}"); A(f"s_add_u32 s30, s{sb}, {o2}")
        for i in range(4): A(f"v_cvt_pk_bf16_f32 v{P+i}, v{src+2*i}, v{src+2*i+1}")
        A(f"buffer_store_dwordx4 {v(P,4)}, v{va}, {s(SRD_WS,4)}, s{sLs+1} offen sc1", tg)
        for i in (8, 9, 4, 5, 6, 7): A(f"v_cvt_pk_bf16_f32 v{P+i}, v{src+2*i}, v{src+2*i+1}")
        A(f"buffer_store_dwordx4 {v(P+4,4)}, v{va}, {s(SRD_WS,4)}, s{sLs+2} offen sc1", tg)
        for k in range(2): A(f"v_mov_b32_dpp v{P+10+k}, v{P+8+k} row_shl:8 row_mask:0xf bank_mask:0xf bound_ctrl:0")
        A(f"buffer_store_dwordx4 {v(P+8,4)}, v{vb}, {s(SRD_WS,4)}, s30 offen sc1", tg)
    yr = list(range(vYr, vYr + 20))
    for j in range(8):
        A.extend(unpack(vX, R_X + 10 * j, 10))
        for i in range(10): A(f"v_pk_fma_f32 {v(vQ+2*i,2)}, {v(vX+2*i,2)}, {v(vSX+2*j,2)}, {v(vSX+2*j,2)} {NRM}")
        A.need([("y", j)]); A.extend(tagcheck(yr, vtmp)); A(f"s_cbranch_vccnz L_rr{j}"); A.label(f"L_rb{j}")
        tail.label(f"L_rr{j}"); tail(f"s_mov_b32 s{S_SPIN}, {SPIN_MAX}")
        if j:
            tail("s_waitcnt vmcnt(0)")
            for x in flag(j - 1): tail(x[0] if isinstance(x, tuple) else x)
        tail.label(f"L_rl{j}")
        for x in yload(j): tail(x[0] if isinstance(x, tuple) else x)
        tail(f"s_sub_u32 s{S_SPIN}, s{S_SPIN}, 1"); tail("s_waitcnt vmcnt(0)"); tail(f"s_cbranch_scc1 L_rb{j}")
        tail.extend(tagcheck(yr, vtmp)); tail("s_nop 0"); tail(f"s_cbranch_vccnz L_rl{j}"); tail(f"s_branch L_rb{j}")
        if j in (0, 7): stamp(S.A, C, 3 if j == 0 else 5)
        for i in range(20): A(f"v_and_b32 v{vYr+i}, 0xffff0000, v{vYr+i}")
        for i in range(10): A(f"v_pk_fma_f32 {v(vX+2*i,2)}, {v(vQ+2*i,2)}, {v(vYr+2*i,2)}, {v(vX+2*i,2)}")
        if j < 7: A.extend(yload(j + 1))
        A.extend(sums(vX, vS))
        off = 5120 + 640 * (j & 1)
        A(f"ds_write_b32 v{vLW}, v{vS} offset:{off}")
        packstore(vP2, vX, vXA, vHB, sHs, j * 327680, j * 327680 + 512, j * 327680 + 1024, ("st", j))
        A("s_waitcnt lgkmcnt(0)"); A("s_barrier")
        A.extend(rdpart(off)); A("s_waitcnt lgkmcnt(0)"); A.extend(finalize(vS, vPt))
        for i in range(10): A(f"v_pk_fma_f32 {v(vQ+2*i,2)}, {v(vX+2*i,2)}, {v(vS,2)}, {v(vS,2)} {NRM}")
        if j:
            A.need([("st", j - 1)]); A.extend(flag(j - 1))
        packstore(vP, vQ, vYA, vLB, sLs, j * 327680, j * 327680 + 8192, j * 327680 + 16384, ("st", j))
        if j == 0: stamp(S.A, C, 4)
    A(f"s_or_b32 s30, s{sR}, s{S_WAVE}"); A("s_cmp_lg_u32 s30, 0"); A("s_cbranch_scc1 L_r_noep")
    A(f"s_mov_b32 s30, {FL_E}"); S.A(f"buffer_store_dword v{vTag}, v{vFL}, {s(SRD_WS,4)}, s30 offen sc1")
    A.label("L_r_noep")
    A("s_waitcnt vmcnt(0)"); A.extend(flag(7))
    stamp(S.A, C, 6)
```

```python
from asmlib import *

WS_YP  = 0
WS_LNF = 4 << 20
WS_HR  = 8 << 20
WS_HHF = 12 << 20
WS_W2F = 20 << 20
WS_TS  = 200 << 20
WS_SIZE = 256 << 20
OOB = 0x80000000
NB_SD = 2048 * 640 * 2
NB_W = 640 * 1728 * 2

P_Q, P_K, P_V, P_SH, P_SK, P_SD, P_BX, P_WG, P_WU, P_WD, P_OUT, P_DBG, P_WS = range(4, 30, 2)
S_WAVE = 3
SRD_A, SRD_B, SRD_C, SRD_WS = 32, 36, 40, 44
S_TS = 80

class Ctx:
    def __init__(self, diag=False, sc1=False):
        self.diag = diag; self.prev = None
        self.sc = " sc1" if sc1 else ""

def prologue(A, nwg, endlabel):
    A(f"s_cmp_ge_u32 s2, {nwg}")
    A(f"s_cbranch_scc1 {endlabel}")
    A("s_load_dwordx16 s[4:19], s[0:1], 0")
    A("s_load_dwordx8 s[20:27], s[0:1], 64")
    A("s_load_dwordx2 s[28:29], s[0:1], 96")
    A("v_lshrrev_b32 v1, 6, v0")
    A("s_nop 0")
    A(f"v_readfirstlane_b32 s{S_WAVE}, v1")
    A("v_and_b32 v1, 63, v0")
    A("s_waitcnt lgkmcnt(0)")
    srd(A, SRD_WS, P_WS, WS_SIZE)

def stamp(A, C, idx):
    if not C.diag: return
    if idx == 0:
        for i in range(2, 15): A(f"s_mov_b32 s{S_TS+i}, 0")
        A(f"s_memrealtime s[{S_TS}:{S_TS+1}]"); C.prev = None; return
    if C.prev is not None: A(f"s_mov_b32 s{S_TS+C.prev}, s16")
    A("s_memrealtime s[16:17]"); C.prev = idx

def stamp_flush(A, C):
    if C.diag and C.prev is not None:
        A("s_waitcnt lgkmcnt(0)"); A(f"s_mov_b32 s{S_TS+C.prev}, s16"); C.prev = None

def stamps_out(A, C, kidx, n, tag):
    if not C.diag: return
    stamp_flush(A, C)
    A("s_waitcnt lgkmcnt(0) vmcnt(0)")
    A(f"s_cmp_lg_u32 s{S_WAVE}, 0")
    A(f"s_cbranch_scc1 L_nost_{tag}")
    A("s_lshl_b32 s30, s2, 6")
    if isinstance(kidx, int): A(f"s_add_u32 s30, s30, {WS_TS + kidx * 65536}")
    else:
        A(f"s_lshl_b32 s31, {kidx}, 16"); A("s_add_u32 s30, s30, s31"); A(f"s_add_u32 s30, s30, {WS_TS}")
    A("v_mov_b32 v2, 0")
    A("s_mov_b64 exec, 1")
    for i in range(n):
        A(f"v_mov_b32 v3, s{S_TS+i}")
        A(f"buffer_store_dword v3, v2, {s(SRD_WS,4)}, s30 offen offset:{4*i}")
        A("s_nop 0")
    A("s_mov_b64 exec, -1")
    A.label(f"L_nost_{tag}")

def place(mf, fillers, cap=2):
    n = len(mf)
    flat = []
    for sq in fillers:
        for it in sq["items"]:
            flat.append((it, sq))
    gaps = [[] for _ in range(n)]
    cost = [0] * n
    starts = {}
    endg = n
    for idx in range(len(fillers) - 1, -1, -1):
        sq = fillers[idx]
        tot = sum(c for _, c in sq["items"])
        hi = min(sq.get("hi", n), endg)
        st = max(hi - (tot + cap - 1) // cap, 0)
        starts[idx] = max(sq.get("lo", 0), st if sq.get("align", "l") == "r" else 0)
        endg = st
    g = 0
    for idx, sq in enumerate(fillers):
        g = max(g, min(starts[idx], n - 1))
        for (t, c) in sq["items"]:
            while g < n - 1 and cost[g] + c > cap and cost[g] > 0:
                g += 1
            gaps[g].append(t); cost[g] += c
    out = []
    for i in range(n):
        out.append(mf[i]); out += gaps[i]
    return out

CV_CS = 4576
CV_XR = 0
CV_YS = 18304
CV_CB = 20608
CV_HC = 24704
CV_LDS = CV_HC + 4 * 8320

def conv(A, C, sG, npre=24):
    vKV, vXW, vXR, vHA, vYW, vYR, vYG, vCR, vT0, vT1, vT2 = range(2, 13)
    vW1, vW3 = 16, 20
    vAD = 24
    vACC = 28
    vB = 60
    vK = 124
    vH = 60
    vE = 76
    vHL = 156
    vCc = 160
    vt = 164
    vY = 180
    sW = 48
    sD = 56
    sW0, sW2 = 58, 62
    sT = 66
    srd(A, SRD_A, P_K, NB_SD); srd(A, SRD_B, P_V, NB_SD); srd(A, SRD_C, P_SK, NB_SD)
    A(f"s_lshl_b32 s{sT}, s{sG}, 5")
    A(f"s_load_dwordx8 {s(sW,8)}, {s(P_SH,2)}, s{sT}")
    A(f"s_lshl_b32 s{sT+1}, s{sG}, 3")
    A(f"s_load_dwordx2 {s(sD,2)}, {s(P_SD,2)}, s{sT+1}")
    A(f"s_lshl_b32 s{sT+2}, s{sG}, 2"); A(f"s_add_u32 s{sT+2}, s{sT+2}, s{S_WAVE}"); A(f"s_lshl_b32 s{sT+2}, s{sT+2}, 12")
    A(f"v_lshlrev_b32 v{vT0}, 4, v1")
    for i in range(4):
        A(f"buffer_load_dwordx4 {v(vH+4*i,4)}, v{vT0}, {s(SRD_C,4)}, s{sT+2} offen offset:{1024*i}")
    A(f"v_lshrrev_b32 v{vT1}, 3, v1"); A(f"v_lshlrev_b32 v{vT1}, 8, v{vT1}")
    A(f"v_and_b32 v{vT2}, 7, v1")
    A(f"s_lshl_b32 s{sT+3}, s{S_WAVE}, 6"); A(f"s_sub_u32 s{sT+3}, s{sT+3}, 3")
    A(f"v_add3_u32 v{vT1}, v{vT1}, v{vT2}, s{sT+3}")
    A(f"v_cmp_gt_u32 vcc, 3, v{vT2}")
    A(f"v_cmp_le_i32 s[30:31], 0, v{vT1}")
    A(f"v_mul_u32_u24 v{vT1}, 1280, v{vT1}")
    A(f"s_and_b64 vcc, vcc, s[30:31]")
    A(f"v_mov_b32 v{vT2}, {OOB}")
    A(f"v_cndmask_b32 v{vT1}, v{vT2}, v{vT1}, vcc")
    A(f"buffer_load_dwordx2 {v(vHL,2)}, v{vT1}, {s(SRD_A,4)}, s{sT+1} offen")
    A(f"v_mul_u32_u24 v{vKV}, 1280, v0")
    for nu in range(8):
        A(f"buffer_load_dwordx2 {v(vK+4*nu,2)}, v{vKV}, {s(SRD_A,4)}, s{sT+1} offen")
        A(f"buffer_load_dwordx2 {v(vK+4*nu+2,2)}, v{vKV}, {s(SRD_B,4)}, s{sT+1} offen")
        if nu < 7: A(f"s_add_u32 s{sT+1}, s{sT+1}, {256*1280}")
    A(f"v_sub_u32 v{vXW}, 255, v0"); A(f"v_lshlrev_b32 v{vXW}, 1, v{vXW}")
    if CV_XR: A(f"v_add_u32 v{vXW}, {CV_XR}, v{vXW}")
    A(f"v_and_b32 v{vT1}, 15, v1")
    A(f"v_lshrrev_b32 v{vT2}, 4, v1")
    A(f"s_mul_i32 s{sT+3}, s{S_WAVE}, {CV_CS}"); A(f"s_add_u32 s{sT+3}, s{sT+3}, {CV_XR+480}")
    A(f"v_lshlrev_b32 v{vXR}, 5, v{vT1}"); A(f"v_sub_u32 v{vXR}, s{sT+3}, v{vXR}")
    A(f"v_lshl_add_u32 v{vXR}, v{vT2}, 4, v{vXR}")
    A(f"s_mul_i32 s{sT+4}, s{S_WAVE}, 8320"); A(f"s_add_u32 s{sT+4}, s{sT+4}, {CV_HC}")
    A(f"v_and_b32 v{vHA}, 1, v1"); A(f"v_mul_u32_u24 v{vHA}, 4160, v{vHA}")
    A(f"v_lshrrev_b32 v{vYW}, 1, v{vT1}"); A(f"v_lshl_add_u32 v{vHA}, v{vYW}, 2, v{vHA}")
    A(f"v_lshl_add_u32 v{vHA}, v{vT2}, 4, v{vHA}"); A(f"v_add3_u32 v{vHA}, v{vHA}, s{sT+4}, 4")
    A(f"s_and_b32 s{sT+5}, s{S_WAVE}, 1"); A(f"s_mul_i32 s{sT+5}, s{sT+5}, 520")
    A(f"s_lshr_b32 s{sT+6}, s{S_WAVE}, 1"); A(f"s_mul_i32 s{sT+6}, s{sT+6}, 1152")
    A(f"s_add_u32 s{sT+5}, s{sT+5}, s{sT+6}"); A(f"s_add_u32 s{sT+5}, s{sT+5}, {CV_YS}")
    A(f"v_lshlrev_b32 v{vYW}, 5, v{vT1}"); A(f"v_lshl_add_u32 v{vYW}, v{vT2}, 3, v{vYW}"); A(f"v_add_u32 v{vYW}, s{sT+5}, v{vYW}")
    A(f"v_bfe_u32 v{vYR}, v1, 2, 1"); A(f"v_mul_u32_u24 v{vYR}, 520, v{vYR}")
    A(f"v_bfe_u32 v{vYG}, v1, 3, 1"); A(f"v_mul_u32_u24 v{vYG}, 1152, v{vYG}"); A(f"v_add_u32 v{vYR}, v{vYR}, v{vYG}")
    A(f"v_bfe_u32 v{vYG}, v1, 4, 1"); A(f"v_lshl_add_u32 v{vYR}, v{vYG}, 6, v{vYR}")
    A(f"v_and_b32 v{vYG}, 3, v1"); A(f"v_lshl_add_u32 v{vYR}, v{vYG}, 4, v{vYR}")
    A(f"s_lshl_b32 s{sT+6}, s{S_WAVE}, 7"); A(f"s_add_u32 s{sT+6}, s{sT+6}, {CV_YS}"); A(f"v_add_u32 v{vYR}, s{sT+6}, v{vYR}")
    A(f"v_lshrrev_b32 v{vCR}, 2, v1"); A(f"v_mul_u32_u24 v{vCR}, 10240, v{vCR}"); A(f"v_lshl_add_u32 v{vYG}, v{vYG}, 4, v{vCR}")
    A(f"v_cmp_gt_u32 vcc, 32, v1"); A(f"v_mov_b32 v{vCR}, {OOB}"); A("s_nop 0"); A(f"v_cndmask_b32 v{vYG}, v{vCR}, v{vYG}, vcc")
    sY = sT + 7
    A(f"s_mul_i32 s{sY}, s{S_WAVE}, {8*10240}"); A(f"s_lshl_b32 s{sT+6}, s{sG}, 6"); A(f"s_add_u32 s{sY}, s{sY}, s{sT+6}")
    if WS_YP: A(f"s_add_u32 s{sY}, s{sY}, {WS_YP}")
    A(f"s_lshl_b32 s{sT+6}, s{S_WAVE}, 10"); A(f"s_add_u32 s{sT+6}, s{sT+6}, {CV_CB}")
    A(f"v_min_u32 v{vCR}, 3, v1"); A(f"v_lshlrev_b32 v{vCR}, 4, v{vCR}"); A(f"v_add3_u32 v{vCR}, v{vCR}, s{sT+6}, 48")
    for i in range(4): A(f"v_mov_b32 v{vCc+i}, 0")
    A(f"s_sub_u32 s{sT+3}, s{sT+3}, 480")
    A(f"v_add_u32 v{vt}, s{sT+3}, v{vT0}")
    A("s_mov_b64 exec, 0x3fffffff")
    A(f"ds_write_b128 v{vt}, {v(vCc,4)} offset:4096")
    A("s_mov_b64 exec, -1")
    A(f"v_add_u32 v{vt+1}, s{sT+4}, v{vT0}")
    A("s_mov_b64 exec, 3")
    A(f"ds_write_b128 v{vt+1}, {v(vCc,4)}")
    A(f"ds_write_b128 v{vt+1}, {v(vCc,4)} offset:4160")
    A("s_mov_b64 exec, -1")
    A("s_waitcnt lgkmcnt(0)")
    for c in range(4):
        A(f"s_lshl_b32 s{sW0+c}, s{sW+2*c}, 16")
        A(f"s_and_b32 s30, s{sW+2*c}, 0xffff0000"); A(f"v_mov_b32 v{vW1+c}, s30")
        A(f"s_lshl_b32 s{sW2+c}, s{sW+2*c+1}, 16")
        A(f"s_and_b32 s30, s{sW+2*c+1}, 0xffff0000"); A(f"v_mov_b32 v{vW3+c}, s30")
    A(f"s_lshl_b32 s30, s{S_WAVE}, 4"); A(f"s_lshr_b64 {s(sD,2)}, {s(sD,2)}, s30"); A(f"s_and_b32 s{sD}, s{sD}, 0xffff")
    A(f"v_lshl_add_u32 v{vt+2}, v{vT2}, 3, v{vT1}"); A(f"v_sub_u32 v{vt+2}, 15, v{vt+2}")
    A(f"v_and_b32 v{vt+3}, 1, v{vt+2}"); A(f"v_lshlrev_b32 v{vt+3}, 4, v{vt+3}"); A(f"v_lshlrev_b32 v{vt+3}, v{vt+3}, s{sD}")
    A(f"v_ashrrev_i32 v{vt+2}, 1, v{vt+2}")
    for j in range(4):
        A(f"v_cmp_eq_u32 vcc, {j}, v{vt+2}"); A("s_nop 1"); A(f"v_cndmask_b32 v{vAD+j}, 0, v{vt+3}, vcc")
    A("s_waitcnt vmcnt(17)")
    stamp(A, C, 1)
    for i in range(4):
        A(f"ds_write_b128 v{vt+1}, {v(vH+4*i,4)} offset:{4160+32+1024*i}")
    for i in range(4):
        if i: A(f"v_readlane_b32 s{sT+8+i}, v{vH+4*i-1}, 63")
    A(f"v_mov_b32 v{vt+4}, 0")
    for i in range(1, 4): A(f"v_mov_b32 v{vt+4+i}, s{sT+8+i}")
    for i in range(4):
        A(f"v_mov_b32_dpp v{vt+4+i}, v{vH+4*i+3} wave_shr:1 row_mask:0xf bank_mask:0xf")
    for i in range(4):
        A(f"v_alignbit_b32 v{vE+4*i}, v{vH+4*i}, v{vt+4+i}, 16")
        for j in range(1, 4): A(f"v_alignbit_b32 v{vE+4*i+j}, v{vH+4*i+j}, v{vH+4*i+j-1}, 16")
        A(f"ds_write_b128 v{vt+1}, {v(vE+4*i,4)} offset:{32+1024*i}")
    def aread(m):
        out = []
        if m and m % 16 == 0: out.append(f"v_add_u32 v{vHA}, 1024, v{vHA}")
        o = 16 * (m % 16)
        out.append(f"ds_read2_b32 {a(4*m,2)}, v{vHA} offset0:{o} offset1:{o+1}")
        out.append(f"ds_read2_b32 {a(4*m+2,2)}, v{vHA} offset0:{o+2} offset1:{o+3}")
        return out
    for m in range(8): A.extend(aread(m))
    DP = "wave_shr:1 row_mask:0xf bank_mask:0xf bound_ctrl:0"
    T1, T2, kk, mm, ac = vt, vt + 2, vt + 4, vt + 8, vt + 12
    def shiftconv(kd, cinit):
        o = []
        o += [f"v_mov_b32_dpp v{T1}, v{kd} {DP}", f"v_mov_b32_dpp v{T1+1}, v{kd+1} {DP}"]
        o += [f"v_lshlrev_b32 v{kk}, 16, v{kd}", f"v_and_b32 v{kk+1}, 0xffff0000, v{kd}", f"v_lshlrev_b32 v{kk+2}, 16, v{kd+1}", f"v_and_b32 v{kk+3}, 0xffff0000, v{kd+1}"]
        o += [f"v_mov_b32_dpp v{T2}, v{T1} {DP}", f"v_mov_b32_dpp v{T2+1}, v{T1+1} {DP}"]
        for c in range(4):
            o.append(f"v_fma_f32 v{ac+c}, v{kk+c}, s{sW0+c}, v{vCc+c}" if cinit else f"v_mul_f32 v{ac+c}, s{sW0+c}, v{kk+c}")
        o += [f"v_lshlrev_b32 v{mm}, 16, v{T2}", f"v_and_b32 v{mm+1}, 0xffff0000, v{T2}", f"v_lshlrev_b32 v{mm+2}, 16, v{T2+1}", f"v_and_b32 v{mm+3}, 0xffff0000, v{T2+1}"]
        for c in range(4): o.append(f"v_fmac_f32_dpp v{ac+c}, v{kk+c}, v{vW1+c} {DP}")
        for c in range(4): o.append(f"v_fmac_f32 v{ac+c}, s{sW2+c}, v{mm+c}")
        for c in range(4): o.append(f"v_fmac_f32_dpp v{ac+c}, v{mm+c}, v{vW3+c} {DP}")
        return o
    A("s_waitcnt vmcnt(16)")
    A.extend(shiftconv(vHL, False))
    A(f"v_add_u32 v{T1}, s{sT+6}, v{vT0}")
    A(f"ds_write_b128 v{T1}, {v(ac,4)}")
    for m in range(8, npre): A.extend(aread(m))
    def kvstage(nu, nstores):
        kd = vK + 4 * nu
        o = [f"ds_read_b128 {v(vCc,4)}, v{vCR} offset:{128*nu}", f"s_waitcnt vmcnt({2*(7-nu)+nstores}) lgkmcnt(0)"]
        o += shiftconv(kd, True)
        o += [f"v_lshlrev_b32 v{kk}, 16, v{kd+2}", f"v_and_b32 v{kk+1}, 0xffff0000, v{kd+2}", f"v_lshlrev_b32 v{kk+2}, 16, v{kd+3}", f"v_and_b32 v{kk+3}, 0xffff0000, v{kd+3}"]
        for c in range(4): o.append(f"v_mul_f32 v{ac+c}, v{ac+c}, v{kk+c}")
        o += [f"v_cvt_pk_bf16_f32 v{T1}, v{ac}, v{ac+1}", f"v_cvt_pk_bf16_f32 v{T1+1}, v{ac+2}, v{ac+3}"]
        for c in range(4):
            op = "ds_write_b16_d16_hi" if c & 1 else "ds_write_b16"
            o.append(f"{op} v{vXW}, v{T1+(c>>1)} offset:{c*CV_CS+512*(7-nu)}")
        o += ["s_waitcnt lgkmcnt(0)", "s_barrier"]
        for rho in range(8):
            o.append(f"ds_read_b128 {v(vB+32*(nu&1)+4*rho,4)}, v{vXR} offset:{512*(7-nu)+64*rho}")
        return o
    A.extend(kvstage(0, 0))
    stamp(A, C, 2)
    for nu in range(8):
        bb = vB + 32 * (nu & 1)
        mf = []
        for n in range(nu, 8):
            acc = v(vACC + 4 * n, 4)
            for rho in range(8):
                c = "0" if (nu == 0 and rho == 0) else acc
                mf.append(f"v_mfma_f32_16x16x32_bf16 {acc}, {a(4*(8*(n-nu)+rho),4)}, {v(bb+4*rho,4)}, {c}")
            if n == nu: mf.append(f"v_mfma_f32_16x16x32_bf16 {acc}, {v(vAD,4)}, {v(bb,4)}, {acc}")
        an = vACC + 4 * nu
        pub = [f"v_cvt_pk_bf16_f32 v{vY}, v{an}, v{an+1}", f"v_cvt_pk_bf16_f32 v{vY+1}, v{an+2}, v{an+3}",
               f"ds_write_b64 v{vYW}, {v(vY,2)}", "s_waitcnt lgkmcnt(0)", "s_barrier",
               f"ds_read_b64_tr_b16 {v(vY+2,2)}, v{vYR}", f"ds_read_b64_tr_b16 {v(vY+4,2)}, v{vYR} offset:8"]
        pub2 = ["s_waitcnt lgkmcnt(0)", f"buffer_store_dwordx4 {v(vY+2,4)}, v{vYG}, {s(SRD_WS,4)}, s{sY} offen{C.sc}", f"s_add_u32 s{sY}, s{sY}, {32*10240}"]
        A("s_waitcnt lgkmcnt(4)")
        head = mf[:4] + ["s_waitcnt lgkmcnt(0)"] + mf[4:9]
        rest = mf[9:]
        A.extend(head)
        seqs = []
        if nu == 0:
            m_next = npre
            out = []
            first = True
            for n in range(1, 8):
                ch = rest[8*(n-1):8*n]
                fl = []
                if n == 1: fl.append(dict(items=[(x, 1) for x in pub], lo=3))
                if n == 2: fl.append(dict(items=[(x, 1) for x in pub2], lo=0))
                rd = []
                tgt = min(64, max(8 * (n + 2), m_next + 8)) if m_next < 64 else 64
                while m_next < tgt: rd += aread(m_next); m_next += 1
                if rd: fl.append(dict(items=[(x, 1) for x in rd], lo=0))
                if n == 5: kv1 = kvstage(1, 1); parts = [kv1[:18], kv1[18:36], kv1[36:]]
                if n >= 5: fl.append(dict(items=[(x, 1) for x in parts[n-5]], lo=0))
                if 8 * (n + 1) > npre: out.append("s_waitcnt lgkmcnt(0)")
                out += place(ch, fl, cap=3)
            A.extend(out)
        elif rest:
            seqs.append(dict(items=[(x, 1) for x in pub], lo=3))
            seqs.append(dict(items=[(x, 1) for x in pub2], lo=min(10, len(rest) - 1)))
            seqs.append(dict(items=[(x, 1) for x in kvstage(nu + 1, nu + 1)], align="r", hi=len(rest) - 3))
            A.extend(place(rest, seqs, cap=2))
        else:
            A.extend(pub + pub2)
        if nu in (0, 3): stamp(A, C, 3 if nu == 0 else 4)
    stamp(A, C, 5)

def repack(A, C, sK):
    srd(A, SRD_A, P_WD, NB_W)
    A(f"v_lshlrev_b32 v2, 4, v1")
    A(f"s_mul_i32 s48, s{sK}, 40960"); A(f"s_mul_i32 s49, s{S_WAVE}, 10240"); A("s_add_u32 s48, s48, s49")
    for i in range(10):
        if i % 4 == 0:
            A(f"s_add_u32 m0, s49, {1024*i}"); A(f"s_add_u32 s50, s48, {1024*i}")
        A(f"buffer_load_dwordx4 v2, {s(SRD_A,4)}, s50 offen offset:{1024*(i%4)} lds")
    A("v_lshrrev_b32 v3, 4, v1"); A("v_bfe_u32 v4, v1, 2, 2"); A("v_lshl_add_u32 v3, v3, 3, v4"); A("v_mul_u32_u24 v3, 1280, v3")
    A("v_and_b32 v4, 3, v1"); A("v_lshl_add_u32 v3, v4, 3, v3")
    A(f"s_mul_i32 s50, s{S_WAVE}, 320"); A("v_add_u32 v3, s50, v3")
    A(f"s_mul_i32 s50, s{S_WAVE}, 108"); A(f"s_add_u32 s50, s50, s{sK}"); A("s_mul_i32 s50, s50, 5120"); A(f"s_add_u32 s50, s50, {WS_W2F}")
    A("s_waitcnt vmcnt(0)"); A("s_barrier")
    for i in range(10):
        A(f"ds_read_b64_tr_b16 {v(8+4*i,2)}, v3 offset:{32*i}")
        A(f"ds_read_b64_tr_b16 {v(10+4*i,2)}, v3 offset:{32*i+5120}")
    A("s_waitcnt lgkmcnt(0)")
    for i in range(10):
        if i == 4: A("s_add_u32 s50, s50, 4096")
        if i == 5: A(f"s_add_u32 s50, s50, {54*5120-4096}")
        if i == 9: A("s_add_u32 s50, s50, 4096")
        A(f"buffer_store_dwordx4 {v(8+4*i,4)}, v2, {s(SRD_WS,4)}, s50 offen offset:{1024*((i%5)%4)}{C.sc}")

def unpack(dst, src, n):
    o = []
    for i in range(n):
        o.append(f"v_lshlrev_b32 v{dst+2*i}, 16, v{src+i}")
        o.append(f"v_and_b32 v{dst+2*i+1}, 0xffff0000, v{src+i}")
    return o

def rnd_bf16(r):
    return [f"v_cvt_pk_bf16_f32 v{r}, v{r}, v{r}", f"v_and_b32 v{r}, 0xffff0000, v{r}"]

def rowstats(A, xs, vS, vLW, vLR, ldsoff):
    A(f"v_pk_add_f32 {v(vS,2)}, {v(xs,2)}, {v(xs+2,2)}")
    A(f"v_pk_mul_f32 {v(vS+2,2)}, {v(xs,2)}, {v(xs,2)}")
    A(f"v_pk_fma_f32 {v(vS+2,2)}, {v(xs+2,2)}, {v(xs+2,2)}, {v(vS+2,2)}")
    for i in range(2, 10):
        A(f"v_pk_add_f32 {v(vS,2)}, {v(vS,2)}, {v(xs+2*i,2)}")
        A(f"v_pk_fma_f32 {v(vS+2,2)}, {v(xs+2*i,2)}, {v(xs+2*i,2)}, {v(vS+2,2)}")
    A(f"v_add_f32 v{vS}, v{vS}, v{vS+1}")
    A(f"v_add_f32 v{vS+1}, v{vS+2}, v{vS+3}")
    for j in range(2): A(f"v_add_f32_dpp v{vS+j}, v{vS+j}, v{vS+j} row_ror:8 row_mask:0xf bank_mask:0xf")
    for op in ("v_permlane16_swap_b32", "v_permlane32_swap_b32"):
        for j in range(2): A(f"v_mov_b32 v{vS+2+j}, v{vS+j}")
        for j in range(2): A(f"{op} v{vS+j}, v{vS+2+j}")
        for j in range(2): A(f"v_add_f32 v{vS+j}, v{vS+j}, v{vS+2+j}")
    A(f"ds_write_b64 v{vLW}, {v(vS,2)} offset:{ldsoff}")
    A("s_waitcnt lgkmcnt(0)"); A("s_barrier")
    A(f"ds_read_b128 {v(vS+4,4)}, v{vLR} offset:{ldsoff}")
    A(f"ds_read_b128 {v(vS+8,4)}, v{vLR} offset:{ldsoff+16}")
    A("s_waitcnt lgkmcnt(0)")
    A(f"v_pk_add_f32 {v(vS+4,2)}, {v(vS+4,2)}, {v(vS+6,2)}")
    A(f"v_pk_add_f32 {v(vS+8,2)}, {v(vS+8,2)}, {v(vS+10,2)}")
    A(f"v_pk_add_f32 {v(vS,2)}, {v(vS+4,2)}, {v(vS+8,2)}")
    import struct
    inv = struct.unpack("<I", struct.pack("<f", 1.0 / 640))[0]
    eps = struct.unpack("<I", struct.pack("<f", 1e-5))[0]
    A(f"v_mul_f32 v{vS}, {inv:#x}, v{vS}")
    A(f"v_mul_f32 v{vS+1}, {inv:#x}, v{vS+1}")
    A(f"v_fma_f32 v{vS+1}, -v{vS}, v{vS}, v{vS+1}")
    A(f"v_max_f32 v{vS+1}, 0, v{vS+1}")
    A(f"v_cvt_pk_bf16_f32 v{vS+1}, v{vS}, v{vS+1}")
    A(f"v_lshlrev_b32 v{vS}, 16, v{vS+1}")
    A(f"v_and_b32 v{vS+1}, 0xffff0000, v{vS+1}")
    A(f"v_add_f32 v{vS+1}, {eps:#x}, v{vS+1}")
    A.extend(rnd_bf16(vS + 1))
    A(f"v_sqrt_f32 v{vS+1}, v{vS+1}")
    A.extend(rnd_bf16(vS + 1))
    A(f"v_rcp_f32 v{vS+1}, v{vS+1}")

def rphase(A, C, sT):
    vYA, vYB, vXA, vXB, vLA, vLB, vHB, vLW, vLR, vr, vq = range(2, 13)
    vXr = 16
    vYr = 28
    vX = 40; vQ = 60; vYf = 80; vS = 100; vP = 112; vP2 = 124
    srd(A, SRD_A, P_Q, NB_SD)
    A(f"v_lshrrev_b32 v{vq}, 3, v0")
    A(f"v_and_b32 v{vLR}, 7, v1")
    A(f"v_lshrrev_b32 v{vr}, 1, v{vLR}"); A(f"v_and_b32 v{vXA}, 1, v1"); A(f"v_lshl_add_u32 v{vr}, v{vXA}, 2, v{vr}")
    A(f"v_mul_u32_u24 v{vXB}, 1280, v{vr}")
    A(f"v_lshl_add_u32 v{vXA}, v{vq}, 4, v{vXB}")
    A(f"v_lshl_add_u32 v{vXB}, v{vq}, 3, v{vXB}")
    A(f"s_mul_i32 s48, s{sT}, 10240")
    A(f"buffer_load_dwordx4 {v(vXr,4)}, v{vXA}, {s(SRD_A,4)}, s48 offen")
    A(f"buffer_load_dwordx4 {v(vXr+4,4)}, v{vXA}, {s(SRD_A,4)}, s48 offen offset:512")
    A(f"buffer_load_dwordx2 {v(vXr+8,2)}, v{vXB}, {s(SRD_A,4)}, s48 offen offset:1024")
    A(f"v_lshlrev_b32 v{vYB}, 3, v{vLR}")
    A(f"v_lshl_add_u32 v{vYA}, v{vq}, 7, v{vYB}")
    A(f"v_lshl_add_u32 v{vYB}, v{vq}, 6, v{vYB}")
    A(f"s_add_u32 s49, s48, {WS_YP}"); A(f"s_add_u32 s50, s48, {WS_YP+4096}"); A(f"s_add_u32 s51, s48, {WS_YP+8192}")
    A(f"buffer_load_dwordx2 {v(vYr,2)}, v{vYA}, {s(SRD_WS,4)}, s49 offen{C.sc}")
    A(f"buffer_load_dwordx2 {v(vYr+2,2)}, v{vYA}, {s(SRD_WS,4)}, s49 offen offset:64{C.sc}")
    A(f"buffer_load_dwordx2 {v(vYr+4,2)}, v{vYA}, {s(SRD_WS,4)}, s50 offen{C.sc}")
    A(f"buffer_load_dwordx2 {v(vYr+6,2)}, v{vYA}, {s(SRD_WS,4)}, s50 offen offset:64{C.sc}")
    A(f"buffer_load_dwordx2 {v(vYr+8,2)}, v{vYB}, {s(SRD_WS,4)}, s51 offen{C.sc}")
    A(f"v_lshlrev_b32 v{vLB}, 4, v{vr}")
    A(f"v_lshl_add_u32 v{vLA}, v{vq}, 8, v{vLB}")
    A(f"v_lshl_add_u32 v{vLB}, v{vq}, 7, v{vLB}")
    A(f"v_and_b32 v{vLW}, 8, v1"); A(f"v_cmp_eq_u32 vcc, 0, v{vLW}"); A(f"v_mov_b32 v{vLW}, {OOB}"); A("s_nop 0")
    A(f"v_cndmask_b32 v{vLB}, v{vLW}, v{vLB}, vcc"); A(f"v_cndmask_b32 v{vHB}, v{vLW}, v{vXB}, vcc")
    A(f"v_lshlrev_b32 v{vLR}, 5, v{vLR}")
    A(f"s_lshl_b32 s52, s{S_WAVE}, 3"); A(f"v_add_u32 v{vLW}, s52, v{vLR}")
    A(f"s_lshr_b32 s52, s{sT}, 1"); A("s_mul_i32 s52, s52, 20480"); A(f"s_and_b32 s53, s{sT}, 1"); A("s_lshl_b32 s53, s53, 7")
    A("s_add_u32 s52, s52, s53"); A(f"s_add_u32 s52, s52, {WS_LNF}"); A("s_add_u32 s53, s52, 8192"); A("s_add_u32 s54, s52, 16384")
    A(f"s_add_u32 s55, s48, {WS_HR}")
    A("s_waitcnt vmcnt(5)")
    stamp(A, C, 1)
    A.extend(unpack(vX, vXr, 10))
    rowstats(A, vX, vS, vLW, vLR, 0)
    A(f"v_mul_f32 v{vS}, v{vS}, v{vS+1}")
    for i in range(10):
        A(f"v_pk_fma_f32 {v(vQ+2*i,2)}, {v(vX+2*i,2)}, {v(vS,2)}, {v(vS,2)} op_sel:[0,1,0] op_sel_hi:[1,1,0] neg_lo:[0,0,1] neg_hi:[0,0,1]")
    A("s_waitcnt vmcnt(0)")
    stamp(A, C, 2)
    A.extend(unpack(vYf, vYr, 10))
    for i in range(10):
        A(f"v_pk_fma_f32 {v(vX+2*i,2)}, {v(vQ+2*i,2)}, {v(vYf+2*i,2)}, {v(vX+2*i,2)}")
    def packstore(P, src, va, vb, s0, o0, s1, o1, s2, o2):
        for i in range(10): A(f"v_cvt_pk_bf16_f32 v{P+i}, v{src+2*i}, v{src+2*i+1}")
        A(f"buffer_store_dwordx4 {v(P,4)}, v{va}, {s(SRD_WS,4)}, s{s0} offen offset:{o0}{C.sc}")
        A(f"buffer_store_dwordx4 {v(P+4,4)}, v{va}, {s(SRD_WS,4)}, s{s1} offen offset:{o1}{C.sc}")
        for j in range(2): A(f"v_mov_b32_dpp v{P+10+j}, v{P+8+j} row_shl:8 row_mask:0xf bank_mask:0xf bound_ctrl:0")
        A(f"buffer_store_dwordx4 {v(P+8,4)}, v{vb}, {s(SRD_WS,4)}, s{s2} offen offset:{o2}{C.sc}")
    rowstats(A, vX, vS, vLW, vLR, 256)
    A(f"v_mul_f32 v{vS}, v{vS}, v{vS+1}")
    for i in range(10):
        A(f"v_pk_fma_f32 {v(vQ+2*i,2)}, {v(vX+2*i,2)}, {v(vS,2)}, {v(vS,2)} op_sel:[0,1,0] op_sel_hi:[1,1,0] neg_lo:[0,0,1] neg_hi:[0,0,1]")
    packstore(vP, vQ, vLA, vLB, 52, 0, 53, 0, 54, 0)
    packstore(vP2, vX, vXA, vHB, 55, 0, 55, 512, 55, 1024)
    stamp(A, C, 3)

G1_LDS = 163840
def g1(A, C, sC, sU0, ustride, nunits, tag="g1"):
    vL16, vWa, vWb, vTR, vRD, vST, vT0, vT1 = range(2, 10)
    vACC = 12
    vE = 44
    vP = 52
    FR = 56
    depth = 8; grp = 2; ahead = depth - grp
    sSrc, sWb, sRd, sDm, sSt, sCnt, sTm, sNL = 48, 49, 50, 51, 52, 53, 54, 55
    srd(A, SRD_A, P_WG, NB_W); srd(A, SRD_B, P_WU, NB_W)
    A(f"v_lshlrev_b32 v{vL16}, 4, v1")
    A(f"v_lshrrev_b32 v{vT0}, 3, v1"); A(f"v_mul_u32_u24 v{vWa}, 3456, v{vT0}")
    A(f"v_and_b32 v{vT0}, 2, v{vT0}"); A(f"v_and_b32 v{vT1}, 7, v1"); A(f"v_xor_b32 v{vT0}, v{vT0}, v{vT1}")
    A(f"v_xor_b32 v{vT1}, 4, v{vT0}")
    A(f"v_lshl_add_u32 v{vWb}, v{vT1}, 4, v{vWa}"); A(f"v_lshl_add_u32 v{vWa}, v{vT0}, 4, v{vWa}")
    A(f"s_and_b32 s{sTm}, s{S_WAVE}, 1"); A(f"s_mul_i32 s{sSrc}, s{sTm}, {80*3456}")
    A(f"s_lshl_b32 s{sTm}, s{sC}, 7"); A(f"s_add_u32 s{sSrc}, s{sSrc}, s{sTm}")
    A(f"s_mul_i32 s{sWb}, s{S_WAVE}, 10240")
    A(f"s_cmp_ge_u32 s{S_WAVE}, 2")
    A(f"s_cselect_b32 s{SRD_C}, s{SRD_B}, s{SRD_A}"); A(f"s_cselect_b32 s{SRD_C+1}, s{SRD_B+1}, s{SRD_A+1}")
    A(f"s_mov_b32 s{SRD_C+2}, {NB_W}"); A(f"s_mov_b32 s{SRD_C+3}, 0x20000")
    for qd in range(4):
        for i in range(10):
            if i % 4 == 0: A(f"s_add_u32 m0, s{sWb}, {qd*40960+1024*i}")
            A(f"s_add_u32 s{sTm}, s{sSrc}, {(160*qd+8*i)*3456-1024*(i%4)}")
            A(f"buffer_load_dwordx4 v{vWb if i&1 else vWa}, {s(SRD_C,4)}, s{sTm} offen offset:{1024*(i%4)} lds")
    A(f"v_lshrrev_b32 v{vT0}, 4, v1"); A(f"v_bfe_u32 v{vT1}, v1, 2, 2"); A(f"v_lshl_add_u32 v{vTR}, v{vT0}, 3, v{vT1}"); A(f"v_lshlrev_b32 v{vTR}, 7, v{vTR}")
    A(f"v_bfe_u32 v{vT0}, v1, 3, 2")
    A(f"v_xor_b32 v{vT0}, s{S_WAVE}, v{vT0}"); A(f"v_lshl_add_u32 v{vTR}, v{vT0}, 5, v{vTR}")
    A(f"v_and_b32 v{vT0}, 3, v1"); A(f"v_lshl_add_u32 v{vTR}, v{vT0}, 3, v{vTR}")
    A(f"v_bfe_u32 v{vT0}, v1, 4, 1"); A(f"v_mul_u32_u24 v{vST}, 55296, v{vT0}")
    A(f"v_lshrrev_b32 v{vT0}, 5, v1"); A(f"v_lshl_add_u32 v{vST}, v{vT0}, 8, v{vST}")
    A(f"v_and_b32 v{vT0}, 15, v1"); A(f"v_lshl_add_u32 v{vST}, v{vT0}, 4, v{vST}")
    A(f"s_mul_i32 s{sSt}, s{sU0}, {2*55296}"); A(f"s_lshl_b32 s{sTm}, s{sC}, 11"); A(f"s_add_u32 s{sSt}, s{sSt}, s{sTm}")
    A(f"s_lshl_b32 s{sTm}, s{S_WAVE}, 9"); A(f"s_add_u32 s{sSt}, s{sSt}, s{sTm}"); A(f"s_add_u32 s{sSt}, s{sSt}, {WS_HHF}")
    A(f"s_mul_i32 s{sSrc}, s{sU0}, 40960"); A(f"s_add_u32 s{sSrc}, s{sSrc}, s{sWb}"); A(f"s_add_u32 s{sSrc}, s{sSrc}, {WS_LNF}")
    A(f"s_mov_b32 s{sDm}, s{sWb}"); A(f"s_mov_b32 s{sRd}, 0")
    A(f"s_mov_b32 s{sNL}, 0xbfb8aa3b")
    def dma_instrs():
        out = []
        for i in range(10):
            pre = [f"s_add_u32 m0, s{sDm}, {i*1024}", f"s_add_u32 s{sTm}, s{sSrc}, {i*1024}"] if i % 4 == 0 else []
            out.append((pre, f"buffer_load_dwordx4 v{vL16}, {s(SRD_WS,4)}, s{sTm} offen offset:{(i%4)*1024}{C.sc} lds"))
        return out
    def adv():
        return [f"s_add_u32 s{sSrc}, s{sSrc}, {ustride*40960}", f"s_add_u32 s{sDm}, s{sDm}, 40960", f"s_cmp_ge_u32 s{sDm}, {3*40960}", f"s_cselect_b32 s{sDm}, s{sWb}, s{sDm}"]
    def dma_now():
        for pre, d in dma_instrs(): A.extend(pre); A(d)
        A.extend(adv())
    def trq(qd):
        for kk in range(5):
            for mat in range(2):
                for hh in range(2):
                    A(f"ds_read_b64_tr_b16 {a(8*(5*qd+kk)+4*mat+2*hh,2)}, v{vTR} offset:{mat*20480+(32*kk+4*hh)*128}")
        if qd < 3: A(f"v_add_u32 v{vTR}, 40960, v{vTR}")
    A("s_waitcnt vmcnt(30)"); A("s_barrier"); stamp(A, C, 1); trq(0)
    A("s_waitcnt vmcnt(20) lgkmcnt(0)"); A("s_barrier"); dma_now(); trq(1)
    A("s_waitcnt vmcnt(20) lgkmcnt(0)"); A("s_barrier"); dma_now(); trq(2)
    A("s_waitcnt vmcnt(20) lgkmcnt(0)"); A("s_barrier"); trq(3)
    A("s_waitcnt vmcnt(10) lgkmcnt(0)"); A("s_barrier")
    stamp(A, C, 2)
    A(f"v_mov_b32 v{vRD}, v{vL16}")
    for i in range(ahead): A(f"ds_read_b128 {v(FR+4*i,4)}, v{vRD} offset:{i*1024}")
    def epi(pacc):
        o = []
        G = lambda i: pacc + 8 * (i >> 2) + (i & 3)
        U = lambda i: G(i) + 4
        for i in range(8): o.append((f"v_mul_f32 v{vE+i}, s{sNL}, v{G(i)}", 1))
        for i in range(8): o.append((f"v_exp_f32 v{vE+i}, v{vE+i}", 2))
        for i in range(8): o.append((f"v_add_f32 v{vE+i}, 1.0, v{vE+i}", 1))
        for i in range(8): o.append((f"v_rcp_f32 v{vE+i}, v{vE+i}", 2))
        for i in range(8): o.append((f"v_mul_f32 v{vE+i}, v{vE+i}, v{U(i)}", 1))
        for i in range(4): o.append((f"v_cvt_pk_bf16_f32 v{vP+i}, v{vE+2*i}, v{vE+2*i+1}", 1))
        o.append((f"v_permlane16_swap_b32 v{vP}, v{vP+2}", 1)); o.append((f"v_permlane16_swap_b32 v{vP+1}, v{vP+3}", 1))
        o.append((f"buffer_store_dwordx4 {v(vP,4)}, v{vST}, {s(SRD_WS,4)}, s{sSt} offen{C.sc}", 1))
        o.append((f"s_add_u32 s{sSt}, s{sSt}, {ustride*2*55296}", 1))
        return o
    def unit(half, do_epi, do_dma, do_next, nvm):
        acc = vACC + 16 * half; pacc = vACC + 16 * (1 - half)
        mf = []
        for st in range(2):
            for k0 in range(0, 20, grp):
                for gu in range(2):
                    for kk in range(k0, k0 + grp):
                        i = st * 20 + kk; ac = acc + 8 * st + 4 * gu
                        c = "0" if kk == 0 else v(ac, 4)
                        mf.append((f"v_mfma_f32_16x16x32_bf16 {v(ac,4)}, {a(8*kk+4*gu,4)}, {v(FR+4*(i%depth),4)}, {c}", i))
        n = len(mf); cap = 2
        last_use = {}
        for idx, (_, f) in enumerate(mf): last_use[f] = idx
        gaps = [[] for _ in range(n)]; cost = [0] * n
        nxt = ahead; waited = -1; lim = 40 + ahead if do_next else 40
        bar_idx = None
        for idx, (_, f) in enumerate(mf):
            if nxt < lim and (nxt - depth < 0 or last_use[nxt - depth] < idx):
                if nxt == 40:
                    gaps[idx] += [f"s_waitcnt lgkmcnt(0) vmcnt({nvm})", "s_barrier", f"v_add_u32 v{vRD}, s{sRd}, v{vL16}"]
                    cost[idx] += 3; waited = 39; bar_idx = idx
                gaps[idx].append(f"ds_read_b128 {v(FR+4*(nxt%depth),4)}, v{vRD} offset:{(nxt%40)*1024}"); cost[idx] += 1
                nxt += 1
            if f > waited:
                tgt = min(f + 1, 39)
                gaps[idx].append(f"s_waitcnt lgkmcnt({nxt-1-tgt})"); cost[idx] += 1; waited = tgt
        assert nxt == lim
        span = 56
        if do_dma:
            for i, (pre, d) in enumerate(dma_instrs()):
                pos = 1 + (i * span) // 10
                while cost[pos] >= cap: pos += 1
                if pre: gaps[pos-1] += pre; cost[pos-1] += 2
                gaps[pos].append(d); cost[pos] += 1
        sal = (adv() if do_dma else []) + ([f"s_add_u32 s{sRd}, s{sRd}, 40960", f"s_cmp_ge_u32 s{sRd}, {3*40960}", f"s_cselect_b32 s{sRd}, 0, s{sRd}"] if do_next else [])
        pos = span + 2
        for x in sal:
            gaps[pos].append(x); cost[pos] += 1
            if not x.startswith("s_cmp") and cost[pos] >= cap: pos += 1
        assert bar_idx is None or pos < bar_idx
        stpos = None
        if do_epi:
            pos = 5
            for x, c in epi(pacc):
                if x.startswith("buffer_store") and bar_idx is not None: pos = max(pos, bar_idx + 1)
                while pos < n - 1 and cost[pos] + c > cap: pos += 1
                gaps[pos].append(x); cost[pos] += c
                if x.startswith("buffer_store"): stpos = pos
            assert bar_idx is None or stpos > bar_idx, (stpos, bar_idx)
        out = []
        for idx, (m, f) in enumerate(mf):
            out += gaps[idx]; out.append(m)
        return out
    assert nunits >= 4 and nunits % 2 == 0
    A.extend(unit(0, False, True, True, 10))
    A.extend(unit(1, True, True, True, 10))
    nloop = (nunits - 4) // 2
    if nloop:
        A(f"s_mov_b32 s{sCnt}, {nloop}")
        A.label(f"L_{tag}_loop")
        body = unit(0, True, True, True, 11) + unit(1, True, True, True, 11)
        A.extend(body)
        A(f"s_sub_u32 s{sCnt}, s{sCnt}, 1"); A(f"s_cmp_lg_u32 s{sCnt}, 0"); A(f"s_cbranch_scc1 L_{tag}_loop")
    A.extend(unit(0, True, False, True, 1))
    A.extend(unit(1, True, False, False, 0))
    stamp(A, C, 3)
    A.extend([x for x, _ in epi(vACC + 16)])
    stamp(A, C, 4)

G2_LDS = 2 * 20480
def g2(A, C, sRT, sCB):
    vL16, vLast, vRW, vRR, vO, vT0, vT1 = range(2, 9)
    vWX = 12
    vHH = 36
    vACC = 92
    vR = 132
    vRes = 164
    vTm = 172
    sW, sH, sTm, sO, sK0, sHR = 48, 49, 50, 51, 52, 53
    srd(A, SRD_A, P_OUT, NB_SD)
    def W(t, dt):
        f = 5 * t + dt
        return a(4 * f, 4) if f < 64 else v(vWX + 4 * (f - 64), 4)
    A(f"v_lshlrev_b32 v{vL16}, 4, v1")
    A(f"s_mul_i32 s{sK0}, s{S_WAVE}, 14"); A(f"s_cmp_eq_u32 s{S_WAVE}, 3"); A(f"s_cselect_b32 s{sK0}, 41, s{sK0}")
    A(f"s_cmp_ge_u32 s{S_WAVE}, 2"); A(f"s_cselect_b32 s{sTm}, {OOB}, 0"); A(f"v_or_b32 v{vLast}, s{sTm}, v{vL16}")
    A(f"s_mul_i32 s{sW}, s{sCB}, 54"); A(f"s_add_u32 s{sW}, s{sW}, s{sK0}"); A(f"s_mul_i32 s{sW}, s{sW}, 5120"); A(f"s_add_u32 s{sW}, s{sW}, {WS_W2F}")
    A(f"s_mul_i32 s{sH}, s{sRT}, 54"); A(f"s_add_u32 s{sH}, s{sH}, s{sK0}"); A(f"s_lshl_b32 s{sH}, s{sH}, 10"); A(f"s_add_u32 s{sH}, s{sH}, {WS_HHF}")
    def hload(p, t, force=False):
        pre = [f"s_add_u32 s{sTm}, s{sH}, {p*32*55296+1024*(t-t%4)}"] if (t % 4 == 0 or force) else []
        return pre + [f"buffer_load_dwordx4 {v(vHH+4*t,4)}, v{vLast if t==13 else vL16}, {s(SRD_WS,4)}, s{sTm} offen offset:{1024*(t%4)}{C.sc}"]
    def wload(t):
        o = [f"s_add_u32 s30, s{sW}, {5120*t}", f"s_add_u32 s31, s{sW}, {5120*t+4096}"]
        for dt in range(5):
            o.append(f"buffer_load_dwordx4 {W(t,dt)}, v{vLast if t==13 else vL16}, {s(SRD_WS,4)}, s{31 if dt==4 else 30} offen offset:{1024*(dt%4)}{C.sc}")
        return o
    NPRE = 9
    for t in range(NPRE):
        A.extend(hload(0, t)); A.extend(wload(t))
    A(f"s_mul_i32 s30, s{S_WAVE}, 5120"); A(f"v_add_u32 v{vRW}, s30, v{vL16}")
    A(f"v_mul_u32_u24 v{vT0}, 205, v1"); A(f"v_lshrrev_b32 v{vT0}, 11, v{vT0}")
    A(f"v_mul_u32_u24 v{vT1}, 10, v{vT0}"); A(f"v_sub_u32 v{vT1}, v1, v{vT1}")
    A(f"v_and_b32 v{vT0}, 3, v{vT0}")
    A(f"s_lshl_b32 s30, s{S_WAVE}, 2"); A(f"v_add_u32 v{vT0}, s30, v{vT0}")
    A(f"v_lshlrev_b32 v{vRR}, 4, v{vT0}"); A(f"v_lshl_add_u32 v{vRR}, v{vT1}, 9, v{vRR}")
    A(f"v_mul_u32_u24 v{vO}, 1280, v{vT0}"); A(f"v_lshl_add_u32 v{vO}, v{vT1}, 4, v{vO}")
    A(f"v_cmp_gt_u32 vcc, 40, v1"); A(f"v_mov_b32 v{vT0}, {OOB}"); A("s_nop 0"); A(f"v_cndmask_b32 v{vO}, v{vT0}, v{vO}, vcc")
    A(f"s_mul_i32 s{sO}, s{sRT}, {16*1280}"); A(f"s_mul_i32 s30, s{sCB}, 160"); A(f"s_add_u32 s{sO}, s{sO}, s30")
    A(f"s_add_u32 s{sHR}, s{sO}, {WS_HR}")
    def red1(p):
        acc = vACC + 20 * (p & 1)
        o = [f"ds_write_b128 v{vRW}, {v(acc+4*dt,4)} offset:{(p&1)*20480+1024*dt}" for dt in range(5)]
        o += ["s_waitcnt lgkmcnt(0)", "s_barrier"]
        for w in range(4):
            for j in range(2):
                o.append(f"ds_read_b128 {v(vR+8*w+4*j,4)}, v{vRR} offset:{(p&1)*20480+5120*w+256*j}")
        return o
    def red2(p):
        rr = vRes + 4 * (p & 1)
        o = unpack(vTm, rr, 4)
        o.append("s_waitcnt lgkmcnt(0)")
        for w in range(4):
            for j in range(8): o.append(f"v_add_f32 v{vTm+j}, v{vTm+j}, v{vR+8*w+j}")
        for j in range(4): o.append(f"v_cvt_pk_bf16_f32 v{vR+j}, v{vTm+2*j}, v{vTm+2*j+1}")
        o.append(f"buffer_store_dwordx4 {v(vR,4)}, v{vO}, {s(SRD_A,4)}, s{sO} offen")
        o.append(f"s_add_u32 s{sO}, s{sO}, {512*1280}")
        return o
    def resload(p):
        return [f"buffer_load_dwordx4 {v(vRes+4*(p&1),4)}, v{vO}, {s(SRD_WS,4)}, s{sHR} offen{C.sc}", f"s_add_u32 s{sHR}, s{sHR}, {512*1280}"]
    stream = []
    issued = []
    for t in range(NPRE):
        issued.append(("h", 0, t)); issued += [("w", t)] * 5
    def emit(x, tg=None):
        stream.append(x)
        if x.startswith("buffer_"): issued.append(tg)
    def need(tags):
        last = max(i for i, tg in enumerate(issued) if tg in tags)
        stream.append(f"s_waitcnt vmcnt({len(issued)-1-last})")
    for p in range(4):
        acc = vACC + 20 * (p & 1)
        extra = []
        if p > 0: extra = [(x, None) for x in red1(p - 1)] + [("NEEDRES", p - 1)] + [(x, "st") for x in red2(p - 1)]
        extra = [(x, ("r", p)) for x in resload(p)] + extra
        ei = 0
        for t in range(14):
            need([("h", p, t)] + ([("w", t)] if p == 0 else []))
            if p == 0 and t == 0: stream.append("STAMP1")
            fl = []
            if p == 0 and t + NPRE < 14:
                fl += [(x, ("h", 0, t + NPRE)) for x in hload(0, t + NPRE, True)] + [(x, ("w", t + NPRE)) for x in wload(t + NPRE)]
            for dt in range(5):
                c = "0" if t == 0 else v(acc + 4 * dt, 4)
                emit(f"v_mfma_f32_16x16x32_bf16 {v(acc+4*dt,4)}, {W(t,dt)}, {v(vHH+4*t,4)}, {c}")
                k = 0
                lim = 2 if dt < 4 else 0
                while k < lim and fl:
                    x, tg = fl.pop(0); emit(x, tg); k += 1
                while k < lim and ei < len(extra) and (5 * t + dt >= 3):
                    x, tg = extra[ei]; ei += 1
                    if x == "NEEDRES": need([("r", tg)])
                    else: emit(x, tg)
                    k += 1
            for x, tg in fl: emit(x, tg)
            if p < 3:
                hl = hload(p + 1, t, p == 0 and t + NPRE < 14)
                for x in hl: emit(x, ("h", p + 1, t))
        assert ei == len(extra)
        stream.append(f"STAMP{p+2}")
    for x in red1(3): emit(x)
    need([("r", 3)])
    for x in red2(3): emit(x, "st")
    for x in stream:
        if x.startswith("STAMP"): stamp(A, C, int(x[5:]))
        else: A(x)
    stamp(A, C, 6)
```

```python
import sys
from asmlib import *
from phases import *
from fe import *
from be import *
import hazcheck
NAME = "sequential_preLN__ssm_conv_h3__glu_gated_glu__prompt_kernel"

def start(A, C, endlabel):
    stamp(A, C, 0)
    A("s_cmp_ge_u32 s2, 256"); A(f"s_cbranch_scc1 {endlabel}")
    A("s_load_dwordx16 s[4:19], s[0:1], 0"); A("s_load_dwordx8 s[20:27], s[0:1], 64"); A("s_load_dwordx2 s[28:29], s[0:1], 96")
    A(f"s_and_b32 s{S_X}, s2, 7"); A(f"s_lshr_b32 s{S_J}, s2, 3")
    S = Stream(A)
    A("s_getpc_b64 s[52:53]"); A.label("L_pc")
    A("s_and_b32 s53, s53, 0xffff"); A("s_mov_b32 s54, L_code_end-L_pc"); A("s_mov_b32 s55, 0x20000")
    A(f"s_lshl_b32 s30, s{S_J}, 7"); A("v_lshlrev_b32 v9, 12, v0")
    S("buffer_load_dword v9, v9, s[52:55], s30 offen", "code")
    A("v_lshrrev_b32 v1, 6, v0")
    p0_addr(A)
    A(f"v_readfirstlane_b32 s{S_WAVE}, v1"); A("v_and_b32 v1, 63, v0"); A("v_lshlrev_b32 v10, 4, v1")
    A("s_waitcnt lgkmcnt(0)")
    epoch_load(A)
    p0_loads(S)
    A(f"s_mul_i32 s79, s{S_X}, 20"); A(f"s_add_u32 s79, s79, s{S_J}")
    A(f"s_cmp_ge_u32 s{S_J}, 20"); A("s_cbranch_scc1 L_noh")
    Sh = Stream(A); conv_hload(Sh, 79)
    A.label("L_noh")
    srd(A, SRD_WS, P_WS, WS_SIZE); p0_staddr(A)
    srd(A, SRD_A, P_WG, NB_W); srd(A, SRD_B, P_WU, NB_W)
    A("v_mul_u32_u24 v3, 52429, v0"); A("v_lshrrev_b32 v3, 18, v3"); A("v_mul_u32_u24 v4, 5, v3"); A("v_sub_u32 v4, v0, v4")
    A(f"s_mul_i32 s50, s{S_J}, 20"); A("v_add_u32 v3, s50, v3"); A("v_mul_u32_u24 v3, 3456, v3"); A("v_lshl_add_u32 v3, v4, 7, v3")
    A(f"s_mul_i32 s50, s{S_X}, 27"); A("s_lshr_b32 s50, s50, 3"); A("s_lshl_b32 s50, s50, 7")
    A("v_cmp_gt_u32 vcc, 100, v0"); A("s_nop 1"); A("v_cndmask_b32 v3, v8, v3, vcc")
    A("s_waitcnt vmcnt(0) lgkmcnt(0)")
    epoch_finish(A)
    stamp(A, C, 1)
    A("s_barrier")
    S = Stream(A)
    p0_compute(S)
    S(f"buffer_load_dword v248, v3, {s(SRD_A,4)}, s50 offen", "tch"); S(f"buffer_load_dword v249, v3, {s(SRD_B,4)}, s50 offen", "tch")
    return S

def build(diag, npf=64):
    C = Ctx(diag)
    A = Asm(); tail = Asm()
    S0 = start(A, C, "L_end")
    stamp_flush(A, C)
    A(f"s_cmp_ge_u32 s{S_J}, 20"); A("s_cbranch_scc1 L_nc")
    S = Stream(A); S.issued = list(S0.issued)
    if diag: A("s_mov_b32 s101, 0")
    w1_setup(A, 166, 167, 164, 165)
    g2_setup(A)
    conv2(S, C, 79, tail, fill={0: w1_dma(1, 164, 165), 1: w1_dma(2, 164, 165), 2: w1_dma(0, 164, 165)})
    A(f"v_mov_b32 v{vWa}, v164"); A(f"v_mov_b32 v{vWb}, v165")
    stamp_flush(A, C)
    A.label("L_g1")
    g1f(S, C, tail, pf=npf > 0)
    stamp_flush(A, C)
    A.label("L_g2")
    g2f(S, C, tail, npf)
    stamps_out(A, C, "s101", 15, "f")
    A.label("L_end"); A("s_endpgm")
    A.label("L_nc")
    A(f"s_cmp_ge_u32 s{S_J}, 27"); A("s_cbranch_scc1 L_nf")
    if diag: A("s_mov_b32 s101, 1")
    A("s_sub_u32 s79, s2, 160"); A("s_min_u32 s79, s79, 53")
    repack(A, Ctx(False, True), 79)
    w1_setup(A, 88, 89); g2_setup(A)
    S = Stream(A)
    A("v_cmp_eq_u32 vcc, 0, v0"); A(f"v_bfrev_b32 v{vFLa}, 1"); A("s_lshl_b32 s30, s79, 2"); A(f"v_cndmask_b32 v{vFLa}, v{vFLa}, 0, vcc")
    A(f"s_add_u32 s30, s30, {FL_W2}")
    A("s_waitcnt vmcnt(0)"); A("s_barrier")
    A(f"buffer_store_dword v{vTag}, v{vFLa}, {s(SRD_WS,4)}, s30 offen sc1")
    stamp(A, C, 2)
    for qd in range(3): S.extend(w1_dma(qd))
    A("s_waitcnt vmcnt(0)")
    stamp(A, C, 3); stamp_flush(A, C)
    A("s_branch L_g1")
    A.label("L_nf")
    if diag: A("s_mov_b32 s101, 3")
    A(f"s_cmp_eq_u32 s{S_J}, 31"); A("s_cbranch_scc1 L_ms")
    if diag: A("s_mov_b32 s101, 2")
    S = Stream(A); S.issued = list(S0.issued)
    A(f"s_lshl_b32 s79, s{S_X}, 2"); A(f"s_add_u32 s79, s79, s{S_J}"); A("s_sub_u32 s79, s79, 27")
    r_xload(S, 79)
    rworker(S, C, 79, tail)
    stamp_flush(A, C)
    A.label("L_ms")
    A("s_waitcnt vmcnt(0)")
    S = Stream(A)
    g2_setup(A)
    S.extend(w2_wait(S, tail, "msw2"))
    S.extend(w2load(0, npf // 2)); A("s_waitcnt vmcnt(16)"); S.extend(w2load(npf // 2, npf))
    A(f"v_bfrev_b32 v{vFLa}, 1"); A("s_mov_b32 s57, 0"); A("s_mov_b32 s58, 0")
    S.extend(hh_polladdr(88)); S.extend(hh_poll(0, vPoll))
    A("s_waitcnt vmcnt(0)")
    A("s_branch L_g2")
    A.lines += tail.lines
    A.label("L_code_end")
    A.lines = hazcheck.autopad(A.lines, "f")
    errs = hazcheck.check(A.lines, "f")
    assert not errs
    txt = module([], [(NAME, A, 256, 256)])
    return "; @launch grid=(256,1,1) block=(256,1,1) lds=163840\n" + txt

if __name__ == "__main__":
    open("f_diag.s", "w").write(build(True))
    open("f.s", "w").write(build(False))
```

```python
import re

REG = re.compile(r"^(-?)(abs\()?([vas])(\d+|\[(\d+):(\d+)\])\)?$")
TRANS = ("v_exp_f32", "v_log_f32", "v_rcp_f32", "v_rsq_f32", "v_sqrt_f32", "v_sin_f32", "v_cos_f32", "v_rcp_iflag_f32")

def regs(tok):
    tok = tok.strip()
    if tok in ("vcc",): return {("s", "vcc")}
    if tok in ("m0",): return {("s", "m0")}
    if tok in ("exec",): return {("s", "exec")}
    m = REG.match(tok)
    if not m: return set()
    k = m.group(3)
    if m.group(5) is not None:
        return {(k, i) for i in range(int(m.group(5)), int(m.group(6)) + 1)}
    return {(k, int(m.group(4)))}

class I:
    pass

def parse(line):
    line = line.split(";")[0].strip()
    if not line or line.endswith(":") or line.startswith("."): return None
    parts = line.split(None, 1)
    op = parts[0]; rest = parts[1] if len(parts) > 1 else ""
    toks = [t.strip() for t in rest.split(",")] if rest else []
    mods = ""
    if toks:
        rest2 = re.sub(r"(op_sel|op_sel_hi|neg_lo|neg_hi|quad_perm):\[[^\]]*\]", lambda m: m.group(0).replace(",", "|"), rest)
        toks = [t.strip() for t in rest2.split(",")]
        last = toks[-1].split()
        toks[-1] = last[0] if last else ""
        mods = " ".join(last[1:])
    ins = I(); ins.op = op; ins.line = line; ins.mods = mods; ins.toks = toks
    R = [regs(t) for t in toks]
    U = lambda L: set().union(*L) if L else set()
    ins.kind = "other"; ins.w = set(); ins.r = set(); ins.srcC = set(); ins.srcAB = set(); ins.data = set()
    if op.startswith("v_mfma"):
        ins.kind = "mfma"; ins.w = R[0]; ins.srcAB = R[1] | R[2]; ins.srcC = R[3]; ins.r = ins.srcAB | ins.srcC
        ins.passes = 8 if "32x32x16" in op else 4
    elif op.startswith("buffer_") or op.startswith("global_"):
        ins.kind = "vmem"
        if "lds" in mods.split() or op.startswith("global_load_lds"):
            ins.r = U(R) | {("s", "m0")}; ins.dma = True
        elif "load" in op:
            ins.w = R[0]; ins.r = U(R[1:])
        elif "atomic" in op:
            ins.r = U(R)
            if "sc0" in mods.split(): ins.w = R[0]
        elif "store" in op:
            ins.r = U(R)
            ins.data = R[0] if op.startswith("buffer_") else R[1]
            ins.wide = ("x3" in op or "x4" in op)
        else:
            ins.r = U(R)
    elif op.startswith("ds_"):
        ins.kind = "ds"
        if "read" in op or "bpermute" in op or "permute" in op or "swizzle" in op:
            ins.w = R[0]; ins.r = U(R[1:])
            if "d16" in op: ins.r |= R[0]
        else:
            ins.r = U(R)
    elif op.startswith("s_load") or op.startswith("s_memtime") or op.startswith("s_memrealtime"):
        ins.kind = "smem"; ins.w = R[0]; ins.r = U(R[1:])
    elif op.startswith("s_waitcnt"):
        ins.kind = "wait"
        m = re.search(r"vmcnt\((\d+)\)", line); ins.vm = int(m.group(1)) if m else None
        m = re.search(r"lgkmcnt\((\d+)\)", line); ins.lg = int(m.group(1)) if m else None
    elif op == "s_nop":
        ins.kind = "nop"; ins.n = int(toks[0], 0) + 1
    elif op.startswith("s_cmp") or op.startswith("s_bitcmp"):
        ins.kind = "salu"; ins.r = U(R)
    elif op.startswith("s_cbranch") or op in ("s_branch", "s_barrier", "s_endpgm", "s_sleep", "s_setprio"):
        ins.kind = "ctl"
        if "vcc" in op: ins.r = {("s", "vcc")}
    elif op.startswith("s_"):
        ins.kind = "salu"; ins.w = R[0] if R else set(); ins.r = U(R[1:])
        if "saveexec" in op: ins.w = ins.w | {("s", "exec")}
        if op in ("s_addk_i32", "s_mulk_i32"): ins.r |= R[0]
    elif op.startswith("v_"):
        ins.kind = "valu"
        ins.w = R[0]; ins.r = U(R[1:])
        if "_co_" in op: ins.w = R[0] | R[1]; ins.r = U(R[2:])
        if op.startswith("v_fmac") or op.startswith("v_dot2c") or op.startswith("v_writelane"): ins.r |= R[0]
        ins.dpp = "_dpp" in op
        if ins.dpp: ins.r |= R[0]
        ins.perm = op.startswith("v_permlane")
        if ins.perm: ins.w = R[0] | R[1]; ins.r = R[0] | R[1]
        ins.trans = any(op.startswith(t) for t in TRANS)
        ins.rdl = op.startswith("v_readlane") or op.startswith("v_readfirstlane")
        ins.sdwa = "_sdwa" in op
    else:
        raise ValueError("unknown op " + line)
    return ins

def autopad(lines, name=""):
    out = []
    check(lines, name, verbose=False, fix=out)
    isM = lambda l: l.startswith("v_mfma")
    res = list(out); i = 0
    while i < len(res):
        l = res[i]
        if l.startswith("s_nop") and l.endswith(";pad") and int(l.split()[1]) >= 1 and isM(res[i-1]):
            rem = int(l.split()[1]); j = i - 1; trial = list(res)
            while rem > 0 and isM(trial[j]) and isM(trial[j-1]):
                k = min(rem, 3); trial.insert(j, f"s_nop {k-1}"); rem -= k; j -= 1
            added = len(trial) - len(res)
            if added:
                trial[i + added] = f"s_nop {rem}"
                lo = max(0, i - 60)
                if not [e for e in check(trial[lo:i + added + 30], name, verbose=False) if " needs " in e]:
                    res = trial; i += added
        i += 1
    return res

def check(lines, name="", verbose=True, fix=None):
    errs = []
    prog = []
    for l in lines:
        p = parse(l)
        if p is None:
            p = I(); p.kind = "label"; p.line = l
        p.raw = l
        prog.append(p)
    pos = 0
    hist = []
    vmq = []; lgq = []; smem_pending = []
    def err(ins, msg):
        errs.append(f"[{name}] {msg}: {ins.line}")
    for ins in prog:
        if ins.kind == "label":
            if fix is not None: fix.append(ins.raw)
            continue
        short = 0
        if ins.kind == "wait":
            if ins.vm is not None:
                while len(vmq) > ins.vm: vmq.pop(0)
            if ins.lg is not None:
                if any(q.kind == "smem" for q in lgq):
                    if ins.lg == 0: lgq.clear()
                else:
                    while len(lgq) > ins.lg: lgq.pop(0)
        touch = ins.r | ins.w
        for q in vmq + lgq:
            if q.w & touch:
                if (q.w & ins.r) or not (ins.kind == q.kind and ins.kind != "smem"):
                    err(ins, f"uses reg with load in flight ({q.line})")
        for (p, h) in reversed(hist):
            d = pos - p
            if d >= 20: break
            need = 0; why = ""
            vw = {x for x in h.w if x[0] in "va"}; sw = {x for x in h.w if x[0] == "s"}
            if h.kind == "valu":
                if ins.kind == "mfma" and vw & ins.r: need, why = 2, "valu->mfma"
                if ins.kind == "valu":
                    if h.trans and not ins.trans and vw & ins.r: need, why = max(need, 1), "trans->valu"
                    if ins.dpp and vw & ins.r: need, why = 2, "valu->dpp"
                    if ins.perm and vw & ins.r: need, why = 2, "valu->permlane"
                    if ins.rdl and vw & ins.r: need, why = max(need, 1), "valu->readlane"
                    if sw & ins.r: need, why = 2, "valu sgpr->valu"
                    if sw & ins.r and (ins.op.startswith("v_readlane") or ins.op.startswith("v_writelane")): need = 4
                    if h.sdwa and vw & ins.r: need, why = max(need, 1), "sdwa->valu"
                if ins.kind == "vmem" and sw & ins.r: need, why = 5, "valu sgpr->vmem"
                if ins.kind in ("salu", "ctl") and sw & ins.r: need, why = 1, "valu sgpr->salu(pad)"
            if h.kind == "mfma":
                big = h.passes == 8
                if ins.kind == "mfma":
                    if h.w & ins.srcAB: need, why = (12 if big else 8), "mfma->mfma AB"
                    elif h.w & ins.srcC and (h.w != ins.srcC or h.passes != ins.passes): need, why = (10 if big else 6), "mfma->mfma C overlap"
                    elif h.w & ins.w and h.w != ins.srcC: need, why = (10 if big else 6), "mfma->mfma WAW"
                elif ins.kind in ("valu", "vmem", "ds") and h.w & touch: need, why = (12 if big else 8), "mfma D->use"
                elif ins.kind == "valu" and h.srcC & ins.w: need, why = (7 if big else 3), "mfma C WAR"
            if h.kind == "salu" and ("s", "m0") in h.w and ins.kind == "vmem" and getattr(ins, "dma", False): need, why = 1, "m0->dma"
            if h.kind == "vmem" and getattr(h, "wide", False) and h.data & ins.w: need, why = 2, "wide store WAR"
            if d < need:
                short = max(short, need - d)
                if fix is None: err(ins, f"{why} needs {need} got {d} (after {h.line})")
        if fix is not None:
            if short:
                fix.append(f"s_nop {short-1} ;pad"); pos += short
            fix.append(ins.raw)
        if ins.kind == "vmem": vmq.append(ins)
        if ins.kind in ("ds", "smem") and not ins.op.startswith("s_mem"): lgq.append(ins)
        if len(vmq) > 63: err(ins, "more than 63 vmem outstanding (count saturates)")
        n = ins.n if ins.kind == "nop" else 1
        pos += n
        hist.append((pos, ins))
        if len(hist) > 40: hist.pop(0)
    if verbose:
        for e in errs[:40]: print(e)
    return errs
```

```python
from asmlib import *

WS_YP  = 0
WS_LNF = 4 << 20
WS_HR  = 8 << 20
WS_HHF = 12 << 20
WS_W2F = 20 << 20
WS_TS  = 200 << 20
WS_SIZE = 256 << 20
OOB = 0x80000000
NB_SD = 2048 * 640 * 2
NB_W = 640 * 1728 * 2

P_Q, P_K, P_V, P_SH, P_SK, P_SD, P_BX, P_WG, P_WU, P_WD, P_OUT, P_DBG, P_WS = range(4, 30, 2)
S_WAVE = 3
SRD_A, SRD_B, SRD_C, SRD_WS = 32, 36, 40, 44
S_TS = 80

class Ctx:
    def __init__(self, diag=False, sc1=False):
        self.diag = bool(diag); self.prev = None; self.want = diag if isinstance(diag, str) else '.*'; self.names = []
        self.sc = " sc1" if sc1 else ""

def prologue(A, nwg, endlabel):
    A(f"s_cmp_ge_u32 s2, {nwg}")
    A(f"s_cbranch_scc1 {endlabel}")
    A("s_load_dwordx16 s[4:19], s[0:1], 0")
    A("s_load_dwordx8 s[20:27], s[0:1], 64")
    A("s_load_dwordx2 s[28:29], s[0:1], 96")
    A("v_lshrrev_b32 v1, 6, v0")
    A("s_nop 0")
    A(f"v_readfirstlane_b32 s{S_WAVE}, v1")
    A("v_and_b32 v1, 63, v0")
    A("s_waitcnt lgkmcnt(0)")
    srd(A, SRD_WS, P_WS, WS_SIZE)

def stamp(A, C, idx):
    if not C.diag: return
    if isinstance(idx, str):
        import re
        if not re.fullmatch(C.want, idx): return
        if idx not in C.names: C.names.append(idx)
        idx = C.names.index(idx) + 1
        assert idx <= 14, C.names
    if idx == 0:
        A(f"s_memrealtime s[{S_TS}:{S_TS+1}]"); C.prev = None; return
    if idx == -1:
        for i in range(1, 15): A(f"s_mov_b32 s{S_TS+i}, 0")
        return
    if C.prev is not None: A(f"s_mov_b32 s{S_TS+C.prev}, s16")
    A("s_memrealtime s[16:17]"); C.prev = idx

def stamp_flush(A, C):
    if C.diag and C.prev is not None:
        A("s_waitcnt lgkmcnt(0)"); A(f"s_mov_b32 s{S_TS+C.prev}, s16"); C.prev = None

def stamps_out(A, C, kidx, n, tag):
    if not C.diag: return
    stamp_flush(A, C)
    A("s_waitcnt lgkmcnt(0) vmcnt(0)")
    A(f"s_cmp_lg_u32 s{S_WAVE}, 0")
    A(f"s_cbranch_scc1 L_nost_{tag}")
    A("s_lshl_b32 s30, s2, 6")
    if isinstance(kidx, int): A(f"s_add_u32 s30, s30, {WS_TS + kidx * 65536}")
    else:
        A(f"s_lshl_b32 s31, {kidx}, 16"); A("s_add_u32 s30, s30, s31"); A(f"s_add_u32 s30, s30, {WS_TS}")
    A("v_mov_b32 v2, 0")
    A("s_mov_b64 exec, 1")
    for i in range(n):
        A(f"v_mov_b32 v3, s{S_TS+i}")
        A(f"buffer_store_dword v3, v2, {s(SRD_WS,4)}, s30 offen offset:{4*i}")
        A("s_nop 0")
    A("s_mov_b64 exec, -1")
    A.label(f"L_nost_{tag}")

def place(mf, fillers, cap=2):
    n = len(mf)
    flat = []
    for sq in fillers:
        for it in sq["items"]:
            flat.append((it, sq))
    gaps = [[] for _ in range(n)]
    cost = [0] * n
    starts = {}
    endg = n
    for idx in range(len(fillers) - 1, -1, -1):
        sq = fillers[idx]
        tot = sum(c for _, c in sq["items"])
        hi = min(sq.get("hi", n), endg)
        st = max(hi - (tot + cap - 1) // cap, 0)
        starts[idx] = max(sq.get("lo", 0), st if sq.get("align", "l") == "r" else 0)
        endg = st
    g = 0
    for idx, sq in enumerate(fillers):
        g = max(g, min(starts[idx], n - 1))
        for (t, c) in sq["items"]:
            while g < n - 1 and cost[g] + c > cap and cost[g] > 0:
                g += 1
            gaps[g].append(t); cost[g] += c
    out = []
    for i in range(n):
        out.append(mf[i]); out += gaps[i]
    return out

CV_CS = 4576
CV_XR = 0
CV_YS = 18304
CV_CB = 20608
CV_HC = 24704
CV_LDS = CV_HC + 4 * 8320

def conv(A, C, sG, npre=24):
    vKV, vXW, vXR, vHA, vYW, vYR, vYG, vCR, vT0, vT1, vT2 = range(2, 13)
    vW1, vW3 = 16, 20
    vAD = 24
    vACC = 28
    vB = 60
    vK = 124
    vH = 60
    vE = 76
    vHL = 156
    vCc = 160
    vt = 164
    vY = 180
    sW = 48
    sD = 56
    sW0, sW2 = 58, 62
    sT = 66
    srd(A, SRD_A, P_K, NB_SD); srd(A, SRD_B, P_V, NB_SD); srd(A, SRD_C, P_SK, NB_SD)
    A(f"s_lshl_b32 s{sT}, s{sG}, 5")
    A(f"s_load_dwordx8 {s(sW,8)}, {s(P_SH,2)}, s{sT}")
    A(f"s_lshl_b32 s{sT+1}, s{sG}, 3")
    A(f"s_load_dwordx2 {s(sD,2)}, {s(P_SD,2)}, s{sT+1}")
    A(f"s_lshl_b32 s{sT+2}, s{sG}, 2"); A(f"s_add_u32 s{sT+2}, s{sT+2}, s{S_WAVE}"); A(f"s_lshl_b32 s{sT+2}, s{sT+2}, 12")
    A(f"v_lshlrev_b32 v{vT0}, 4, v1")
    for i in range(4):
        A(f"buffer_load_dwordx4 {v(vH+4*i,4)}, v{vT0}, {s(SRD_C,4)}, s{sT+2} offen offset:{1024*i}")
    A(f"v_lshrrev_b32 v{vT1}, 3, v1"); A(f"v_lshlrev_b32 v{vT1}, 8, v{vT1}")
    A(f"v_and_b32 v{vT2}, 7, v1")
    A(f"s_lshl_b32 s{sT+3}, s{S_WAVE}, 6"); A(f"s_sub_u32 s{sT+3}, s{sT+3}, 3")
    A(f"v_add3_u32 v{vT1}, v{vT1}, v{vT2}, s{sT+3}")
    A(f"v_cmp_gt_u32 vcc, 3, v{vT2}")
    A(f"v_cmp_le_i32 s[30:31], 0, v{vT1}")
    A(f"v_mul_u32_u24 v{vT1}, 1280, v{vT1}")
    A(f"s_and_b64 vcc, vcc, s[30:31]")
    A(f"v_mov_b32 v{vT2}, {OOB}")
    A(f"v_cndmask_b32 v{vT1}, v{vT2}, v{vT1}, vcc")
    A(f"buffer_load_dwordx2 {v(vHL,2)}, v{vT1}, {s(SRD_A,4)}, s{sT+1} offen")
    A(f"v_mul_u32_u24 v{vKV}, 1280, v0")
    for nu in range(8):
        A(f"buffer_load_dwordx2 {v(vK+4*nu,2)}, v{vKV}, {s(SRD_A,4)}, s{sT+1} offen")
        A(f"buffer_load_dwordx2 {v(vK+4*nu+2,2)}, v{vKV}, {s(SRD_B,4)}, s{sT+1} offen")
        if nu < 7: A(f"s_add_u32 s{sT+1}, s{sT+1}, {256*1280}")
    A(f"v_sub_u32 v{vXW}, 255, v0"); A(f"v_lshlrev_b32 v{vXW}, 1, v{vXW}")
    if CV_XR: A(f"v_add_u32 v{vXW}, {CV_XR}, v{vXW}")
    A(f"v_and_b32 v{vT1}, 15, v1")
    A(f"v_lshrrev_b32 v{vT2}, 4, v1")
    A(f"s_mul_i32 s{sT+3}, s{S_WAVE}, {CV_CS}"); A(f"s_add_u32 s{sT+3}, s{sT+3}, {CV_XR+480}")
    A(f"v_lshlrev_b32 v{vXR}, 5, v{vT1}"); A(f"v_sub_u32 v{vXR}, s{sT+3}, v{vXR}")
    A(f"v_lshl_add_u32 v{vXR}, v{vT2}, 4, v{vXR}")
    A(f"s_mul_i32 s{sT+4}, s{S_WAVE}, 8320"); A(f"s_add_u32 s{sT+4}, s{sT+4}, {CV_HC}")
    A(f"v_and_b32 v{vHA}, 1, v1"); A(f"v_mul_u32_u24 v{vHA}, 4160, v{vHA}")
    A(f"v_lshrrev_b32 v{vYW}, 1, v{vT1}"); A(f"v_lshl_add_u32 v{vHA}, v{vYW}, 2, v{vHA}")
    A(f"v_lshl_add_u32 v{vHA}, v{vT2}, 4, v{vHA}"); A(f"v_add3_u32 v{vHA}, v{vHA}, s{sT+4}, 4")
    A(f"s_and_b32 s{sT+5}, s{S_WAVE}, 1"); A(f"s_mul_i32 s{sT+5}, s{sT+5}, 520")
    A(f"s_lshr_b32 s{sT+6}, s{S_WAVE}, 1"); A(f"s_mul_i32 s{sT+6}, s{sT+6}, 1152")
    A(f"s_add_u32 s{sT+5}, s{sT+5}, s{sT+6}"); A(f"s_add_u32 s{sT+5}, s{sT+5}, {CV_YS}")
    A(f"v_lshlrev_b32 v{vYW}, 5, v{vT1}"); A(f"v_lshl_add_u32 v{vYW}, v{vT2}, 3, v{vYW}"); A(f"v_add_u32 v{vYW}, s{sT+5}, v{vYW}")
    A(f"v_bfe_u32 v{vYR}, v1, 2, 1"); A(f"v_mul_u32_u24 v{vYR}, 520, v{vYR}")
    A(f"v_bfe_u32 v{vYG}, v1, 3, 1"); A(f"v_mul_u32_u24 v{vYG}, 1152, v{vYG}"); A(f"v_add_u32 v{vYR}, v{vYR}, v{vYG}")
    A(f"v_bfe_u32 v{vYG}, v1, 4, 1"); A(f"v_lshl_add_u32 v{vYR}, v{vYG}, 6, v{vYR}")
    A(f"v_and_b32 v{vYG}, 3, v1"); A(f"v_lshl_add_u32 v{vYR}, v{vYG}, 4, v{vYR}")
    A(f"s_lshl_b32 s{sT+6}, s{S_WAVE}, 7"); A(f"s_add_u32 s{sT+6}, s{sT+6}, {CV_YS}"); A(f"v_add_u32 v{vYR}, s{sT+6}, v{vYR}")
    A(f"v_lshrrev_b32 v{vCR}, 2, v1"); A(f"v_mul_u32_u24 v{vCR}, 10240, v{vCR}"); A(f"v_lshl_add_u32 v{vYG}, v{vYG}, 4, v{vCR}")
    A(f"v_cmp_gt_u32 vcc, 32, v1"); A(f"v_mov_b32 v{vCR}, {OOB}"); A("s_nop 0"); A(f"v_cndmask_b32 v{vYG}, v{vCR}, v{vYG}, vcc")
    sY = sT + 7
    A(f"s_mul_i32 s{sY}, s{S_WAVE}, {8*10240}"); A(f"s_lshl_b32 s{sT+6}, s{sG}, 6"); A(f"s_add_u32 s{sY}, s{sY}, s{sT+6}")
    if WS_YP: A(f"s_add_u32 s{sY}, s{sY}, {WS_YP}")
    A(f"s_lshl_b32 s{sT+6}, s{S_WAVE}, 10"); A(f"s_add_u32 s{sT+6}, s{sT+6}, {CV_CB}")
    A(f"v_min_u32 v{vCR}, 3, v1"); A(f"v_lshlrev_b32 v{vCR}, 4, v{vCR}"); A(f"v_add3_u32 v{vCR}, v{vCR}, s{sT+6}, 48")
    for i in range(4): A(f"v_mov_b32 v{vCc+i}, 0")
    A(f"s_sub_u32 s{sT+3}, s{sT+3}, 480")
    A(f"v_add_u32 v{vt}, s{sT+3}, v{vT0}")
    A("s_mov_b64 exec, 0x3fffffff")
    A(f"ds_write_b128 v{vt}, {v(vCc,4)} offset:4096")
    A("s_mov_b64 exec, -1")
    A(f"v_add_u32 v{vt+1}, s{sT+4}, v{vT0}")
    A("s_mov_b64 exec, 3")
    A(f"ds_write_b128 v{vt+1}, {v(vCc,4)}")
    A(f"ds_write_b128 v{vt+1}, {v(vCc,4)} offset:4160")
    A("s_mov_b64 exec, -1")
    A("s_waitcnt lgkmcnt(0)")
    for c in range(4):
        A(f"s_lshl_b32 s{sW0+c}, s{sW+2*c}, 16")
        A(f"s_and_b32 s30, s{sW+2*c}, 0xffff0000"); A(f"v_mov_b32 v{vW1+c}, s30")
        A(f"s_lshl_b32 s{sW2+c}, s{sW+2*c+1}, 16")
        A(f"s_and_b32 s30, s{sW+2*c+1}, 0xffff0000"); A(f"v_mov_b32 v{vW3+c}, s30")
    A(f"s_lshl_b32 s30, s{S_WAVE}, 4"); A(f"s_lshr_b64 {s(sD,2)}, {s(sD,2)}, s30"); A(f"s_and_b32 s{sD}, s{sD}, 0xffff")
    A(f"v_lshl_add_u32 v{vt+2}, v{vT2}, 3, v{vT1}"); A(f"v_sub_u32 v{vt+2}, 15, v{vt+2}")
    A(f"v_and_b32 v{vt+3}, 1, v{vt+2}"); A(f"v_lshlrev_b32 v{vt+3}, 4, v{vt+3}"); A(f"v_lshlrev_b32 v{vt+3}, v{vt+3}, s{sD}")
    A(f"v_ashrrev_i32 v{vt+2}, 1, v{vt+2}")
    for j in range(4):
        A(f"v_cmp_eq_u32 vcc, {j}, v{vt+2}"); A("s_nop 1"); A(f"v_cndmask_b32 v{vAD+j}, 0, v{vt+3}, vcc")
    A("s_waitcnt vmcnt(17)")
    stamp(A, C, 1)
    for i in range(4):
        A(f"ds_write_b128 v{vt+1}, {v(vH+4*i,4)} offset:{4160+32+1024*i}")
    for i in range(4):
        if i: A(f"v_readlane_b32 s{sT+8+i}, v{vH+4*i-1}, 63")
    A(f"v_mov_b32 v{vt+4}, 0")
    for i in range(1, 4): A(f"v_mov_b32 v{vt+4+i}, s{sT+8+i}")
    for i in range(4):
        A(f"v_mov_b32_dpp v{vt+4+i}, v{vH+4*i+3} wave_shr:1 row_mask:0xf bank_mask:0xf")
    for i in range(4):
        A(f"v_alignbit_b32 v{vE+4*i}, v{vH+4*i}, v{vt+4+i}, 16")
        for j in range(1, 4): A(f"v_alignbit_b32 v{vE+4*i+j}, v{vH+4*i+j}, v{vH+4*i+j-1}, 16")
        A(f"ds_write_b128 v{vt+1}, {v(vE+4*i,4)} offset:{32+1024*i}")
    def aread(m):
        out = []
        if m and m % 16 == 0: out.append(f"v_add_u32 v{vHA}, 1024, v{vHA}")
        o = 16 * (m % 16)
        out.append(f"ds_read2_b32 {a(4*m,2)}, v{vHA} offset0:{o} offset1:{o+1}")
        out.append(f"ds_read2_b32 {a(4*m+2,2)}, v{vHA} offset0:{o+2} offset1:{o+3}")
        return out
    for m in range(8): A.extend(aread(m))
    DP = "wave_shr:1 row_mask:0xf bank_mask:0xf bound_ctrl:0"
    T1, T2, kk, mm, ac = vt, vt + 2, vt + 4, vt + 8, vt + 12
    def shiftconv(kd, cinit):
        o = []
        o += [f"v_mov_b32_dpp v{T1}, v{kd} {DP}", f"v_mov_b32_dpp v{T1+1}, v{kd+1} {DP}"]
        o += [f"v_lshlrev_b32 v{kk}, 16, v{kd}", f"v_and_b32 v{kk+1}, 0xffff0000, v{kd}", f"v_lshlrev_b32 v{kk+2}, 16, v{kd+1}", f"v_and_b32 v{kk+3}, 0xffff0000, v{kd+1}"]
        o += [f"v_mov_b32_dpp v{T2}, v{T1} {DP}", f"v_mov_b32_dpp v{T2+1}, v{T1+1} {DP}"]
        for c in range(4):
            o.append(f"v_fma_f32 v{ac+c}, v{kk+c}, s{sW0+c}, v{vCc+c}" if cinit else f"v_mul_f32 v{ac+c}, s{sW0+c}, v{kk+c}")
        o += [f"v_lshlrev_b32 v{mm}, 16, v{T2}", f"v_and_b32 v{mm+1}, 0xffff0000, v{T2}", f"v_lshlrev_b32 v{mm+2}, 16, v{T2+1}", f"v_and_b32 v{mm+3}, 0xffff0000, v{T2+1}"]
        for c in range(4): o.append(f"v_fmac_f32_dpp v{ac+c}, v{kk+c}, v{vW1+c} {DP}")
        for c in range(4): o.append(f"v_fmac_f32 v{ac+c}, s{sW2+c}, v{mm+c}")
        for c in range(4): o.append(f"v_fmac_f32_dpp v{ac+c}, v{mm+c}, v{vW3+c} {DP}")
        return o
    A("s_waitcnt vmcnt(16)")
    A.extend(shiftconv(vHL, False))
    A(f"v_add_u32 v{T1}, s{sT+6}, v{vT0}")
    A(f"ds_write_b128 v{T1}, {v(ac,4)}")
    for m in range(8, npre): A.extend(aread(m))
    def kvstage(nu, nstores):
        kd = vK + 4 * nu
        o = [f"ds_read_b128 {v(vCc,4)}, v{vCR} offset:{128*nu}", f"s_waitcnt vmcnt({2*(7-nu)+nstores}) lgkmcnt(0)"]
        o += shiftconv(kd, True)
        o += [f"v_lshlrev_b32 v{kk}, 16, v{kd+2}", f"v_and_b32 v{kk+1}, 0xffff0000, v{kd+2}", f"v_lshlrev_b32 v{kk+2}, 16, v{kd+3}", f"v_and_b32 v{kk+3}, 0xffff0000, v{kd+3}"]
        for c in range(4): o.append(f"v_mul_f32 v{ac+c}, v{ac+c}, v{kk+c}")
        o += [f"v_cvt_pk_bf16_f32 v{T1}, v{ac}, v{ac+1}", f"v_cvt_pk_bf16_f32 v{T1+1}, v{ac+2}, v{ac+3}"]
        for c in range(4):
            op = "ds_write_b16_d16_hi" if c & 1 else "ds_write_b16"
            o.append(f"{op} v{vXW}, v{T1+(c>>1)} offset:{c*CV_CS+512*(7-nu)}")
        o += ["s_waitcnt lgkmcnt(0)", "s_barrier"]
        for rho in range(8):
            o.append(f"ds_read_b128 {v(vB+32*(nu&1)+4*rho,4)}, v{vXR} offset:{512*(7-nu)+64*rho}")
        return o
    A.extend(kvstage(0, 0))
    stamp(A, C, 2)
    for nu in range(8):
        bb = vB + 32 * (nu & 1)
        mf = []
        for n in range(nu, 8):
            acc = v(vACC + 4 * n, 4)
            for rho in range(8):
                c = "0" if (nu == 0 and rho == 0) else acc
                mf.append(f"v_mfma_f32_16x16x32_bf16 {acc}, {a(4*(8*(n-nu)+rho),4)}, {v(bb+4*rho,4)}, {c}")
            if n == nu: mf.append(f"v_mfma_f32_16x16x32_bf16 {acc}, {v(vAD,4)}, {v(bb,4)}, {acc}")
        an = vACC + 4 * nu
        pub = [f"v_cvt_pk_bf16_f32 v{vY}, v{an}, v{an+1}", f"v_cvt_pk_bf16_f32 v{vY+1}, v{an+2}, v{an+3}",
               f"ds_write_b64 v{vYW}, {v(vY,2)}", "s_waitcnt lgkmcnt(0)", "s_barrier",
               f"ds_read_b64_tr_b16 {v(vY+2,2)}, v{vYR}", f"ds_read_b64_tr_b16 {v(vY+4,2)}, v{vYR} offset:8"]
        pub2 = ["s_waitcnt lgkmcnt(0)", f"buffer_store_dwordx4 {v(vY+2,4)}, v{vYG}, {s(SRD_WS,4)}, s{sY} offen{C.sc}", f"s_add_u32 s{sY}, s{sY}, {32*10240}"]
        A("s_waitcnt lgkmcnt(4)")
        head = mf[:4] + ["s_waitcnt lgkmcnt(0)"] + mf[4:9]
        rest = mf[9:]
        A.extend(head)
        seqs = []
        if nu == 0:
            m_next = npre
            out = []
            first = True
            for n in range(1, 8):
                ch = rest[8*(n-1):8*n]
                fl = []
                if n == 1: fl.append(dict(items=[(x, 1) for x in pub], lo=3))
                if n == 2: fl.append(dict(items=[(x, 1) for x in pub2], lo=0))
                rd = []
                tgt = min(64, max(8 * (n + 2), m_next + 8)) if m_next < 64 else 64
                while m_next < tgt: rd += aread(m_next); m_next += 1
                if rd: fl.append(dict(items=[(x, 1) for x in rd], lo=0))
                if n == 5: kv1 = kvstage(1, 1); parts = [kv1[:18], kv1[18:36], kv1[36:]]
                if n >= 5: fl.append(dict(items=[(x, 1) for x in parts[n-5]], lo=0))
                if 8 * (n + 1) > npre: out.append("s_waitcnt lgkmcnt(0)")
                out += place(ch, fl, cap=3)
            A.extend(out)
        elif rest:
            seqs.append(dict(items=[(x, 1) for x in pub], lo=3))
            seqs.append(dict(items=[(x, 1) for x in pub2], lo=min(10, len(rest) - 1)))
            seqs.append(dict(items=[(x, 1) for x in kvstage(nu + 1, nu + 1)], align="r", hi=len(rest) - 3))
            A.extend(place(rest, seqs, cap=2))
        else:
            A.extend(pub + pub2)
        if nu in (0, 3): stamp(A, C, 3 if nu == 0 else 4)
    stamp(A, C, 5)

def repack(A, C, sK):
    srd(A, SRD_A, P_WD, NB_W)
    A(f"v_lshlrev_b32 v2, 4, v1")
    A(f"s_mul_i32 s48, s{sK}, 40960"); A(f"s_mul_i32 s49, s{S_WAVE}, 10240"); A("s_add_u32 s48, s48, s49")
    for i in range(10):
        if i % 4 == 0:
            A(f"s_add_u32 m0, s49, {1024*i}"); A(f"s_add_u32 s50, s48, {1024*i}")
        A(f"buffer_load_dwordx4 v2, {s(SRD_A,4)}, s50 offen offset:{1024*(i%4)} lds")
    A("v_lshrrev_b32 v3, 4, v1"); A("v_bfe_u32 v4, v1, 2, 2"); A("v_lshl_add_u32 v3, v3, 3, v4"); A("v_mul_u32_u24 v3, 1280, v3")
    A("v_and_b32 v4, 3, v1"); A("v_lshl_add_u32 v3, v4, 3, v3")
    A(f"s_mul_i32 s50, s{S_WAVE}, 320"); A("v_add_u32 v3, s50, v3")
    A(f"s_mul_i32 s50, s{S_WAVE}, 108"); A(f"s_add_u32 s50, s50, s{sK}"); A("s_mul_i32 s50, s50, 5120"); A(f"s_add_u32 s50, s50, {WS_W2F}")
    A("s_waitcnt vmcnt(0)"); A("s_barrier")
    for i in range(10):
        A(f"ds_read_b64_tr_b16 {v(8+4*i,2)}, v3 offset:{32*i}")
        A(f"ds_read_b64_tr_b16 {v(10+4*i,2)}, v3 offset:{32*i+5120}")
    A("s_waitcnt lgkmcnt(0)")
    for i in range(10):
        if i == 4: A("s_add_u32 s50, s50, 4096")
        if i == 5: A(f"s_add_u32 s50, s50, {54*5120-4096}")
        if i == 9: A("s_add_u32 s50, s50, 4096")
        A(f"buffer_store_dwordx4 {v(8+4*i,4)}, v2, {s(SRD_WS,4)}, s50 offen offset:{1024*((i%5)%4)}{C.sc}")

def unpack(dst, src, n):
    o = []
    for i in range(n):
        o.append(f"v_lshlrev_b32 v{dst+2*i}, 16, v{src+i}")
        o.append(f"v_and_b32 v{dst+2*i+1}, 0xffff0000, v{src+i}")
    return o

def rnd_bf16(r):
    return [f"v_cvt_pk_bf16_f32 v{r}, v{r}, v{r}", f"v_and_b32 v{r}, 0xffff0000, v{r}"]

def rowstats(A, xs, vS, vLW, vLR, ldsoff):
    A(f"v_pk_add_f32 {v(vS,2)}, {v(xs,2)}, {v(xs+2,2)}")
    A(f"v_pk_mul_f32 {v(vS+2,2)}, {v(xs,2)}, {v(xs,2)}")
    A(f"v_pk_fma_f32 {v(vS+2,2)}, {v(xs+2,2)}, {v(xs+2,2)}, {v(vS+2,2)}")
    for i in range(2, 10):
        A(f"v_pk_add_f32 {v(vS,2)}, {v(vS,2)}, {v(xs+2*i,2)}")
        A(f"v_pk_fma_f32 {v(vS+2,2)}, {v(xs+2*i,2)}, {v(xs+2*i,2)}, {v(vS+2,2)}")
    A(f"v_add_f32 v{vS}, v{vS}, v{vS+1}")
    A(f"v_add_f32 v{vS+1}, v{vS+2}, v{vS+3}")
    for j in range(2): A(f"v_add_f32_dpp v{vS+j}, v{vS+j}, v{vS+j} row_ror:8 row_mask:0xf bank_mask:0xf")
    for op in ("v_permlane16_swap_b32", "v_permlane32_swap_b32"):
        for j in range(2): A(f"v_mov_b32 v{vS+2+j}, v{vS+j}")
        for j in range(2): A(f"{op} v{vS+j}, v{vS+2+j}")
        for j in range(2): A(f"v_add_f32 v{vS+j}, v{vS+j}, v{vS+2+j}")
    A(f"ds_write_b64 v{vLW}, {v(vS,2)} offset:{ldsoff}")
    A("s_waitcnt lgkmcnt(0)"); A("s_barrier")
    A(f"ds_read_b128 {v(vS+4,4)}, v{vLR} offset:{ldsoff}")
    A(f"ds_read_b128 {v(vS+8,4)}, v{vLR} offset:{ldsoff+16}")
    A("s_waitcnt lgkmcnt(0)")
    A(f"v_pk_add_f32 {v(vS+4,2)}, {v(vS+4,2)}, {v(vS+6,2)}")
    A(f"v_pk_add_f32 {v(vS+8,2)}, {v(vS+8,2)}, {v(vS+10,2)}")
    A(f"v_pk_add_f32 {v(vS,2)}, {v(vS+4,2)}, {v(vS+8,2)}")
    import struct
    inv = struct.unpack("<I", struct.pack("<f", 1.0 / 640))[0]
    eps = struct.unpack("<I", struct.pack("<f", 1e-5))[0]
    A(f"v_mul_f32 v{vS}, {inv:#x}, v{vS}")
    A(f"v_mul_f32 v{vS+1}, {inv:#x}, v{vS+1}")
    A(f"v_fma_f32 v{vS+1}, -v{vS}, v{vS}, v{vS+1}")
    A(f"v_max_f32 v{vS+1}, 0, v{vS+1}")
    A(f"v_cvt_pk_bf16_f32 v{vS+1}, v{vS}, v{vS+1}")
    A(f"v_lshlrev_b32 v{vS}, 16, v{vS+1}")
    A(f"v_and_b32 v{vS+1}, 0xffff0000, v{vS+1}")
    A(f"v_add_f32 v{vS+1}, {eps:#x}, v{vS+1}")
    A.extend(rnd_bf16(vS + 1))
    A(f"v_sqrt_f32 v{vS+1}, v{vS+1}")
    A.extend(rnd_bf16(vS + 1))
    A(f"v_rcp_f32 v{vS+1}, v{vS+1}")

def rphase(A, C, sT):
    vYA, vYB, vXA, vXB, vLA, vLB, vHB, vLW, vLR, vr, vq = range(2, 13)
    vXr = 16
    vYr = 28
    vX = 40; vQ = 60; vYf = 80; vS = 100; vP = 112; vP2 = 124
    srd(A, SRD_A, P_Q, NB_SD)
    A(f"v_lshrrev_b32 v{vq}, 3, v0")
    A(f"v_and_b32 v{vLR}, 7, v1")
    A(f"v_lshrrev_b32 v{vr}, 1, v{vLR}"); A(f"v_and_b32 v{vXA}, 1, v1"); A(f"v_lshl_add_u32 v{vr}, v{vXA}, 2, v{vr}")
    A(f"v_mul_u32_u24 v{vXB}, 1280, v{vr}")
    A(f"v_lshl_add_u32 v{vXA}, v{vq}, 4, v{vXB}")
    A(f"v_lshl_add_u32 v{vXB}, v{vq}, 3, v{vXB}")
    A(f"s_mul_i32 s48, s{sT}, 10240")
    A(f"buffer_load_dwordx4 {v(vXr,4)}, v{vXA}, {s(SRD_A,4)}, s48 offen")
    A(f"buffer_load_dwordx4 {v(vXr+4,4)}, v{vXA}, {s(SRD_A,4)}, s48 offen offset:512")
    A(f"buffer_load_dwordx2 {v(vXr+8,2)}, v{vXB}, {s(SRD_A,4)}, s48 offen offset:1024")
    A(f"v_lshlrev_b32 v{vYB}, 3, v{vLR}")
    A(f"v_lshl_add_u32 v{vYA}, v{vq}, 7, v{vYB}")
    A(f"v_lshl_add_u32 v{vYB}, v{vq}, 6, v{vYB}")
    A(f"s_add_u32 s49, s48, {WS_YP}"); A(f"s_add_u32 s50, s48, {WS_YP+4096}"); A(f"s_add_u32 s51, s48, {WS_YP+8192}")
    A(f"buffer_load_dwordx2 {v(vYr,2)}, v{vYA}, {s(SRD_WS,4)}, s49 offen{C.sc}")
    A(f"buffer_load_dwordx2 {v(vYr+2,2)}, v{vYA}, {s(SRD_WS,4)}, s49 offen offset:64{C.sc}")
    A(f"buffer_load_dwordx2 {v(vYr+4,2)}, v{vYA}, {s(SRD_WS,4)}, s50 offen{C.sc}")
    A(f"buffer_load_dwordx2 {v(vYr+6,2)}, v{vYA}, {s(SRD_WS,4)}, s50 offen offset:64{C.sc}")
    A(f"buffer_load_dwordx2 {v(vYr+8,2)}, v{vYB}, {s(SRD_WS,4)}, s51 offen{C.sc}")
    A(f"v_lshlrev_b32 v{vLB}, 4, v{vr}")
    A(f"v_lshl_add_u32 v{vLA}, v{vq}, 8, v{vLB}")
    A(f"v_lshl_add_u32 v{vLB}, v{vq}, 7, v{vLB}")
    A(f"v_and_b32 v{vLW}, 8, v1"); A(f"v_cmp_eq_u32 vcc, 0, v{vLW}"); A(f"v_mov_b32 v{vLW}, {OOB}"); A("s_nop 0")
    A(f"v_cndmask_b32 v{vLB}, v{vLW}, v{vLB}, vcc"); A(f"v_cndmask_b32 v{vHB}, v{vLW}, v{vXB}, vcc")
    A(f"v_lshlrev_b32 v{vLR}, 5, v{vLR}")
    A(f"s_lshl_b32 s52, s{S_WAVE}, 3"); A(f"v_add_u32 v{vLW}, s52, v{vLR}")
    A(f"s_lshr_b32 s52, s{sT}, 1"); A("s_mul_i32 s52, s52, 20480"); A(f"s_and_b32 s53, s{sT}, 1"); A("s_lshl_b32 s53, s53, 7")
    A("s_add_u32 s52, s52, s53"); A(f"s_add_u32 s52, s52, {WS_LNF}"); A("s_add_u32 s53, s52, 8192"); A("s_add_u32 s54, s52, 16384")
    A(f"s_add_u32 s55, s48, {WS_HR}")
    A("s_waitcnt vmcnt(5)")
    stamp(A, C, 1)
    A.extend(unpack(vX, vXr, 10))
    rowstats(A, vX, vS, vLW, vLR, 0)
    A(f"v_mul_f32 v{vS}, v{vS}, v{vS+1}")
    for i in range(10):
        A(f"v_pk_fma_f32 {v(vQ+2*i,2)}, {v(vX+2*i,2)}, {v(vS,2)}, {v(vS,2)} op_sel:[0,1,0] op_sel_hi:[1,1,0] neg_lo:[0,0,1] neg_hi:[0,0,1]")
    A("s_waitcnt vmcnt(0)")
    stamp(A, C, 2)
    A.extend(unpack(vYf, vYr, 10))
    for i in range(10):
        A(f"v_pk_fma_f32 {v(vX+2*i,2)}, {v(vQ+2*i,2)}, {v(vYf+2*i,2)}, {v(vX+2*i,2)}")
    def packstore(P, src, va, vb, s0, o0, s1, o1, s2, o2):
        for i in range(10): A(f"v_cvt_pk_bf16_f32 v{P+i}, v{src+2*i}, v{src+2*i+1}")
        A(f"buffer_store_dwordx4 {v(P,4)}, v{va}, {s(SRD_WS,4)}, s{s0} offen offset:{o0}{C.sc}")
        A(f"buffer_store_dwordx4 {v(P+4,4)}, v{va}, {s(SRD_WS,4)}, s{s1} offen offset:{o1}{C.sc}")
        for j in range(2): A(f"v_mov_b32_dpp v{P+10+j}, v{P+8+j} row_shl:8 row_mask:0xf bank_mask:0xf bound_ctrl:0")
        A(f"buffer_store_dwordx4 {v(P+8,4)}, v{vb}, {s(SRD_WS,4)}, s{s2} offen offset:{o2}{C.sc}")
    rowstats(A, vX, vS, vLW, vLR, 256)
    A(f"v_mul_f32 v{vS}, v{vS}, v{vS+1}")
    for i in range(10):
        A(f"v_pk_fma_f32 {v(vQ+2*i,2)}, {v(vX+2*i,2)}, {v(vS,2)}, {v(vS,2)} op_sel:[0,1,0] op_sel_hi:[1,1,0] neg_lo:[0,0,1] neg_hi:[0,0,1]")
    packstore(vP, vQ, vLA, vLB, 52, 0, 53, 0, 54, 0)
    packstore(vP2, vX, vXA, vHB, 55, 0, 55, 512, 55, 1024)
    stamp(A, C, 3)

G1_LDS = 163840
def g1(A, C, sC, sU0, ustride, nunits, tag="g1"):
    vL16, vWa, vWb, vTR, vRD, vST, vT0, vT1 = range(2, 10)
    vACC = 12
    vE = 44
    vP = 52
    FR = 56
    depth = 8; grp = 2; ahead = depth - grp
    sSrc, sWb, sRd, sDm, sSt, sCnt, sTm, sNL = 48, 49, 50, 51, 52, 53, 54, 55
    srd(A, SRD_A, P_WG, NB_W); srd(A, SRD_B, P_WU, NB_W)
    A(f"v_lshlrev_b32 v{vL16}, 4, v1")
    A(f"v_lshrrev_b32 v{vT0}, 3, v1"); A(f"v_mul_u32_u24 v{vWa}, 3456, v{vT0}")
    A(f"v_and_b32 v{vT0}, 2, v{vT0}"); A(f"v_and_b32 v{vT1}, 7, v1"); A(f"v_xor_b32 v{vT0}, v{vT0}, v{vT1}")
    A(f"v_xor_b32 v{vT1}, 4, v{vT0}")
    A(f"v_lshl_add_u32 v{vWb}, v{vT1}, 4, v{vWa}"); A(f"v_lshl_add_u32 v{vWa}, v{vT0}, 4, v{vWa}")
    A(f"s_and_b32 s{sTm}, s{S_WAVE}, 1"); A(f"s_mul_i32 s{sSrc}, s{sTm}, {80*3456}")
    A(f"s_lshl_b32 s{sTm}, s{sC}, 7"); A(f"s_add_u32 s{sSrc}, s{sSrc}, s{sTm}")
    A(f"s_mul_i32 s{sWb}, s{S_WAVE}, 10240")
    A(f"s_cmp_ge_u32 s{S_WAVE}, 2")
    A(f"s_cselect_b32 s{SRD_C}, s{SRD_B}, s{SRD_A}"); A(f"s_cselect_b32 s{SRD_C+1}, s{SRD_B+1}, s{SRD_A+1}")
    A(f"s_mov_b32 s{SRD_C+2}, {NB_W}"); A(f"s_mov_b32 s{SRD_C+3}, 0x20000")
    for qd in range(4):
        for i in range(10):
            if i % 4 == 0: A(f"s_add_u32 m0, s{sWb}, {qd*40960+1024*i}")
            A(f"s_add_u32 s{sTm}, s{sSrc}, {(160*qd+8*i)*3456-1024*(i%4)}")
            A(f"buffer_load_dwordx4 v{vWb if i&1 else vWa}, {s(SRD_C,4)}, s{sTm} offen offset:{1024*(i%4)} lds")
    A(f"v_lshrrev_b32 v{vT0}, 4, v1"); A(f"v_bfe_u32 v{vT1}, v1, 2, 2"); A(f"v_lshl_add_u32 v{vTR}, v{vT0}, 3, v{vT1}"); A(f"v_lshlrev_b32 v{vTR}, 7, v{vTR}")
    A(f"v_bfe_u32 v{vT0}, v1, 3, 2")
    A(f"v_xor_b32 v{vT0}, s{S_WAVE}, v{vT0}"); A(f"v_lshl_add_u32 v{vTR}, v{vT0}, 5, v{vTR}")
    A(f"v_and_b32 v{vT0}, 3, v1"); A(f"v_lshl_add_u32 v{vTR}, v{vT0}, 3, v{vTR}")
    A(f"v_bfe_u32 v{vT0}, v1, 4, 1"); A(f"v_mul_u32_u24 v{vST}, 55296, v{vT0}")
    A(f"v_lshrrev_b32 v{vT0}, 5, v1"); A(f"v_lshl_add_u32 v{vST}, v{vT0}, 8, v{vST}")
    A(f"v_and_b32 v{vT0}, 15, v1"); A(f"v_lshl_add_u32 v{vST}, v{vT0}, 4, v{vST}")
    A(f"s_mul_i32 s{sSt}, s{sU0}, {2*55296}"); A(f"s_lshl_b32 s{sTm}, s{sC}, 11"); A(f"s_add_u32 s{sSt}, s{sSt}, s{sTm}")
    A(f"s_lshl_b32 s{sTm}, s{S_WAVE}, 9"); A(f"s_add_u32 s{sSt}, s{sSt}, s{sTm}"); A(f"s_add_u32 s{sSt}, s{sSt}, {WS_HHF}")
    A(f"s_mul_i32 s{sSrc}, s{sU0}, 40960"); A(f"s_add_u32 s{sSrc}, s{sSrc}, s{sWb}"); A(f"s_add_u32 s{sSrc}, s{sSrc}, {WS_LNF}")
    A(f"s_mov_b32 s{sDm}, s{sWb}"); A(f"s_mov_b32 s{sRd}, 0")
    A(f"s_mov_b32 s{sNL}, 0xbfb8aa3b")
    def dma_instrs():
        out = []
        for i in range(10):
            pre = [f"s_add_u32 m0, s{sDm}, {i*1024}", f"s_add_u32 s{sTm}, s{sSrc}, {i*1024}"] if i % 4 == 0 else []
            out.append((pre, f"buffer_load_dwordx4 v{vL16}, {s(SRD_WS,4)}, s{sTm} offen offset:{(i%4)*1024}{C.sc} lds"))
        return out
    def adv():
        return [f"s_add_u32 s{sSrc}, s{sSrc}, {ustride*40960}", f"s_add_u32 s{sDm}, s{sDm}, 40960", f"s_cmp_ge_u32 s{sDm}, {3*40960}", f"s_cselect_b32 s{sDm}, s{sWb}, s{sDm}"]
    def dma_now():
        for pre, d in dma_instrs(): A.extend(pre); A(d)
        A.extend(adv())
    def trq(qd):
        for kk in range(5):
            for mat in range(2):
                for hh in range(2):
                    A(f"ds_read_b64_tr_b16 {a(8*(5*qd+kk)+4*mat+2*hh,2)}, v{vTR} offset:{mat*20480+(32*kk+4*hh)*128}")
        if qd < 3: A(f"v_add_u32 v{vTR}, 40960, v{vTR}")
    A("s_waitcnt vmcnt(30)"); A("s_barrier"); stamp(A, C, 1); trq(0)
    A("s_waitcnt vmcnt(20) lgkmcnt(0)"); A("s_barrier"); dma_now(); trq(1)
    A("s_waitcnt vmcnt(20) lgkmcnt(0)"); A("s_barrier"); dma_now(); trq(2)
    A("s_waitcnt vmcnt(20) lgkmcnt(0)"); A("s_barrier"); trq(3)
    A("s_waitcnt vmcnt(10) lgkmcnt(0)"); A("s_barrier")
    stamp(A, C, 2)
    A(f"v_mov_b32 v{vRD}, v{vL16}")
    for i in range(ahead): A(f"ds_read_b128 {v(FR+4*i,4)}, v{vRD} offset:{i*1024}")
    def epi(pacc):
        o = []
        G = lambda i: pacc + 8 * (i >> 2) + (i & 3)
        U = lambda i: G(i) + 4
        for i in range(8): o.append((f"v_mul_f32 v{vE+i}, s{sNL}, v{G(i)}", 1))
        for i in range(8): o.append((f"v_exp_f32 v{vE+i}, v{vE+i}", 2))
        for i in range(8): o.append((f"v_add_f32 v{vE+i}, 1.0, v{vE+i}", 1))
        for i in range(8): o.append((f"v_rcp_f32 v{vE+i}, v{vE+i}", 2))
        for i in range(8): o.append((f"v_mul_f32 v{vE+i}, v{vE+i}, v{U(i)}", 1))
        for i in range(4): o.append((f"v_cvt_pk_bf16_f32 v{vP+i}, v{vE+2*i}, v{vE+2*i+1}", 1))
        o.append((f"v_permlane16_swap_b32 v{vP}, v{vP+2}", 1)); o.append((f"v_permlane16_swap_b32 v{vP+1}, v{vP+3}", 1))
        o.append((f"buffer_store_dwordx4 {v(vP,4)}, v{vST}, {s(SRD_WS,4)}, s{sSt} offen{C.sc}", 1))
        o.append((f"s_add_u32 s{sSt}, s{sSt}, {ustride*2*55296}", 1))
        return o
    def unit(half, do_epi, do_dma, do_next, nvm):
        acc = vACC + 16 * half; pacc = vACC + 16 * (1 - half)
        mf = []
        for st in range(2):
            for k0 in range(0, 20, grp):
                for gu in range(2):
                    for kk in range(k0, k0 + grp):
                        i = st * 20 + kk; ac = acc + 8 * st + 4 * gu
                        c = "0" if kk == 0 else v(ac, 4)
                        mf.append((f"v_mfma_f32_16x16x32_bf16 {v(ac,4)}, {a(8*kk+4*gu,4)}, {v(FR+4*(i%depth),4)}, {c}", i))
        n = len(mf); cap = 2
        last_use = {}
        for idx, (_, f) in enumerate(mf): last_use[f] = idx
        gaps = [[] for _ in range(n)]; cost = [0] * n
        nxt = ahead; waited = -1; lim = 40 + ahead if do_next else 40
        bar_idx = None
        for idx, (_, f) in enumerate(mf):
            if nxt < lim and (nxt - depth < 0 or last_use[nxt - depth] < idx):
                if nxt == 40:
                    gaps[idx] += [f"s_waitcnt lgkmcnt(0) vmcnt({nvm})", "s_barrier", f"v_add_u32 v{vRD}, s{sRd}, v{vL16}"]
                    cost[idx] += 3; waited = 39; bar_idx = idx
                gaps[idx].append(f"ds_read_b128 {v(FR+4*(nxt%depth),4)}, v{vRD} offset:{(nxt%40)*1024}"); cost[idx] += 1
                nxt += 1
            if f > waited:
                tgt = min(f + 1, 39)
                gaps[idx].append(f"s_waitcnt lgkmcnt({nxt-1-tgt})"); cost[idx] += 1; waited = tgt
        assert nxt == lim
        span = 56
        if do_dma:
            for i, (pre, d) in enumerate(dma_instrs()):
                pos = 1 + (i * span) // 10
                while cost[pos] >= cap: pos += 1
                if pre: gaps[pos-1] += pre; cost[pos-1] += 2
                gaps[pos].append(d); cost[pos] += 1
        sal = (adv() if do_dma else []) + ([f"s_add_u32 s{sRd}, s{sRd}, 40960", f"s_cmp_ge_u32 s{sRd}, {3*40960}", f"s_cselect_b32 s{sRd}, 0, s{sRd}"] if do_next else [])
        pos = span + 2
        for x in sal:
            gaps[pos].append(x); cost[pos] += 1
            if not x.startswith("s_cmp") and cost[pos] >= cap: pos += 1
        assert bar_idx is None or pos < bar_idx
        stpos = None
        if do_epi:
            pos = 5
            for x, c in epi(pacc):
                if x.startswith("buffer_store") and bar_idx is not None: pos = max(pos, bar_idx + 1)
                while pos < n - 1 and cost[pos] + c > cap: pos += 1
                gaps[pos].append(x); cost[pos] += c
                if x.startswith("buffer_store"): stpos = pos
            assert bar_idx is None or stpos > bar_idx, (stpos, bar_idx)
        out = []
        for idx, (m, f) in enumerate(mf):
            out += gaps[idx]; out.append(m)
        return out
    assert nunits >= 4 and nunits % 2 == 0
    A.extend(unit(0, False, True, True, 10))
    A.extend(unit(1, True, True, True, 10))
    nloop = (nunits - 4) // 2
    if nloop:
        A(f"s_mov_b32 s{sCnt}, {nloop}")
        A.label(f"L_{tag}_loop")
        body = unit(0, True, True, True, 11) + unit(1, True, True, True, 11)
        A.extend(body)
        A(f"s_sub_u32 s{sCnt}, s{sCnt}, 1"); A(f"s_cmp_lg_u32 s{sCnt}, 0"); A(f"s_cbranch_scc1 L_{tag}_loop")
    A.extend(unit(0, True, False, True, 1))
    A.extend(unit(1, True, False, False, 0))
    stamp(A, C, 3)
    A.extend([x for x, _ in epi(vACC + 16)])
    stamp(A, C, 4)

G2_LDS = 2 * 20480
def g2(A, C, sRT, sCB):
    vL16, vLast, vRW, vRR, vO, vT0, vT1 = range(2, 9)
    vWX = 12
    vHH = 36
    vACC = 92
    vR = 132
    vRes = 164
    vTm = 172
    sW, sH, sTm, sO, sK0, sHR = 48, 49, 50, 51, 52, 53
    srd(A, SRD_A, P_OUT, NB_SD)
    def W(t, dt):
        f = 5 * t + dt
        return a(4 * f, 4) if f < 64 else v(vWX + 4 * (f - 64), 4)
    A(f"v_lshlrev_b32 v{vL16}, 4, v1")
    A(f"s_mul_i32 s{sK0}, s{S_WAVE}, 14"); A(f"s_cmp_eq_u32 s{S_WAVE}, 3"); A(f"s_cselect_b32 s{sK0}, 41, s{sK0}")
    A(f"s_cmp_ge_u32 s{S_WAVE}, 2"); A(f"s_cselect_b32 s{sTm}, {OOB}, 0"); A(f"v_or_b32 v{vLast}, s{sTm}, v{vL16}")
    A(f"s_mul_i32 s{sW}, s{sCB}, 54"); A(f"s_add_u32 s{sW}, s{sW}, s{sK0}"); A(f"s_mul_i32 s{sW}, s{sW}, 5120"); A(f"s_add_u32 s{sW}, s{sW}, {WS_W2F}")
    A(f"s_mul_i32 s{sH}, s{sRT}, 54"); A(f"s_add_u32 s{sH}, s{sH}, s{sK0}"); A(f"s_lshl_b32 s{sH}, s{sH}, 10"); A(f"s_add_u32 s{sH}, s{sH}, {WS_HHF}")
    def hload(p, t, force=False):
        pre = [f"s_add_u32 s{sTm}, s{sH}, {p*32*55296+1024*(t-t%4)}"] if (t % 4 == 0 or force) else []
        return pre + [f"buffer_load_dwordx4 {v(vHH+4*t,4)}, v{vLast if t==13 else vL16}, {s(SRD_WS,4)}, s{sTm} offen offset:{1024*(t%4)}{C.sc}"]
    def wload(t):
        o = [f"s_add_u32 s30, s{sW}, {5120*t}", f"s_add_u32 s31, s{sW}, {5120*t+4096}"]
        for dt in range(5):
            o.append(f"buffer_load_dwordx4 {W(t,dt)}, v{vLast if t==13 else vL16}, {s(SRD_WS,4)}, s{31 if dt==4 else 30} offen offset:{1024*(dt%4)}{C.sc}")
        return o
    NPRE = 9
    for t in range(NPRE):
        A.extend(hload(0, t)); A.extend(wload(t))
    A(f"s_mul_i32 s30, s{S_WAVE}, 5120"); A(f"v_add_u32 v{vRW}, s30, v{vL16}")
    A(f"v_mul_u32_u24 v{vT0}, 205, v1"); A(f"v_lshrrev_b32 v{vT0}, 11, v{vT0}")
    A(f"v_mul_u32_u24 v{vT1}, 10, v{vT0}"); A(f"v_sub_u32 v{vT1}, v1, v{vT1}")
    A(f"v_and_b32 v{vT0}, 3, v{vT0}")
    A(f"s_lshl_b32 s30, s{S_WAVE}, 2"); A(f"v_add_u32 v{vT0}, s30, v{vT0}")
    A(f"v_lshlrev_b32 v{vRR}, 4, v{vT0}"); A(f"v_lshl_add_u32 v{vRR}, v{vT1}, 9, v{vRR}")
    A(f"v_mul_u32_u24 v{vO}, 1280, v{vT0}"); A(f"v_lshl_add_u32 v{vO}, v{vT1}, 4, v{vO}")
    A(f"v_cmp_gt_u32 vcc, 40, v1"); A(f"v_mov_b32 v{vT0}, {OOB}"); A("s_nop 0"); A(f"v_cndmask_b32 v{vO}, v{vT0}, v{vO}, vcc")
    A(f"s_mul_i32 s{sO}, s{sRT}, {16*1280}"); A(f"s_mul_i32 s30, s{sCB}, 160"); A(f"s_add_u32 s{sO}, s{sO}, s30")
    A(f"s_add_u32 s{sHR}, s{sO}, {WS_HR}")
    def red1(p):
        acc = vACC + 20 * (p & 1)
        o = [f"ds_write_b128 v{vRW}, {v(acc+4*dt,4)} offset:{(p&1)*20480+1024*dt}" for dt in range(5)]
        o += ["s_waitcnt lgkmcnt(0)", "s_barrier"]
        for w in range(4):
            for j in range(2):
                o.append(f"ds_read_b128 {v(vR+8*w+4*j,4)}, v{vRR} offset:{(p&1)*20480+5120*w+256*j}")
        return o
    def red2(p):
        rr = vRes + 4 * (p & 1)
        o = unpack(vTm, rr, 4)
        o.append("s_waitcnt lgkmcnt(0)")
        for w in range(4):
            for j in range(8): o.append(f"v_add_f32 v{vTm+j}, v{vTm+j}, v{vR+8*w+j}")
        for j in range(4): o.append(f"v_cvt_pk_bf16_f32 v{vR+j}, v{vTm+2*j}, v{vTm+2*j+1}")
        o.append(f"buffer_store_dwordx4 {v(vR,4)}, v{vO}, {s(SRD_A,4)}, s{sO} offen")
        o.append(f"s_add_u32 s{sO}, s{sO}, {512*1280}")
        return o
    def resload(p):
        return [f"buffer_load_dwordx4 {v(vRes+4*(p&1),4)}, v{vO}, {s(SRD_WS,4)}, s{sHR} offen{C.sc}", f"s_add_u32 s{sHR}, s{sHR}, {512*1280}"]
    stream = []
    issued = []
    for t in range(NPRE):
        issued.append(("h", 0, t)); issued += [("w", t)] * 5
    def emit(x, tg=None):
        stream.append(x)
        if x.startswith("buffer_"): issued.append(tg)
    def need(tags):
        last = max(i for i, tg in enumerate(issued) if tg in tags)
        stream.append(f"s_waitcnt vmcnt({len(issued)-1-last})")
    for p in range(4):
        acc = vACC + 20 * (p & 1)
        extra = []
        if p > 0: extra = [(x, None) for x in red1(p - 1)] + [("NEEDRES", p - 1)] + [(x, "st") for x in red2(p - 1)]
        extra = [(x, ("r", p)) for x in resload(p)] + extra
        ei = 0
        for t in range(14):
            need([("h", p, t)] + ([("w", t)] if p == 0 else []))
            if p == 0 and t == 0: stream.append("STAMP1")
            fl = []
            if p == 0 and t + NPRE < 14:
                fl += [(x, ("h", 0, t + NPRE)) for x in hload(0, t + NPRE, True)] + [(x, ("w", t + NPRE)) for x in wload(t + NPRE)]
            for dt in range(5):
                c = "0" if t == 0 else v(acc + 4 * dt, 4)
                emit(f"v_mfma_f32_16x16x32_bf16 {v(acc+4*dt,4)}, {W(t,dt)}, {v(vHH+4*t,4)}, {c}")
                k = 0
                lim = 2 if dt < 4 else 0
                while k < lim and fl:
                    x, tg = fl.pop(0); emit(x, tg); k += 1
                while k < lim and ei < len(extra) and (5 * t + dt >= 3):
                    x, tg = extra[ei]; ei += 1
                    if x == "NEEDRES": need([("r", tg)])
                    else: emit(x, tg)
                    k += 1
            for x, tg in fl: emit(x, tg)
            if p < 3:
                hl = hload(p + 1, t, p == 0 and t + NPRE < 14)
                for x in hl: emit(x, ("h", p + 1, t))
        assert ei == len(extra)
        stream.append(f"STAMP{p+2}")
    for x in red1(3): emit(x)
    need([("r", 3)])
    for x in red2(3): emit(x, "st")
    for x in stream:
        if x.startswith("STAMP"): stamp(A, C, int(x[5:]))
        else: A(x)
    stamp(A, C, 6)
```

```python
TRANS = ("v_exp_f32", "v_rcp_f32", "v_rsq_f32", "v_sqrt_f32", "v_log_f32")

class Stream:
    def __init__(self, A, like=None):
        self.A = A
        self.vm = list(like.vm) if like else []
        self.lg = list(like.lg) if like else []
    def __call__(self, x, tag=None):
        if isinstance(x, tuple):
            if x[0] == "need": return self.need(*x[1:])
            if x[0] == "call": return x[1]()
            x, tag = x
        self.A(x)
        if x.startswith("buffer_") or x.startswith("global_"): self.vm.append(tag)
        elif x.startswith("ds_"): self.lg.append(tag)
    def extend(self, L, tag=None):
        for x in L: self(x, tag)
    def need(self, vt=None, lt=None):
        parts = []
        if vt == 0: parts.append("vmcnt(0)")
        elif vt:
            idx = [i for i, tg in enumerate(self.vm) if tg in vt]
            assert idx, vt
            parts.append(f"vmcnt({min(len(self.vm) - 1 - max(idx), 62)})")
        if lt == 0: parts.append("lgkmcnt(0)")
        elif lt:
            idx = [i for i, tg in enumerate(self.lg) if tg in lt]
            assert idx, lt
            parts.append(f"lgkmcnt({min(len(self.lg) - 1 - max(idx), 14)})")
        self.A("s_waitcnt " + " ".join(parts))
    def label(self, l): self.A.label(l)

def text(x):
    if isinstance(x, tuple):
        if x[0] == "need": return "s_waitcnt"
        if x[0] == "call": return ":"
        return x[0]
    return x
def kind(x):
    t = text(x)
    if t.endswith(":"): return "label", 0
    if t.startswith("v_"):
        return "valu", (2 if t.startswith(TRANS) else 1)
    if t.startswith("ds_") or t.startswith("buffer_"): return "mem", 1
    return "sc", 1

class Seq:
    def __init__(self): self.items = []
    def add(self, x, rel=0, dl=None):
        self.items.append((x, rel, dl)); return self
    def addl(self, L, rel=0, step=0, dl=None, stepon=None):
        for x in L:
            self.items.append((x, int(rel), dl))
            if stepon is None or stepon(text(x)): rel += step
        return int(rel)

def isvm(t): return t.startswith("buffer_")

def schedule(mf, seqs):
    n = len(mf); out = []
    ptr = [0] * len(seqs)
    for g in range(n + 1):
        slots = 3; first = True; hadv = False
        def head(i): return seqs[i].items[ptr[i]] if ptr[i] < len(seqs[i].items) else None
        def cost(x):
            k, c = kind(x)
            if c and first and k != "sc": c += 1
            if k == "mem" and hadv: c += 2
            return c
        def emit(i):
            nonlocal slots, first, hadv
            x = seqs[i].items[ptr[i]][0]; k, c = kind(x)
            slots -= cost(x)
            if c: first = False
            if k == "valu": hadv = True
            out.append(x); ptr[i] += 1
            while head(i) and kind(head(i)[0])[0] == "label": out.append(head(i)[0]); ptr[i] += 1
        def due(i):
            return any(dl is not None and dl <= g for (_, _, dl) in seqs[i].items[ptr[i]:])
        if g == n:
            for i in range(len(seqs)):
                while head(i): emit(i)
            break
        for i in range(len(seqs)):
            h = head(i)
            if h and kind(h[0])[0] == "sc" and (h[1] <= g or (h[1] <= g + 2 and text(h[0]).startswith("s_add_u32"))): emit(i); break
        for i in range(len(seqs)):
            while head(i) and due(i): emit(i)
        prog = True
        while slots > 0 and prog:
            prog = False
            for want in ("mem", None):
                for i in range(len(seqs)):
                    h = head(i)
                    if not h or h[1] > g: continue
                    if want and kind(h[0])[0] != want: continue
                    if cost(h[0]) <= slots:
                        emit(i); prog = True; break
                if prog: break
        out.append(mf[g])
    return out
```

```python
import sys, struct
from asmlib import *
from phases import (Ctx, stamp, stamp_flush, stamps_out, WS_LNF, WS_HR, WS_HHF, WS_W2F, WS_SIZE, OOB, NB_SD, NB_W,
                    P_Q, P_K, P_V, P_SH, P_SK, P_SD, P_BX, P_WG, P_WU, P_WD, P_OUT, P_DBG, P_WS, S_WAVE, SRD_A, SRD_B, SRD_C, SRD_WS)
from sched import *
import hazcheck
NAME = "sequential_preLN__ssm_conv_h3__glu_gated_glu__prompt_kernel"

WS_KT = 24 << 20
WS_YT = 32 << 20
WS_FL = 40 << 20
FL_E = WS_FL
FL_W2 = WS_FL + 0x1000
FL_LN = WS_FL + 0x100000
FL_HH = WS_FL + 0x40000
S_TAG32, S_TAG16, S_TAGF, S_X, S_J, S_SPIN = 100, 99, 98, 97, 96, 95
S_MSK, S_PM = 26, 27
sWsrc, sWb, sW2, sHH, sK0, S_CB, S_RT, S_I, S_C, S_ID = range(70, 80)
SPIN_MAX = 1 << 14
vL16, vTag = 10, 11
WS4 = s(SRD_WS, 4)
SLOT = 40960

class P:
    poll_at = 48
    poll_lead = 16
    w1step = 4.5
    npre = 8
    npre0 = 0
    g1_dstep = 4
    g1_wstep = 4
    touch = 0
    cw1 = 1
    xw = 0
    astep = 3
    adl = 130
    k4s = 20
    ack = -1
    tlb = 0
    tlbr = 'crf'
    hpos = 1
    hold = 0
    wlate = 1
    nor = 0
    rdelay = 0
    hearly = 0
    ford = 0
    k0 = 2
    k4 = 30
    tg = 60
    b0 = 150
    b1 = 190
    e1 = 7
    e2 = 6
    lsleep = 2
    nofree = 0
    w2max = 8
    rhint = 4
    rsleep = 2
    rhb = 1
    w2u = 1
    t2 = 0
    fw1 = 3
    w1g0 = 60
    w1g1 = 270
    cnt = ''
    g1x = 0
    ni = 8
    x2 = 0
    kburst = 3
    klead = 80
    rdlead = 24
    xtouch = 3
    tr1 = 51
    w1g2 = 0
    d1 = 12
    d2 = 12
    epidl = 56
    stearly = 1
    only = 0
    depth = 8
    grp = 2
    gboff = 5
    wev = 2
    sw = 0
    kill = 0
    cyc = 0
    rep = 0
    xy = 0
    spin = 1 << 14
    norole = 0

def unpk(dst, src, n):
    o = []
    for i in range(n):
        o += [f"v_lshlrev_b32 v{dst+2*i}, 16, v{src+i}", f"v_and_b32 v{dst+2*i+1}, s{S_MSK}, v{src+i}"]
    return o

def spin(tail, name, load, check, sleep=0, pre=()):
    tail.label(f"L_{name}r"); tail(f"s_mov_b32 s{S_SPIN}, {P.spin}")
    import re
    if P.cnt and re.fullmatch(P.cnt, name): tail("s_add_u32 s94, s94, 1")
    for x in pre: tail(text(x))
    tail.label(f"L_{name}l")
    if sleep: tail(f"s_sleep {sleep}")
    for x in load: tail(text(x))
    tail(f"s_sub_u32 s{S_SPIN}, s{S_SPIN}, 1"); tail("s_waitcnt vmcnt(0)"); tail(f"s_cbranch_scc1 L_{name}b")
    tail.extend(check); tail("s_nop 0"); tail(f"s_cbranch_vccnz L_{name}l"); tail(f"s_branch L_{name}b")
    if P.only: return list(check) + ["s_nop 0", f"L_{name}b:"]
    return list(check) + [f"s_cbranch_vccnz L_{name}r", f"L_{name}b:"]

P0L = 4 * SLOT - 4 * (9 * 1152 + 1024)
P0_K, P0_V, P0_W, P0_WF, P0_T, P0_O = 100, 128, 144, 160, 192, 216
vWa, vWb, vTR = 248, 249, 250

def epoch_load(A):
    A(f"s_add_u32 s30, s{P_WS}, {FL_E}"); A(f"s_addc_u32 s31, s{P_WS+1}, 0"); A(f"s_load_dword s{S_TAG32}, s[30:31], 0")
def common_setup(A, role):
    srd(A, SRD_WS, P_WS, WS_SIZE); A(f"s_mov_b32 s{S_MSK}, 0xffff0000")
    if P.tlb and (role in P.tlbr):
        A(f"v_cmp_gt_u32 vcc, {min(256, (42<<20)>>P.tlb)}, v0"); A(f"v_lshlrev_b32 v7, {P.tlb}, v0"); A(f"s_mov_b32 s30, {(1<<P.tlb)-128}"); A("v_cndmask_b32 v7, v8, v7, vcc")
        A(f"buffer_load_dword v253, v7, {WS4}, s30 offen")
    w1_setup(A); g2_setup(A)
def epoch_finish(A):
    A("s_waitcnt lgkmcnt(0)")
    A(f"s_mul_i32 s{S_TAG32}, s{S_TAG32}, 0x41c64e6d"); A(f"s_add_u32 s{S_TAG32}, s{S_TAG32}, 12345")
    A(f"s_and_b32 s{S_TAG16}, s{S_TAG32}, 0x1fff"); A(f"s_or_b32 s{S_TAG16}, s{S_TAG16}, 0x4000"); A(f"s_lshl_b32 s{S_TAGF}, s{S_TAG16}, 16")
    A(f"v_mov_b32 v{vTag}, s{S_TAG32}")

def start(A, C):
    stamp(A, C, 0)
    A("s_cmp_ge_u32 s2, 256"); A("s_cbranch_scc1 L_end")
    A("s_load_dwordx16 s[4:19], s[0:1], 0"); A("s_load_dwordx8 s[20:27], s[0:1], 64"); A("s_load_dwordx2 s[28:29], s[0:1], 96")
    A(f"s_and_b32 s{S_X}, s2, 7"); A(f"s_lshr_b32 s{S_J}, s2, 3")
    A("s_getpc_b64 s[52:53]"); A.label("L_pc")
    A("v_lshrrev_b32 v1, 6, v0"); A("v_bfrev_b32 v8, 1")
    A(f"v_readfirstlane_b32 s{S_WAVE}, v1"); A("v_and_b32 v1, 63, v0"); A(f"v_lshlrev_b32 v{vL16}, 4, v1")
    A(f"s_cmp_ge_u32 s{S_J}, {0 if P.only else 20}"); A("s_cbranch_scc1 L_nc")

P0W = 9 * 1152 + 1024
def p0(A, C):
    A("s_mul_i32 s50, s2, 6554"); A("s_lshr_b32 s50, s50, 16"); A("s_mul_i32 s51, s50, 10"); A("s_sub_u32 s51, s2, s51")
    A("s_lshl_b32 s50, s50, 2"); A(f"s_add_u32 s50, s50, s{S_WAVE}")
    A("s_mul_i32 s60, s50, 40960"); A("s_lshl_b32 s61, s51, 7"); A("s_add_u32 s60, s60, s61"); A("s_sub_u32 s61, s60, 3840")
    A("v_lshrrev_b32 v12, 3, v1"); A("v_and_b32 v3, 7, v1"); A("v_lshrrev_b32 v13, 5, v1"); A("v_xor_b32 v13, v13, v3")
    A("v_mul_u32_u24 v4, 1280, v12"); A("v_lshl_add_u32 v4, v13, 4, v4")
    for i in range(1, 4): A(f"v_xor_b32 v{4+i}, {32*i}, v4")
    A("v_add_u32 v14, s61, v4"); A("v_min_u32 v14, v14, v8"); A("v_cmp_gt_u32 vcc, 24, v1")
    A(f"s_mul_i32 s62, s{S_WAVE}, {P0W}"); A(f"s_add_u32 s62, s62, {P0L}"); A("v_cndmask_b32 v15, v8, v4, vcc")
    A("v_cmp_gt_u32 vcc, 32, v1"); A("s_lshl_b32 s63, s51, 9"); A("s_nop 0"); A(f"v_cndmask_b32 v9, v8, v{vL16}, vcc")
    A("s_mov_b32 m0, s62")
    A("s_waitcnt lgkmcnt(0)")
    stamp(A, C, -1); stamp(A, C, "p0_ka")
    srd(A, SRD_A, P_K, NB_SD)
    A(f"buffer_load_dwordx4 v14, {s(SRD_A,4)}, 0 offen lds")
    srd(A, SRD_B, P_V, NB_SD)
    for i in range(4):
        A(f"s_add_u32 m0, s62, {1152*(5+i)}"); A(f"s_add_u32 s30, s60, {10240*i}")
        A(f"buffer_load_dwordx4 v{4+i}, {s(SRD_B,4)}, s30 offen lds")
        A(f"s_add_u32 m0, s62, {1152*(1+i)}"); A(f"s_add_u32 s30, s61, {10240*(i+1)}")
        A(f"buffer_load_dwordx4 v{15 if i == 3 else 5+i}, {s(SRD_A,4)}, s30 offen lds")
    epoch_load(A)
    srd(A, SRD_C, P_SH, 5120)
    A(f"s_add_u32 m0, s62, {9*1152}"); A("s_nop 0"); A(f"buffer_load_dwordx4 v9, {s(SRD_C,4)}, s63 offen lds")
    A("v_lshlrev_b32 v254, 6, v12"); A("v_add_u32 v254, s62, v254")
    A("v_lshlrev_b32 v2, 13, v12"); A("v_lshl_add_u32 v2, v3, 4, v2")
    for d, reg in ((0, 4), (1, 9)):
        A(f"v_add_u32 v13, {d}, v3"); A("v_lshrrev_b32 v14, 1, v13"); A("v_mul_u32_u24 v14, 1152, v14"); A("v_and_b32 v15, 1, v13"); A("v_lshl_add_u32 v14, v15, 9, v14")
        A("v_and_b32 v13, 7, v13"); A("v_xor_b32 v13, v13, v12"); A("v_lshl_add_u32 v14, v13, 4, v14"); A(f"v_add_u32 v{reg}, s62, v14")
    A("s_lshr_b32 s48, s50, 3"); A("s_mul_i32 s48, s48, 655360"); A("s_lshl_b32 s49, s51, 16"); A("s_add_u32 s48, s48, s49")
    A("s_and_b32 s49, s50, 7"); A("s_lshl_b32 s49, s49, 7"); A("s_add_u32 s48, s48, s49"); A(f"s_add_u32 s48, s48, {WS_KT}"); A("s_add_u32 s49, s48, 4096")
    A(f"v_mul_u32_u24 v{vYG}, 20480, v12"); A(f"v_lshl_add_u32 v{vYG}, v3, 4, v{vYG}")
    conv_setup(A); common_setup(A, 'c'); w1_touch_setup(A)
    srd(A, SRD_A, P_SK, NB_SD); A("s_lshl_b32 s57, s56, 12"); A(f"s_add_u32 m0, s64, {4160+32}")
    hd = [f"buffer_load_dwordx4 v{vL16}, {s(SRD_A,4)}, s57 offen offset:{1024*i} lds" for i in range(4)]
    if P.hpos == 0: A.extend(hd)
    epoch_finish(A)
    if P.hpos == 1: A("s_waitcnt vmcnt(5)"); A.extend(hd)
    A(f"s_waitcnt vmcnt({4 if P.hpos < 2 else 0})")
    stamp(A, C, "p0_ld")
    for i in range(4): A(f"ds_read_b128 {v(P0_W+4*i,4)}, v254 offset:{9*1152+16*i}")
    for r in range(7): A(f"ds_read_b128 {v(P0_K+4*r,4)}, v{4 if r < 4 else 9} offset:{128*(r&3)}")
    if P.hpos == 2: A.extend(hd)
    A("s_waitcnt lgkmcnt(7)")
    for r in range(4): A(f"ds_read_b128 {v(P0_V+4*r,4)}, v4 offset:{5*1152+128*r}")
    Wf = lambda j, c: P0_WF + 8 * j + c
    for c in range(8):
        for hlf in range(2):
            A(f"v_lshlrev_b32 v{Wf(2*hlf,c)}, 16, v{P0_W+2*c+hlf}"); A(f"v_and_b32 v{Wf(2*hlf+1,c)}, s{S_MSK}, v{P0_W+2*c+hlf}")
    A("s_waitcnt lgkmcnt(4)")
    H = 60; E = 80
    for p in range(4):
        K = P0_T; acc = P0_T + 14
        if p == 3 and P.hearly:
            A("s_waitcnt vmcnt(6)")
            for i in range(4): A(f"ds_read_b128 {v(H+4*i,4)}, v{vHW} offset:{4160+32+1024*i}"); A(f"ds_read_b32 v{H+16+i}, v{vHW} offset:{4160+28+1024*i}")
        for r in range(7): A.extend(unpk(K + 2 * r, P0_K + 4 * r + p, 1))
        A(".p2align 3")
        for r in range(4): A(f"v_pk_mul_f32 {v(acc+2*r,2)}, {v(K+2*r,2)}, {v(Wf(3,2*p),2)}")
        for j in (2, 1, 0):
            for r in range(4): A(f"v_pk_fma_f32 {v(acc+2*r,2)}, {v(K+2*(r+3-j),2)}, {v(Wf(j,2*p),2)}, {v(acc+2*r,2)}")
        if p == 0: A("s_waitcnt lgkmcnt(0)")
        for r in range(4): A.extend(unpk(K + 2 * r, P0_V + 4 * r + p, 1))
        A(".p2align 3")
        for r in range(4): A(f"v_pk_mul_f32 {v(acc+2*r,2)}, {v(acc+2*r,2)}, {v(K+2*r,2)}")
        for cc in range(2):
            c = 2 * p + cc; o = P0_O + 4 * c
            for r in range(4): A(f"v_cvt_pk_bf16_f32 v{o+r}, s{S_TAGF}, v{acc+2*r+cc}")
            A(f"buffer_store_dwordx4 {v(o,4)}, v2, {WS4}, s{48+(c>>2)} offen offset:{1024*(c&3)} sc1")
    stamp(A, C, "p0_st")
    if not P.hearly:
        A("s_waitcnt vmcnt(8)")
        for i in range(4): A(f"ds_read_b128 {v(H+4*i,4)}, v{vHW} offset:{4160+32+1024*i}"); A(f"ds_read_b32 v{H+16+i}, v{vHW} offset:{4160+28+1024*i}")
    for i in range(4):
        A(f"s_waitcnt lgkmcnt({6-i if i < 3 else 3})")
        A(f"v_alignbit_b32 v{E+4*i}, v{H+4*i}, v{H+16+i}, 16")
        for j in range(1, 4): A(f"v_alignbit_b32 v{E+4*i+j}, v{H+4*i+j}, v{H+4*i+j-1}, 16")
        A(f"ds_write_b128 v{vHW}, {v(E+4*i,4)} offset:{32+1024*i}")

def w1_touch_setup(A):
    n1, n0 = P.tr1, -(-(640 - 12 * P.tr1) // 20)
    A(f"s_mul_i32 s30, s{S_X}, 27"); A("s_add_u32 s31, s30, 26"); A("s_lshr_b32 s30, s30, 3"); A("s_lshr_b32 s31, s31, 3"); A("s_sub_u32 s31, s31, s30")
    A("v_mul_u32_u24 v251, 52429, v0"); A("v_lshrrev_b32 v251, 18, v251"); A("v_mul_u32_u24 v252, 5, v251"); A("v_sub_u32 v252, v0, v252")
    A("v_cmp_ge_u32 vcc, s31, v252"); A("s_lshl_b32 s67, s30, 7")
    A(f"s_mul_i32 s30, s{S_J}, {n0}"); A(f"s_add_u32 s30, s30, {12*n1}"); A(f"s_sub_u32 s31, s{S_J}, 20"); A(f"s_mul_i32 s31, s31, {n1}")
    A(f"s_cmp_lt_u32 s{S_J}, 20"); A("s_cselect_b32 s30, s30, s31"); A(f"s_cselect_b32 s31, {n0}, {n1}")
    A("s_mul_i32 s30, s30, 3456"); A("s_add_u32 s67, s67, s30"); A("v_cmp_gt_u32 s[30:31], s31, v251")
    A("v_mul_u32_u24 v251, 3456, v251"); A("v_lshl_add_u32 v251, v252, 7, v251"); A("s_and_b64 vcc, vcc, s[30:31]"); A("v_cndmask_b32 v255, v8, v251, vcc")
def w1_touch(S):
    A = S.A if isinstance(S, Stream) else S
    srd(A, SRD_A, P_WG, NB_W); srd(A, SRD_B, P_WU, NB_W)
    S(f"buffer_load_dword v251, v255, {s(SRD_A,4)}, s67 offen"); S(f"buffer_load_dword v252, v255, {s(SRD_B,4)}, s67 offen")
    return 2

def w1_setup(A):
    t0, t1 = 5, 6
    lg = {8: 3, 4: 2, 2: 1, 1: 0}[P.ni]
    A(f"s_lshl_b32 s30, 2, s{S_J}"); A("s_sub_u32 s30, s30, 1"); A("s_and_b32 s30, s30, 0x22489"); A("s_bcnt1_i32_b32 s30, s30"); A(f"s_add_u32 s30, s30, s{S_J}")
    A(f"s_mul_i32 s31, s{S_J}, 13"); A("s_sub_u32 s31, s31, 259"); A("s_mul_i32 s31, s31, 21846"); A("s_lshr_b32 s31, s31, 16")
    A(f"s_cmp_lt_u32 s{S_J}, 20"); A("s_cselect_b32 s31, s30, s31")
    A(f"s_lshr_b32 s30, s{S_X}, {3-lg}"); A(f"s_mul_i32 s30, s30, 27"); A(f"s_add_u32 s30, s30, s31"); A(f"s_lshr_b32 s{S_C}, s30, {lg}"); A(f"s_and_b32 s{S_I}, s30, {P.ni-1}")
    if lg < 3: A(f"s_and_b32 s30, s{S_X}, {8//P.ni-1}"); A(f"s_lshl_b32 s30, s30, {lg}"); A(f"s_add_u32 s{S_I}, s{S_I}, s30")
    A(f"v_lshrrev_b32 v{t0}, 3, v1"); A(f"v_mul_u32_u24 v{vWa}, 3456, v{t0}")
    A(f"v_and_b32 v{t0}, 2, v{t0}"); A(f"v_and_b32 v{t1}, 7, v1"); A(f"v_xor_b32 v{t0}, v{t0}, v{t1}"); A(f"v_xor_b32 v{t1}, 4, v{t0}")
    A(f"v_lshl_add_u32 v{vWb}, v{t1}, 4, v{vWa}"); A(f"v_lshl_add_u32 v{vWa}, v{t0}, 4, v{vWa}")
    A(f"s_and_b32 s30, s{S_WAVE}, 1"); A(f"s_mul_i32 s{sWsrc}, s30, {80*3456}"); A(f"s_lshl_b32 s30, s{S_C}, 7"); A(f"s_add_u32 s{sWsrc}, s{sWsrc}, s30")
    A(f"s_mul_i32 s{sWb}, s{S_WAVE}, 10240")
    A(f"s_cmp_ge_u32 s{S_WAVE}, 2")
    A(f"s_cselect_b32 s{SRD_C}, s{P_WU}, s{P_WG}"); A(f"s_cselect_b32 s{SRD_C+1}, s{P_WU+1}, s{P_WG+1}")
    A(f"s_and_b32 s{SRD_C+1}, s{SRD_C+1}, 0xffff"); A(f"s_mov_b32 s{SRD_C+2}, {NB_W}"); A(f"s_mov_b32 s{SRD_C+3}, 0x20000")
    A(f"v_lshrrev_b32 v{t0}, 4, v1"); A(f"v_bfe_u32 v{t1}, v1, 2, 2"); A(f"v_lshl_add_u32 v{vTR}, v{t0}, 3, v{t1}"); A(f"v_lshlrev_b32 v{vTR}, 7, v{vTR}")
    A(f"v_bfe_u32 v{t0}, v1, 3, 2"); A(f"v_xor_b32 v{t0}, s{S_WAVE}, v{t0}"); A(f"v_lshl_add_u32 v{vTR}, v{t0}, 5, v{vTR}")
    A(f"v_and_b32 v{t0}, 3, v1"); A(f"v_lshl_add_u32 v{vTR}, v{t0}, 3, v{vTR}")
def w1_dma(qd, slot):
    o = []
    for i in range(10):
        if i % 4 == 0 and (P.xw != 5 or (i == 0 and qd == 0)): o.append(f"s_add_u32 m0, s{sWb}, {slot*SLOT+1024*i}")
        if P.xw != 6 or (i == 0 and qd == 0): o.append(f"s_add_u32 s31, s{sWsrc}, {(160*qd+8*i)*3456-1024*(i%4)}")
        if P.xw == 1: o.append((f"buffer_load_dwordx4 v{vL16}, {s(SRD_C,4)}, 0 offen offset:{1024*(i%4)} lds", ("w1", qd)))
        elif P.xw == 4: o.append((f"buffer_load_dwordx4 v{vWa}, {s(SRD_C,4)}, 0 offen offset:{1024*(i%4)} lds", ("w1", qd)))
        else: o.append((f"buffer_load_dwordx4 v{vWb if i&1 else vWa}, {s(SRD_C,4)}, s31 offen offset:{1024*(i%4)} lds", ("w1", qd)))
    return o
def w1_tr(qd, slot, tmp):
    o = [f"v_add_u32 v{tmp}, {slot*SLOT}, v{vTR}"]
    for kk in range(5):
        for mat in range(2):
            for hh in range(2):
                o.append((f"ds_read_b64_tr_b16 {a(8*(5*qd+kk)+4*mat+2*hh,2)}, v{tmp} offset:{mat*20480+(32*kk+4*hh)*128}", "tr"))
    return o

CS = 4576; C_XR = 0; C_YS = 18304; C_HC = SLOT
vXW, vXR, vHA, vYW, vYR, vYG, vM, vHW = range(12, 20)
cT = 20; vAD = 24; cACC = 28; cB = 60; cK = 188; cY = 220
sKT, sY = 68, 69
def conv_setup(A):
    A(f"s_mul_i32 s{S_ID}, s{S_X}, 20"); A(f"s_add_u32 s{S_ID}, s{S_ID}, s{S_J}")
    A(f"s_lshl_b32 s56, s{S_ID}, 2"); A(f"s_add_u32 s56, s56, s{S_WAVE}")
    A(f"s_lshl_b32 s57, s{S_ID}, 3"); A(f"s_load_dwordx2 s[58:59], {s(P_SD,2)}, s57")
    T1, T2 = 5, 6
    A(f"v_and_b32 v{T1}, 15, v1"); A(f"v_lshrrev_b32 v{T2}, 4, v1")
    A(f"s_mul_i32 s60, s{S_WAVE}, {CS}"); A(f"s_add_u32 s61, s60, {C_XR+480}")
    A(f"v_lshlrev_b32 v{vXR}, 5, v{T1}"); A(f"v_sub_u32 v{vXR}, s61, v{vXR}"); A(f"v_lshl_add_u32 v{vXR}, v{T2}, 4, v{vXR}")
    A(f"s_add_u32 s61, s60, {C_XR+504}"); A(f"v_lshlrev_b32 v{vXW}, 3, v1"); A(f"v_sub_u32 v{vXW}, s61, v{vXW}")
    A(f"s_mul_i32 s64, s{S_WAVE}, 8320"); A(f"s_add_u32 s64, s64, {C_HC}")
    A(f"v_and_b32 v{vHA}, 1, v1"); A(f"v_mul_u32_u24 v{vHA}, 4160, v{vHA}")
    A(f"v_lshrrev_b32 v{vYW}, 1, v{T1}"); A(f"v_lshl_add_u32 v{vHA}, v{vYW}, 2, v{vHA}")
    A(f"v_lshl_add_u32 v{vHA}, v{T2}, 4, v{vHA}"); A(f"v_add3_u32 v{vHA}, v{vHA}, s64, 4")
    A(f"s_mul_i32 s65, s{S_WAVE}, 576"); A(f"s_add_u32 s65, s65, {C_YS}")
    A(f"v_lshlrev_b32 v{vYW}, 5, v{T1}"); A(f"v_lshl_add_u32 v{vYW}, v{T2}, 3, v{vYW}"); A(f"v_add_u32 v{vYW}, s65, v{vYW}")
    A(f"v_bfe_u32 v{vYR}, v1, 2, 2"); A(f"v_mul_u32_u24 v{vYR}, 576, v{vYR}"); A(f"v_lshl_add_u32 v{vYR}, v{T2}, 5, v{vYR}")
    A(f"v_and_b32 v7, 3, v1"); A(f"v_lshl_add_u32 v{vYR}, v7, 3, v{vYR}")
    A(f"s_lshl_b32 s66, s{S_WAVE}, 7"); A(f"s_add_u32 s66, s66, {C_YS}"); A(f"v_add_u32 v{vYR}, s66, v{vYR}")
    A(f"s_mul_i32 s{sY}, s{S_WAVE}, {8*20480}"); A(f"s_lshl_b32 s66, s{S_ID}, 7"); A(f"s_add_u32 s{sY}, s{sY}, s66"); A(f"s_add_u32 s{sY}, s{sY}, {WS_YT}")
    A(f"s_lshl_b32 s{sKT}, s56, 10"); A(f"s_add_u32 s{sKT}, s{sKT}, {WS_KT}")
    A(f"s_mov_b32 s{S_PM}, 0x07060302"); A(f"v_mov_b32 v{vM}, 0xffff")
    for i in range(4): A(f"v_mov_b32 v{cT+i}, 0")
    A(f"v_add_u32 v7, s60, v{vL16}"); A(f"v_add_u32 v{vHW}, s64, v{vL16}")
    A("s_mov_b64 exec, 0x3fffffff"); A(f"ds_write_b128 v7, {v(cT,4)} offset:{C_XR+4096}")
    A("s_mov_b64 exec, 3"); A(f"ds_write_b128 v{vHW}, {v(cT,4)}"); A(f"ds_write_b128 v{vHW}, {v(cT,4)} offset:4160"); A("s_mov_b64 exec, -1")
    A(f"v_lshl_add_u32 v{T1}, v{T2}, 3, v{T1}"); A(f"v_sub_u32 v{T1}, 15, v{T1}")
    A(f"v_and_b32 v{T2}, 1, v{T1}"); A(f"v_lshlrev_b32 v{cACC+1}, 4, v{T2}"); A(f"v_ashrrev_i32 v{cACC}, 1, v{T1}")

def tagcheck(regs, tmp):
    o = [f"v_xor_b32 v{tmp}, s{S_TAG16}, v{regs[0]}"]
    for r in regs[1:]: o.append(f"v_bitop3_b32 v{tmp}, v{r}, s{S_TAG16}, v{tmp} bitop3:0xbe")
    return o + [f"v_cmp_ne_u16 vcc, 0, v{tmp}"]

def conv(S, C, tail):
    A = S
    AI = lambda m: 4 * (63 - m)
    def kload(nu): return [f"s_add_u32 s30, s{sKT}, {nu*655360}", (f"buffer_load_dwordx4 {v(cK+4*nu,4)}, v{vL16}, {WS4}, s30 offen sc1", ("k", nu))]
    def aread(m):
        o = 16 * (m % 16)
        return ([f"v_add_u32 v{vHA}, 1024, v{vHA}"] if (m and m % 16 == 0) else []) + [
            (f"ds_read2_b32 {a(AI(m),2)}, v{vHA} offset0:{o} offset1:{o+1}", ("A", m >> 3)), (f"ds_read2_b32 {a(AI(m)+2,2)}, v{vHA} offset0:{o+2} offset1:{o+3}", ("A", m >> 3))]
    MA = P.poll_at
    for m in range(MA):
        if m == MA - P.poll_lead:
            for n2 in range(P.k0): A.extend(kload(n2))
        if m == 7:
            A(f"s_lshl_b32 s30, s{S_WAVE}, 4"); A("s_lshr_b64 s[58:59], s[58:59], s30"); A("s_and_b32 s58, s58, 0xffff")
            A(f"v_lshlrev_b32 v{cACC+1}, v{cACC+1}, s58")
            for j in range(4):
                A(f"v_cmp_eq_u32 vcc, {j}, v{cACC}"); A("s_nop 1"); A(f"v_cndmask_b32 v{vAD+j}, 0, v{cACC+1}, vcc")
        A.extend(aread(m))
    stamp(S.A, C, "c_ab")
    def kvin(nu):
        kd = cK + 4 * nu
        o = [("need", [("k", nu)])] + spin(tail, f"cv{nu}", kload(nu), tagcheck([kd, kd+1, kd+2, kd+3], cT))
        return o + [f"v_perm_b32 v{cT}, v{kd+2}, v{kd+3}, s{S_PM}", f"v_perm_b32 v{cT+1}, v{kd}, v{kd+1}, s{S_PM}", f"ds_write_b64 v{vXW}, {v(cT,2)} offset:{512*(7-nu)}"]
    def bread(li, nu): return [(f"ds_read_b128 {v(cB+32*(li&3)+4*rho,4)}, v{vXR} offset:{512*(7-nu)+64*rho}", ("B", li, rho)) for rho in range(8)]
    A.extend(kvin(0)); A.extend(bread(0, 0))
    for n2 in range(P.k0, 4): A.extend(kload(n2))
    stamp(S.A, C, "c_kv0")
    order = [(0,0),(1,0),(2,0),(1,1),(2,1),(3,0),(2,2),(3,1),(3,2),(3,3)]
    for n, l in ((4, [0,1,2,3,4]), (5, [1,2,3,4,0,5]), (6, [3,4,0,5,1,2,6]), (7, [5,1,2,6,0,3,4,7])): order += [(n, nu) for nu in l]
    mf = []; loads = []; res = {}; lfirst = {}; llast = {}; afirst = {}; done = {}; seen = set()
    for (n, nu) in order:
        if nu not in res:
            li = len(loads); loads.append(nu)
            if li >= 4: del res[loads[li - 4]]
            res[nu] = li
        li = res[nu]; acc = v(cACC + 4 * n, 4); bb = cB + 32 * (li & 3)
        lfirst.setdefault(li, len(mf)); afirst.setdefault(n - nu, len(mf))
        for rho in range(8):
            mf.append(f"v_mfma_f32_16x16x32_bf16 {acc}, {a(AI(8*(n-nu)+rho),4)}, {v(bb+4*rho,4)}, {acc if (n in seen or rho) else 0}")
        seen.add(n)
        if n == nu: mf.append(f"v_mfma_f32_16x16x32_bf16 {acc}, {v(vAD,4)}, {v(bb,4)}, {acc}"); done[n] = len(mf)
        llast[li] = len(mf)
    N = len(mf)
    q1 = Seq(); q2 = Seq(); q3 = Seq(); q4 = Seq(); q5 = Seq(); ev = []
    ev += [(0, ("need", None, [("B", 0, 2)])), (3, ("need", None, [("B", 0, 5)])), (6, ("need", None, [("B", 0, 7)]))]
    for m in range(MA, 64):
        q3.addl(aread(m), 7 + P.astep * (m - MA), dl=min(afirst[m >> 3] - 5, P.adl))
        if m % 8 == 7: ev.append((afirst[m >> 3], ("need", None, [("A", m >> 3)])))
    have = {0}
    for li in range(1, len(loads)):
        nu = loads[li]
        ev.append((lfirst[li], ("need", None, [("B", li, 7)])))
        rd0 = lfirst[li] - 18 if li < 4 else llast[li - 4]
        if nu not in have:
            have.add(nu)
            if nu >= 4: q5.addl([x.replace("s30", "s66") if isinstance(x, str) else (x[0].replace("s30", "s66"), x[1]) for x in kload(nu)], P.k4 + P.k4s * (nu - 4), dl=rd0 - 12)
            q2.addl(kvin(nu), max(0, rd0 - 8))
        q2.addl(bread(li, nu), rd0, 1, dl=lfirst[li] - 1)
    q0 = Seq()
    for g, x in sorted(ev, key=lambda e: e[0]): q0.add(x, g, g)
    gbs = []
    for nu in range(8):
        an = cACC + 4 * nu; y = cY + 2
        q1.addl([f"v_cvt_pk_bf16_f32 v{cY}, v{an}, v{an+1}", f"v_cvt_pk_bf16_f32 v{cY+1}, v{an+2}, v{an+3}", (f"ds_write_b64 v{vYW}, {v(cY,2)} offset:{2304*(nu&1)}", "yw")], min(done[nu] + 3, N))
        d1, d2 = (P.e1, P.e2) if nu < 3 else (P.d1, P.d2)
        gb = min(done[nu] + 4 + d1, N); gbs.append(gb)
        q1.add(("need", [("w1", 2)] if (P.cw1 and nu == 7) else None, ["yw", ("A", 7)] if gb > P.adl else ["yw"]), gb)
        q1.add("s_barrier", gb, gb)
        q1.add((f"ds_read_b64_tr_b16 {v(y,2)}, v{vYR} offset:{2304*(nu&1)}", "yr"), gb, gb)
        if nu == 7 and P.cw1: q1.addl(w1_tr(0, 3, cT + 2), N)
        q1.addl([("need", None, ["yr"]),
            f"v_lshl_or_b32 v{y+2}, v{y}, 16, s{S_TAG16}", f"v_bfi_b32 v{y+3}, v{vM}, s{S_TAG16}, v{y}",
            f"v_lshl_or_b32 v{y+4}, v{y+1}, 16, s{S_TAG16}", f"v_bfi_b32 v{y+5}, v{vM}, s{S_TAG16}, v{y+1}",
            (f"buffer_store_dwordx4 {v(y+2,4)}, v{vYG}, {WS4}, s{sY} offen sc1", "yst"), f"s_add_u32 s{sY}, s{sY}, {32*20480}",
            ("call", lambda nu=nu: stamp(S.A, C, f"c_s{nu}"))], min(gb + d2, N))
    g = float(P.w1g0)
    for qd, sl in enumerate([3, 2, 1] if P.cw1 else []):
        assert g > gbs[0] + 2
        if qd == 2: assert g > [b for b in gbs if b > P.adl][0] + 2, (g, gbs)
        g = q4.addl(w1_dma(qd, sl), g, (P.w1g1 - P.w1g0) / 30, dl=N - 1, stepon=isvm)
    A.extend(schedule(mf, [q0, q1, q2, q5, q3, q4]))
    if P.cw1:
        assert S.vm.count(("w1", 2)) == 10
        A.need(None, 0); A("s_barrier")
        A.extend(w1_dma(3, 0)); A.extend(w1_tr(2, 1, cT + 2)); A.extend(w1_tr(1, 2, cT + 3))
        A.need([("w1", 3)], 0); A("s_barrier"); A.extend(w1_tr(3, 0, cT + 2))
        stamp(S.A, C, "c_w1")

def repack(A, more, nmore):
    srd(A, SRD_A, P_WD, NB_W)
    A(f"s_mul_i32 s48, s{S_ID}, 40960"); A(f"s_add_u32 s48, s48, s{sWb}")
    for i in range(10):
        if i % 4 == 0: A(f"s_add_u32 m0, s{sWb}, {1024*i}"); A(f"s_add_u32 s50, s48, {1024*i}")
        A(f"buffer_load_dwordx4 v{vL16}, {s(SRD_A,4)}, s50 offen offset:{1024*(i%4)} lds")
    more()
    A("v_lshrrev_b32 v3, 4, v1"); A("v_bfe_u32 v4, v1, 2, 2"); A("v_lshl_add_u32 v3, v3, 3, v4"); A("v_mul_u32_u24 v3, 1280, v3")
    A("v_and_b32 v4, 3, v1"); A("v_lshl_add_u32 v3, v4, 3, v3"); A(f"s_mul_i32 s50, s{S_WAVE}, 320"); A("v_add_u32 v3, s50, v3")
    A(f"s_mul_i32 s50, s{S_WAVE}, 108"); A(f"s_add_u32 s50, s50, s{S_ID}"); A("s_mul_i32 s50, s50, 5120"); A(f"s_add_u32 s50, s50, {WS_W2F}")
    A(f"s_waitcnt vmcnt({nmore})"); A("s_barrier")
    for i in range(10):
        A(f"ds_read_b64_tr_b16 {v(12+4*i,2)}, v3 offset:{32*i}"); A(f"ds_read_b64_tr_b16 {v(14+4*i,2)}, v3 offset:{32*i+5120}")
    for i in range(10):
        if i == 4 or i == 9: A("s_add_u32 s50, s50, 4096")
        if i == 5: A(f"s_add_u32 s50, s50, {54*5120-4096}")
        A(f"s_waitcnt lgkmcnt({min(14, 18-2*i)})")
        A(f"buffer_store_dwordx4 {v(12+4*i,4)}, v{vL16}, {WS4}, s50 offen offset:{1024*((i%5)%4)} sc1")

R_XB = 69632; R_PX = 86016; R_ST = 91136; R_PM = 92160
def sums(xs, vS):
    o = [".p2align 3", f"v_pk_add_f32 {v(vS,2)}, {v(xs,2)}, {v(xs+2,2)}", f"v_pk_mul_f32 {v(vS+2,2)}, {v(xs,2)}, {v(xs,2)}",
         f"v_pk_fma_f32 {v(vS+2,2)}, {v(xs+2,2)}, {v(xs+2,2)}, {v(vS+2,2)}"]
    for i in range(2, 10):
        o += [f"v_pk_add_f32 {v(vS,2)}, {v(vS,2)}, {v(xs+2*i,2)}", f"v_pk_fma_f32 {v(vS+2,2)}, {v(xs+2*i,2)}, {v(xs+2*i,2)}, {v(vS+2,2)}"]
    o += [f"v_add_f32 v{vS}, v{vS}, v{vS+1}", f"v_add_f32 v{vS+1}, v{vS+2}, v{vS+3}",
          f"v_permlane16_swap_b32 v{vS}, v{vS+1}", f"v_add_f32 v{vS}, v{vS}, v{vS+1}",
          f"v_add_f32_dpp v{vS}, v{vS}, v{vS} row_ror:8 row_mask:0xf bank_mask:0xf"]
    return o
def finalize(vS, vP, vF=None):
    inv = struct.unpack("<I", struct.pack("<f", 1.0 / 640))[0]
    eps = struct.unpack("<I", struct.pack("<f", 1e-5))[0]
    o = []
    for b in (vP, vP + 8): o += [f"v_pk_add_f32 {v(b,2)}, {v(b,2)}, {v(b+2,2)}", f"v_pk_add_f32 {v(b+4,2)}, {v(b+4,2)}, {v(b+6,2)}"]
    for b in (vP, vP + 8): o += [f"v_pk_add_f32 {v(b,2)}, {v(b,2)}, {v(b+4,2)}"]
    o += [f"v_add_f32 v{vS}, v{vP}, v{vP+1}", f"v_add_f32 v{vS+1}, v{vP+8}, v{vP+9}",
          f"v_mul_f32 v{vS}, {inv:#x}, v{vS}", f"v_mul_f32 v{vS+1}, {inv:#x}, v{vS+1}",
          f"v_fma_f32 v{vS+1}, -v{vS}, v{vS}, v{vS+1}", f"v_max_f32 v{vS+1}, 0, v{vS+1}",
          f"v_cvt_pk_bf16_f32 v{vS+1}, 0, v{vS+1}", f"v_add_f32 v{vS+1}, {eps:#x}, v{vS+1}", f"v_cvt_pk_bf16_f32 v{vS+1}, 0, v{vS+1}",
          f"v_sqrt_f32 v{vS+1}, v{vS+1}", f"v_cvt_pk_bf16_f32 v{vF or vS}, 0, v{vS}", f"v_cvt_pk_bf16_f32 v{(vF or vS)+1}, 0, v{vS+1}", f"v_rcp_f32 v{vS+1}, v{(vF or vS)+1}",
          f"v_mul_f32 v{vS}, v{vF or vS}, v{vS+1}"]
    return o

def rworker(A, C, tail):
    NW = 40
    vYA, vYB, vLB, vLW, vLR, vFL, vFLn, vXA = range(2, 10)
    vXB, vSR, vrow, vq, vt = 12, 13, 14, 15, 16
    vXr = 20; vSX = 30; vX = 32; vQ = 52; vYr = 72; vS = 92; vPt = 96; vP = 112; vP2 = 124
    sYb, sL, sF, sCnt = 56, 57, 58, 59
    srd(A, 52, P_Q, NB_SD)
    A(f"v_lshrrev_b32 v{vt}, 4, v1"); A(f"v_and_b32 v{vt+1}, 15, v1"); A(f"v_lshlrev_b32 v{vt+2}, 1, v{vt}"); A(f"v_xor_b32 v{vt+1}, v{vt+1}, v{vt+2}")
    A(f"v_mul_u32_u24 v{vt}, 1280, v{vt}"); A(f"v_xor_b32 v{vt+2}, 8, v{vt+1}")
    A(f"v_lshl_add_u32 v{vt+1}, v{vt+1}, 4, v{vt}"); A(f"v_lshl_add_u32 v{vt+2}, v{vt+2}, 4, v{vt}")
    A(f"s_mul_i32 s60, s{S_ID}, 10240"); A(f"s_mul_i32 s61, s{S_WAVE}, {NW*10240}"); A("s_add_u32 s60, s60, s61")
    A(f"s_mul_i32 s61, s{S_WAVE}, 8704"); A(f"s_lshl_b32 s62, s{S_WAVE}, 11")
    def xdma(hf):
        for r in range(8):
            A(f"s_add_u32 m0, s61, {hf*4*8704+r*1088}"); A(f"s_add_u32 s30, s60, {hf*4*NW*10240+r*1280}")
            A(f"buffer_load_dwordx4 v{vL16}, s[52:55], s30 offen lds")
        for h in range(2):
            A(f"s_add_u32 m0, s62, {R_XB+hf*8192+h*1024}"); A(f"s_add_u32 s30, s60, {hf*4*NW*10240+h*5120+1024}")
            A(f"buffer_load_dwordx4 v{vt+1+h}, s[52:55], s30 offen lds")
    xdma(0)
    common_setup(A, 'r'); epoch_finish(A)
    A(f"v_and_b32 v{vrow}, 7, v0"); A(f"v_lshrrev_b32 v{vq}, 3, v0")
    A(f"v_lshlrev_b32 v{vYB}, 4, v{vrow}"); A(f"v_lshl_add_u32 v{vYA}, v{vq}, 8, v{vYB}"); A(f"v_lshl_add_u32 v{vYB}, v{vq}, 7, v{vYB}")
    A(f"v_and_b32 v{vt}, 8, v1"); A(f"v_cmp_eq_u32 vcc, 0, v{vt}"); A(f"v_bfrev_b32 v{vFL}, 1"); A("s_nop 0"); A(f"v_cndmask_b32 v{vLB}, v{vFL}, v{vYB}, vcc")
    A(f"v_cmp_gt_u32 vcc, 8, v1"); A(f"v_mul_u32_u24 v{vXA}, 1088, v{vrow}"); A(f"v_lshl_add_u32 v{vXA}, v{vq}, 4, v{vXA}"); A(f"v_cndmask_b32 v{vFLn}, v{vFL}, v{vL16}, vcc")
    for i in range(4): A(f"v_mov_b32 v{136+i}, v{vTag}")
    A(f"v_lshrrev_b32 v{vt}, 1, v{vq}"); A(f"v_lshlrev_b32 v{vt+3}, 1, v{vrow}"); A(f"v_xor_b32 v{vt}, v{vt}, v{vt+3}"); A(f"v_lshlrev_b32 v{vt}, 4, v{vt}")
    A(f"v_lshl_add_u32 v{vXB}, v{vrow}, 8, v{vt}"); A(f"v_and_b32 v{vt}, 1, v{vq}"); A(f"v_lshl_add_u32 v{vXB}, v{vt}, 3, v{vXB}"); A(f"v_add_u32 v{vXB}, {R_XB}, v{vXB}")
    A(f"v_mul_u32_u24 v{vLR}, 80, v{vrow}"); A(f"v_add_u32 v{vLR}, {R_PX}, v{vLR}")
    A(f"v_bfe_u32 v{vLW}, v1, 4, 1"); A(f"v_lshl_add_u32 v{vLW}, v{vLW}, 5, v{vLR}")
    A(f"v_lshrrev_b32 v{vt}, 5, v1"); A(f"v_lshl_add_u32 v{vLW}, v{vt}, 2, v{vLW}"); A(f"s_lshl_b32 s30, s{S_WAVE}, 3"); A(f"v_add_u32 v{vLW}, s30, v{vLW}")
    A(f"s_mul_i32 s{sYb}, s{S_ID}, 20480"); A(f"s_add_u32 s{sYb}, s{sYb}, {WS_YT}")
    A(f"s_lshr_b32 s{sL}, s{S_ID}, 1"); A(f"s_mul_i32 s{sL}, s{sL}, 20480"); A(f"s_and_b32 s30, s{S_ID}, 1"); A("s_lshl_b32 s30, s30, 7")
    A(f"s_add_u32 s{sL}, s{sL}, s30"); A(f"s_add_u32 s{sL}, s{sL}, {WS_LNF}")
    A(f"s_lshl_b32 s{sF}, s{S_ID}, 10"); A(f"s_add_u32 s{sF}, s{sF}, {FL_LN-NW*1024}")
    xread = [f"ds_read_b128 {v(vXr,4)}, v{vXA}", f"ds_read_b128 {v(vXr+4,4)}, v{vXA} offset:512", f"ds_read_b64 {v(vXr+8,2)}, v{vXB}"]
    xadv = [f"v_add_u32 v{vXA}, 8704, v{vXA}", f"v_add_u32 v{vXB}, 2048, v{vXB}"]
    for hf in range(2):
        A(f"s_waitcnt vmcnt({nt if (hf and P.touch & 2) else 0})"); A("s_barrier"); stamp(A, C, f"r_x{hf}")
        if hf == 0:
            xdma(1)
            if P.touch & 2: nt = w1_touch(A)
        A.extend(xread); A(f"s_mov_b32 s{sCnt}, {3-hf}"); A("s_waitcnt lgkmcnt(0)")
        A.label(f"L_rp{hf}")
        A.extend(xadv); A("s_waitcnt lgkmcnt(1)"); A.extend(unpk(vX, vXr, 10)); A.extend(xread); A.extend(sums(vX, vS))
        A(f"ds_write_b32 v{vLW}, v{vS}"); A(f"v_add_u32 v{vLW}, 640, v{vLW}")
        A(f"s_sub_u32 s{sCnt}, s{sCnt}, 1"); A(f"s_cbranch_scc0 L_rp{hf}")
        A("s_waitcnt lgkmcnt(0)")
    A("s_barrier")
    A(f"v_lshrrev_b32 v{vt}, 3, v1"); A(f"v_mul_u32_u24 v{vt}, 640, v{vt}"); A(f"v_add_u32 v{vt}, v{vt}, v{vLR}")
    for i in range(4): A(f"ds_read_b128 {v(vPt+4*i,4)}, v{vt} offset:{16*i}")
    A(f"v_subrev_u32 v{vXA}, {7*8704}, v{vXA}"); A(f"v_subrev_u32 v{vXB}, {7*2048}, v{vXB}"); A.extend(xread)
    A(f"v_add_u32 v{vLW}, {R_PM-R_PX-7*640}, v{vLW}"); A(f"v_add_u32 v{vLR}, {R_PM-R_PX}, v{vLR}")
    A(f"v_lshlrev_b32 v{vt}, 3, v1"); A(f"v_add_u32 v{vt}, {R_ST}, v{vt}"); A(f"v_lshlrev_b32 v{vSR}, 3, v{vrow}"); A(f"v_add_u32 v{vSR}, {R_ST}, v{vSR}")
    A("s_waitcnt lgkmcnt(3)"); A.extend(finalize(vS, vPt))
    A(f"ds_write_b64 v{vt}, {v(vS,2)}"); A(f"ds_read_b64 {v(vSX,2)}, v{vSR}")
    A(f"s_cmp_lt_u32 s{S_ID}, {256 - 6*NW}"); A(f"s_cselect_b32 s{sCnt}, 6, 5"); A(f"s_mov_b32 s65, 0")
    stamp(A, C, "r_prep"); stamp_flush(A, C)
    NRM = "op_sel:[0,1,0] op_sel_hi:[1,1,0] neg_lo:[0,0,1] neg_hi:[0,0,1]"
    YS = [vYr, 140]
    def yl(par, i, sreg): return f"buffer_load_dwordx4 {v(YS[par]+4*i,4)}, v{vYA if i < 4 else vYB}, {WS4}, s{sreg} offen offset:{128*(i&1) if i < 4 else 0} sc1"
    def yload(par): return [f"s_add_u32 s30, s{sYb}, 8192", f"s_add_u32 s31, s{sYb}, 16384"] + [yl(par, i, (sYb, sYb, 30, 30, 31)[i]) for i in range(5)]
    def ycheck(par):
        Y = YS[par]
        o = [f"v_xor_b32 v{Y+i}, s{S_TAG16}, v{Y+i}" for i in range(20)]
        o += [f"v_or3_b32 v{vt}, v{Y}, v{Y+1}, v{Y+2}", f"v_or3_b32 v{vt+1}, v{Y+3}, v{Y+4}, v{Y+5}"]
        o += [f"v_or3_b32 v{vt+(i&1)}, v{Y+6+2*i}, v{Y+7+2*i}, v{vt+(i&1)}" for i in range(7)]
        return o + [f"v_or_b32 v{vt}, v{vt}, v{vt+1}", f"v_cmp_ne_u16 vcc, 0, v{vt}"]
    def flag(lbl): return ["s_cmp_lg_u32 s66, 0", f"s_cbranch_scc1 {lbl}", f"buffer_store_dwordx4 v[136:139], v{vL16}, {WS4}, s{sF} offen sc1", f"{lbl}:"]
    def nextx(l1=None, l2=None):
        A("s_waitcnt lgkmcnt(0)"); u = unpk(vX, vXr, 10); A.extend(u[:12])
        if l1: A(l1)
        A.extend(u[12:]); A(".p2align 3")
        A.extend([f"v_pk_fma_f32 {v(vQ+2*i,2)}, {v(vX+2*i,2)}, {v(vSX,2)}, {v(vSX,2)} {NRM}" for i in range(8)])
        if l2: A(l2)
        A.extend([f"v_pk_fma_f32 {v(vQ+2*i,2)}, {v(vX+2*i,2)}, {v(vSX,2)}, {v(vSX,2)} {NRM}" for i in range(8, 10)])
        A.extend(xadv + [f"v_add_u32 v{vSR}, 64, v{vSR}"])
    D = NW * 20480
    if P.nor: A("s_endpgm")
    if P.rdelay: A(f"s_sleep {P.rdelay}")
    if P.rhint:
        nextx()
        A(f"v_min_u32 v{vt+2}, {P.rhint-1}, v1"); A(f"s_mul_i32 s30, s{S_WAVE}, {P.rhint}"); A(f"v_add_u32 v{vt+2}, s30, v{vt+2}"); A(f"v_mul_u32_u24 v{vt+2}, {128*(40//P.rhint)}, v{vt+2}")
        A(f"s_mul_i32 s30, s{S_ID}, {128*(40//P.rhint)}"); A("s_mul_hi_u32 s30, s30, 107374183"); A("s_and_b32 s30, s30, 0xffffff80"); A(f"v_add_u32 v{vt+2}, s30, v{vt+2}")
        hl = [f"buffer_load_dword v{vYr}, v{vt+2}, {WS4}, s{sYb} offen sc1"]
        A.extend(hl); A("s_waitcnt vmcnt(0)")
        A.extend(spin(tail, "rh", hl, [f"v_xor_b32 v{vYr}, s{S_TAG16}, v{vYr}", f"v_cmp_ne_u16 vcc, 0, v{vYr}"], P.rsleep))
        stamp(A, C, "r_h0"); A("s_barrier"); stamp(A, C, "r_h1"); A.extend(yload(0)); stamp_flush(A, C)
    else: A.extend(yload(0)); nextx()
    A("s_mov_b32 s66, 1")
    A(f"s_add_u32 s62, s{sYb}, {D}"); A("s_add_u32 s60, s62, 8192"); A("s_add_u32 s61, s62, 16384"); A("s_waitcnt vmcnt(0)")
    A.extend(spin(tail, "ry", yload(0), ycheck(0), P.rsleep))
    for i in range(4): A(yl(1, i, (62, 62, 60, 60)[i]))
    A("s_branch L_ry0b")
    for par in range(2):
        Y = YS[par]
        A.label(f"L_rtop{par}")
        if C.diag: rstamp(A, C, 65, "r_t", par)
        ck = spin(tail, f"ry{par}", yload(par), ycheck(par), P.rsleep)
        A.extend(ck[:8]); A(yl(1 - par, 2, 60)); A.extend(ck[8:24]); A(yl(1 - par, 3, 60)); A.extend(ck[24:])
        if C.diag: rstamp(A, C, 65, "r_y", par)
        A(".p2align 3")
        for i in range(10): A(f"v_pk_fma_f32 {v(vX+2*i,2)}, {v(vQ+2*i,2)}, {v(Y+2*i,2)}, {v(vX+2*i,2)}")
        A(yl(1 - par, 4, 61)); A.extend(sums(vX, vS)); A(f"ds_write_b32 v{vLW}, v{vS}")
        A(f"s_add_u32 s63, s{sL}, 8192"); A(f"s_add_u32 s64, s{sL}, 16384"); A(f"v_xor_b32 v{vLW}, 1024, v{vLW}")
        A(f"s_add_u32 s{sYb}, s{sYb}, {D}"); A(f"s_add_u32 s62, s{sYb}, {D}"); A(f"s_cmp_lt_u32 s{sCnt}, 2"); A(f"s_cselect_b32 s62, {OOB}, s62")
        A("s_add_u32 s60, s62, 8192"); A("s_add_u32 s61, s62, 16384")
        if C.diag: rstamp(A, C, 65, "r_a", par)
        A("s_waitcnt vmcnt(5) lgkmcnt(0)"); A("s_barrier")
        for i in range(4): A(f"ds_read_b128 {v(vPt+4*i,4)}, v{vLR} offset:{16*i}")
        A.extend(xread + [f"ds_read_b64 {v(vSX,2)}, v{vSR}"])
        A.extend(flag(f"L_rnf{par}_"))
        if C.diag: rstamp(A, C, 65, "r_f", par)
        A(f"v_xor_b32 v{vLR}, 1024, v{vLR}")
        A("s_waitcnt lgkmcnt(4)"); A.extend(finalize(vS, vPt, 137)); A(".p2align 3")
        lnv = lambda i: f"v_pk_fma_f32 {v(vQ+2*i,2)}, {v(vX+2*i,2)}, {v(vS,2)}, {v(vS,2)} {NRM}"
        cv = lambda i: f"v_cvt_pk_bf16_f32 v{vP+i}, v{vQ+2*i}, v{vQ+2*i+1}"
        A.extend([lnv(i) for i in range(4)] + [cv(i) for i in range(4)])
        A(f"buffer_store_dwordx4 {v(vP,4)}, v{vYA}, {WS4}, s{sL} offen sc1")
        A.extend([lnv(i) for i in range(4, 10)] + [cv(i) for i in (8, 9, 4, 5, 6, 7)])
        A(f"buffer_store_dwordx4 {v(vP+4,4)}, v{vYA}, {WS4}, s63 offen sc1")
        for k in range(2): A(f"v_mov_b32_dpp v{vP+10+k}, v{vP+8+k} row_shl:8 row_mask:0xf bank_mask:0xf bound_ctrl:0")
        A(f"s_add_u32 s{sL}, s{sL}, {NW*10240}"); A(f"s_add_u32 s{sF}, s{sF}, {NW*1024}"); A(f"s_mov_b32 s66, s{S_WAVE}")
        A(f"buffer_store_dwordx4 {v(vP+8,4)}, v{vLB}, {WS4}, s64 offen sc1")
        if C.diag: rstamp(A, C, 65, "r_l", par)
        nextx(yl(par, 0, 62), yl(par, 1, 62))
        if C.diag: rstamp(A, C, 65, "r_n", par); A("s_add_u32 s65, s65, 1")
        A(f"s_sub_u32 s{sCnt}, s{sCnt}, 1"); A("s_waitcnt vmcnt(5)")
        A("s_cbranch_scc1 L_rdone" if par == 0 else "s_cbranch_scc0 L_rtop0")
    A.label("L_rdone")
    A("s_waitcnt vmcnt(0)"); A("s_barrier"); A.extend(flag("L_rnf2"))
    A(f"s_or_b32 s30, s{S_ID}, s{S_WAVE}"); A("s_cmp_lg_u32 s30, 0"); A("s_cbranch_scc1 L_r_noep")
    A("v_and_b32 v20, 31, v1"); A("v_min_u32 v20, 26, v20"); A("v_lshlrev_b32 v20, 8, v20"); A("v_lshrrev_b32 v21, 5, v1"); A("v_lshl_add_u32 v20, v21, 13, v20")
    A("v_min_u32 v21, 39, v1"); A("v_lshlrev_b32 v21, 10, v21")
    el = []
    for i in range(4): el += [f"s_mov_b32 s30, {FL_HH+16384*i}", f"buffer_load_dword v{24+i}, v20, {WS4}, s30 offen sc1"]
    el += [f"s_mov_b32 s30, {FL_LN}", f"buffer_load_dword v28, v21, {WS4}, s30 offen sc1"]
    ec = [f"v_xor_b32 v22, v{vTag}, v24"] + [f"v_bitop3_b32 v22, v{25+i}, v{vTag}, v22 bitop3:0xbe" for i in range(4)] + ["v_cmp_ne_u32 vcc, 0, v22"]
    A.extend(el); A("s_waitcnt vmcnt(0)"); A.extend(spin(tail, "ep", el, ec, 16))
    A(f"s_mov_b32 s30, {FL_E}"); A(f"buffer_store_dwordx4 v[136:139], v{vFLn}, {WS4}, s30 offen sc1")
    A.label("L_r_noep")
    stamp(A, C, "r_end"); stamp_flush(A, C)

def rstamp(A, C, sCnt, nm, par):
    import re
    for j in range(par, 8, 2):
        if re.fullmatch(C.want, f"{nm}{j}"):
            A(f"s_cmp_lg_u32 s{sCnt}, {j}"); A(f"s_cbranch_scc1 L_st_{nm}{j}")
            stamp(A, C, f"{nm}{j}")
            if not P.cyc: stamp_flush(A, C)
            A.label(f"L_st_{nm}{j}")

vFLa, vPoll, vPA, vLast = 9, 8, 7, 6
def W2(f):
    if f < 40: return v(96 + 4 * f, 4)
    if f < 64: return a(160 + 4 * (f - 40), 4)
    return a(4 * (f - 64), 4)
def g2_setup(A):
    A(f"s_lshr_b32 s{S_RT}, s{S_X}, 1"); A(f"s_lshl_b32 s{S_RT}, s{S_RT}, 3"); A(f"s_lshr_b32 s30, s{S_J}, 2"); A(f"s_add_u32 s{S_RT}, s{S_RT}, s30")
    A(f"s_and_b32 s{S_CB}, s{S_X}, 1"); A(f"s_lshl_b32 s{S_CB}, s{S_CB}, 2"); A(f"s_and_b32 s30, s{S_J}, 3"); A(f"s_add_u32 s{S_CB}, s{S_CB}, s30")
    A(f"s_mul_i32 s{sK0}, s{S_WAVE}, 14"); A(f"s_cmp_eq_u32 s{S_WAVE}, 3"); A(f"s_cselect_b32 s{sK0}, 41, s{sK0}")
    A(f"s_mul_i32 s{sW2}, s{S_CB}, 54"); A(f"s_add_u32 s{sW2}, s{sW2}, s{sK0}"); A(f"s_mul_i32 s{sW2}, s{sW2}, 5120"); A(f"s_add_u32 s{sW2}, s{sW2}, {WS_W2F}")
    A(f"s_mul_i32 s{sHH}, s{S_RT}, 54"); A(f"s_add_u32 s{sHH}, s{sHH}, s{sK0}"); A(f"s_lshl_b32 s{sHH}, s{sHH}, 10"); A(f"s_add_u32 s{sHH}, s{sHH}, {WS_HHF}")
def w2load(f0, f1):
    o = []
    for f in range(f0, f1):
        if f == f0 or f % 4 == 0: o.append(f"s_add_u32 s31, s{sW2}, {1024*(f-f%4)}")
        o.append((f"buffer_load_dwordx4 {W2(f)}, v{vLast if f>=65 else vL16}, {WS4}, s31 offen offset:{1024*(f%4)} sc1", ("w2", f)))
    return o
CMP = lambda r: [f"v_cmp_ne_u32 vcc, v{vTag}, v{r}"]
def w2_poll(tail, name, reg, adr):
    ld = [f"s_mov_b32 s30, {FL_W2}", (f"buffer_load_dword v{reg}, v{adr}, {WS4}, s30 offen sc1", "pw")]
    pre = [f"v_min_u32 v{adr}, 13, v1", f"v_add_u32 v{adr}, s{sK0}, v{adr}", f"v_min_u32 v{adr}, 53, v{adr}", f"v_lshlrev_b32 v{adr}, 7, v{adr}"]
    return pre + ld, [("need", ["pw"])] + spin(tail, name, ld, CMP(reg), 8)
def hh_poll(p2, reg):
    return [f"s_add_u32 s30, s59, {p2*32*8192}", (f"buffer_load_dword v{reg}, v{vPA}, {WS4}, s30 offen sc1", ("hp", p2))]
def hh_polladdr(t0):
    return [f"s_lshr_b32 s59, s{S_RT}, 1", "s_lshl_b32 s59, s59, 5", f"s_lshr_b32 s30, s{sK0}, 1", "s_add_u32 s59, s59, s30", "s_lshl_b32 s59, s59, 1", f"s_and_b32 s30, s{S_X}, 1", "s_add_u32 s59, s59, s30", "s_lshl_b32 s59, s59, 7", f"s_add_u32 s59, s59, {FL_HH}",
            f"v_and_b32 v{vPA}, 31, v1", f"v_min_u32 v{vPA}, 6, v{vPA}", f"v_lshlrev_b32 v{vPA}, 8, v{vPA}", f"v_lshrrev_b32 v{t0}, 5, v1", f"v_lshl_add_u32 v{vPA}, v{t0}, 17, v{vPA}"]

def g1(S, C, tail, NU=8, us=8):
    A = S
    vRD0, vRD1, vST, vT0, vT1 = 2, 3, 5, 4, 6
    vACC = 12; vE = 44; vP = 52; FR = 56
    depth = P.depth; grp = P.grp; ahead = depth - grp
    sSrc, sSt, sNL, sLF, sHF = 50, 51, 52, 53, 54
    SL = [3, 1]
    def lpoll(j): return [f"s_add_u32 s30, s{sLF}, {j*us*4096}", (f"buffer_load_dword v{vPoll}, v{vPA}, {WS4}, s30 offen sc1", ("lp", j))]
    def lcheck(j): return spin(tail, f"g1l{j}", lpoll(j), CMP(vPoll), P.lsleep)
    def dma(j):
        o = []
        for i in range(10):
            if i % 4 == 0: o += [f"s_add_u32 m0, s{sWb}, {SL[j&1]*SLOT+i*1024}", f"s_add_u32 s55, s{sSrc}, {j*us*40960+i*1024}"]
            o.append((f"buffer_load_dwordx4 v{vL16}, {WS4}, s55 offen offset:{(i%4)*1024} sc1 lds", ("ln", j)))
        return o
    def hflag(j): return [f"s_add_u32 s30, s{sHF}, {j*us*8192}", (f"buffer_store_dwordx4 v[92:95], v{vFLa}, {WS4}, s30 offen sc1", "hf")]
    A(f"s_lshl_b32 s{sLF}, s{S_I}, 12"); A(f"s_lshr_b32 s30, s{S_WAVE}, 1"); A("s_lshl_b32 s30, s30, 11"); A(f"s_add_u32 s{sLF}, s{sLF}, s30"); A(f"s_add_u32 s{sLF}, s{sLF}, {FL_LN}")
    A(f"s_lshl_b32 s30, s{S_X}, 7"); A(f"s_add_u32 s{sLF}, s{sLF}, s30")
    A(f"v_min_u32 v{vPA}, 1, v1"); A(f"v_lshlrev_b32 v{vPA}, 10, v{vPA}")
    ld, chk = w2_poll(tail, "g1w2", vT0, vT1)
    if not P.w2u: A.extend(ld)
    A.extend(lpoll(0))
    A(f"s_mul_i32 s{sSt}, s{S_I}, {2*55296}"); A(f"s_lshl_b32 s30, s{S_C}, 11"); A(f"s_add_u32 s{sSt}, s{sSt}, s30")
    A(f"s_lshl_b32 s30, s{S_WAVE}, 9"); A(f"s_add_u32 s{sSt}, s{sSt}, s30"); A(f"s_add_u32 s{sSt}, s{sSt}, {WS_HHF}")
    A(f"s_mul_i32 s{sSrc}, s{S_I}, 40960"); A(f"s_add_u32 s{sSrc}, s{sSrc}, s{sWb}"); A(f"s_add_u32 s{sSrc}, s{sSrc}, {WS_LNF}")
    A(f"s_mov_b32 s{sNL}, 0xbfb8aa3b")
    A(f"s_lshl_b32 s{sHF}, s{S_I}, 5"); A(f"s_add_u32 s{sHF}, s{sHF}, s{S_C}"); A(f"s_lshl_b32 s{sHF}, s{sHF}, 8"); A(f"s_add_u32 s{sHF}, s{sHF}, {FL_HH}")
    A(f"v_bfe_u32 v12, v1, 4, 1"); A(f"v_mul_u32_u24 v{vST}, 55296, v12"); A(f"v_lshrrev_b32 v12, 5, v1"); A(f"v_lshl_add_u32 v{vST}, v12, 8, v{vST}")
    A(f"v_and_b32 v12, 15, v1"); A(f"v_lshl_add_u32 v{vST}, v12, 4, v{vST}")
    A(f"v_cmp_gt_u32 vcc, 16, v0"); A(f"v_bfrev_b32 v{vFLa}, 1"); A(f"v_add_u32 v{vRD0}, {SL[0]*SLOT}, v{vL16}"); A(f"v_cndmask_b32 v{vFLa}, v{vFLa}, v{vL16}, vcc")
    for i in range(4): A(f"v_mov_b32 v{92+i}, v{vTag}")
    A(f"v_add_u32 v{vRD1}, {SL[1]*SLOT}, v{vL16}")
    if P.w2u: P.npre = P.npre0 = 0
    else: A.extend(chk)
    A.extend(w2load(0, P.npre0))
    A.need([("lp", 0)]); A.extend(lcheck(0))
    stamp(S.A, C, "g1_l0")
    A.extend(dma(0)); A.extend(lpoll(1)); A.extend(w2load(P.npre0, P.npre))
    A.need([("lp", 1)], 0); A("s_barrier")
    for i in range(ahead): A((f"ds_read_b128 {v(FR+4*i,4)}, v{vRD0} offset:{i*1024}", ("f", 0, i)))
    A.extend(lcheck(1))
    stamp(S.A, C, "g1_go")
    def epi(j):
        pacc = vACC + 16 * (j & 1)
        G = lambda i: pacc + 8 * (i >> 2) + (i & 3)
        st = [lambda i: f"v_mul_f32 v{vE+i}, s{sNL}, v{G(i)}", lambda i: f"v_exp_f32 v{vE+i}, v{vE+i}", lambda i: f"v_add_f32 v{vE+i}, 1.0, v{vE+i}",
              lambda i: f"v_rcp_f32 v{vE+i}, v{vE+i}", lambda i: f"v_mul_f32 v{vE+i}, v{vE+i}, v{G(i)+4}"]
        prs = []
        for i0 in range(0, 8, 2):
            o = []
            for f in st: o += [f(i0), f(i0 + 1)]
            prs.append(o + [f"v_cvt_pk_bf16_f32 v{vP+i0//2}, v{vE+i0}, v{vE+i0+1}"])
        fin = [f"s_add_u32 s56, s{sSt}, {j*us*2*55296}", f"v_permlane16_swap_b32 v{vP}, v{vP+2}", f"v_permlane16_swap_b32 v{vP+1}, v{vP+3}"]
        return prs, fin, (f"buffer_store_dwordx4 {v(vP,4)}, v{vST}, {WS4}, s56 offen" + ("" if P.g1x & 1 else " sc1"), ("hs", j))
    pend = dma(1); wf = P.npre
    for j in range(NU):
        acc = vACC + 16 * (j & 1); last = j == NU - 1
        mf = []; fr = []
        for st in range(2):
            for k0 in range(0, 20, grp):
                for gu in range(2):
                    for kk in range(k0, k0 + grp):
                        i = st * 20 + kk; ac = acc + 8 * st + 4 * gu
                        mf.append(f"v_mfma_f32_16x16x32_bf16 {v(ac,4)}, {a(8*kk+4*gu,4)}, {v(FR+4*(i%depth),4)}, {'0' if kk == 0 else v(ac,4)}"); fr.append(i)
        n = len(mf)
        last_use = {f: idx for idx, f in enumerate(fr)}
        first_use = {f: idx for idx, f in reversed(list(enumerate(fr)))}
        gb = last_use[40 - depth] + P.gboff
        ev = []
        for nx in range(ahead, 40 if last else 40 + ahead):
            g = (last_use[nx - depth] + 1) if nx >= depth else nx - ahead
            if nx >= 40: g = max(g, gb + nx - 40)
            rv = (vRD0, vRD1)[(j + (nx >= 40)) & 1]
            ev.append((g, 1, (f"ds_read_b128 {v(FR+4*(nx%depth),4)}, v{rv} offset:{(nx%40)*1024}", ("f", j + nx // 40, nx % 40))))
        for f in range(0, 40, P.wev):
            if first_use[f] < gb: ev.append((first_use[f], 0.7, ("need", None, [("f", j, f + P.wev - 1)])))
        ev.append((gb, 0, ("need", [("ln", j + 1), ("lp", j + 2), ("hs", j - 2)], 0))); ev.append((gb, 0.5, "s_barrier"))
        if C.diag:
            ev.append((gb - 8, -1, "s_nop 0")); ev.append((gb - 8, -0.5, ("call", lambda j=j: stamp(S.A, C, f"g1_a{j}"))))
            ev.append((gb, 0.6, ("call", lambda j=j: stamp(S.A, C, f"g1_b{j}"))))
        ev.sort(key=lambda e: (e[0], e[1]))
        q0 = Seq()
        for g, _, x in ev: q0.add(x, g, g)
        q1 = Seq()
        r = q1.addl(pend, 3, 4, dl=gb - 1, stepon=isvm); pend = []
        if j + 2 < NU: r = q1.addl(lpoll(j + 2), r, 4, dl=gb - 1, stepon=isvm)
        if last: r = q1.addl(hh_polladdr(vT0) + hh_poll(0, vPoll), r, 12, stepon=isvm)
        nw = -(-(64 - wf) // (NU - j))
        if P.g1x & 2 or j < P.w2u: nw = 0
        nw = min(nw, P.w2max) if not last else min(64 - wf, 14)
        if j == P.w2u - 1: r = q1.addl(ld, r, 4, dl=gb - 1, stepon=isvm)
        if j == P.w2u and P.w2u: r = q1.addl(chk, r - 2, dl=gb - 1) + 2
        r = q1.addl(w2load(wf, wf + nw), r, 4, dl=gb - 1, stepon=isvm); wf += nw
        r = gb + 1
        if j + 2 < NU:
            q1.addl(lcheck(j + 2), r); r += 2
            pend = dma(j + 2)
            while r < n:
                while not isvm(text(pend[0])): q1.add(pend.pop(0), r)
                q1.add(pend.pop(0), r); r += P.g1_dstep
        q2 = Seq(); qe = []
        if j >= 1:
            prs, fin, stv = epi(j - 1)
            for k, o in enumerate(prs):
                q = Seq(); q.addl(o, 4 + 2 * k, dl=P.epidl); qe.append(q)
            q2.addl(fin, P.epidl + 1); q2.add(stv, P.epidl + 1 if (last or P.stearly) else gb + 1)
        if j >= 2: q2.addl([x.replace("s30", "s57") if isinstance(x, str) else (x[0].replace("s30", "s57"), x[1]) for x in hflag(j - 2)], gb + 1)
        A.extend(schedule(mf, [q0, q1, q2] + qe))
        stamp(S.A, C, f"g1_u{j}")
    prs, fin, stv = epi(NU - 1)
    for k in range(11): A.extend([o[k] for o in prs])
    A.extend(fin); A(stv)
    A(f"s_add_u32 s57, s{sHF}, {(NU-2)*us*8192}"); A(f"s_add_u32 s58, s{sHF}, {(NU-1)*us*8192}")
    P.wdone = wf

def g2(S, C, tail):
    A = S
    vRW, vRR, vO, vHR, vT0, vT1, vPoll2 = 2, 3, 4, 90, 88, 89, 5
    vSA = 91; vSt = 60; sSA = 54
    aHH = 24; aACC = 80; vR = 12; vRes = 44; vTm = 52
    sTm, sO, sHR = 50, 51, 52
    RS = 288; WR = 20 * RS; BUF = 4 * WR
    A(f"s_cmp_ge_u32 s{S_WAVE}, 2"); A(f"s_cselect_b32 s30, {OOB}, 0"); A(f"v_or_b32 v{vLast}, s30, v{vL16}")
    def hload(p, t):
        pre = [f"s_add_u32 s{sTm}, s{sHH}, {p*32*55296+1024*t}"] if t % 4 == 0 else []
        return pre + [(f"buffer_load_dwordx4 {a(aHH+4*t,4)}, v{vLast if t==13 else vL16}, {WS4}, s{sTm} offen offset:{1024*(t%4)} sc1", ("h", p, t))]
    A.need([("hp", 0)]); A.extend(spin(tail, "g2p0", hh_poll(0, vPoll), CMP(vPoll), 8))
    for t in range(14): A.extend(hload(0, t))
    A.extend(w2load(P.wdone, 70))
    srd(S.A, SRD_A, P_OUT, NB_SD)
    A(f"v_lshrrev_b32 v{vT0}, 4, v1"); A(f"v_mul_u32_u24 v{vRW}, {RS}, v{vT0}"); A(f"v_and_b32 v{vT0}, 15, v1"); A(f"v_lshl_add_u32 v{vRW}, v{vT0}, 4, v{vRW}")
    A(f"s_mul_i32 s30, s{S_WAVE}, {WR}"); A(f"v_add_u32 v{vRW}, s30, v{vRW}")
    A(f"v_mul_u32_u24 v{vT0}, 205, v1"); A(f"v_lshrrev_b32 v{vT0}, 11, v{vT0}")
    A(f"v_mul_u32_u24 v{vT1}, 10, v{vT0}"); A(f"v_sub_u32 v{vT1}, v1, v{vT1}")
    A(f"v_and_b32 v{vT0}, 3, v{vT0}"); A(f"s_lshl_b32 s30, s{S_WAVE}, 2"); A(f"v_add_u32 v{vT0}, s30, v{vT0}")
    A(f"v_mul_u32_u24 v{vRR}, {2*RS}, v{vT1}"); A(f"v_lshl_add_u32 v{vRR}, v{vT0}, 4, v{vRR}")
    A(f"v_mul_u32_u24 v{vO}, 1280, v{vT0}"); A(f"v_lshl_add_u32 v{vO}, v{vT1}, 4, v{vO}")
    A(f"v_lshlrev_b32 v{vHR}, 8, v{vT1}"); A(f"v_lshl_add_u32 v{vHR}, v{vT0}, 4, v{vHR}")
    A(f"v_lshrrev_b32 v{vSA}, 3, v{vT0}"); A(f"v_lshlrev_b32 v{vSA}, 10, v{vSA}"); A(f"v_and_b32 v{vT0}, 7, v{vT0}"); A(f"v_lshl_add_u32 v{vSA}, v{vT0}, 4, v{vSA}")
    A(f"s_lshl_b32 s{sSA}, s{S_RT}, 11"); A(f"s_lshl_b32 s30, s{S_X}, 7"); A(f"s_add_u32 s{sSA}, s{sSA}, s30"); A(f"s_add_u32 s{sSA}, s{sSA}, {FL_LN}")
    A(f"v_cmp_gt_u32 vcc, 40, v1"); A(f"v_bfrev_b32 v{vT0}, 1"); A("s_nop 0"); A(f"v_cndmask_b32 v{vO}, v{vT0}, v{vO}, vcc"); A(f"v_cndmask_b32 v{vHR}, v{vT0}, v{vHR}, vcc")
    A(f"s_mul_i32 s{sO}, s{S_RT}, 20480"); A(f"s_mul_i32 s30, s{S_CB}, 2560"); A(f"s_add_u32 s{sHR}, s{sO}, s30"); A(f"s_add_u32 s{sHR}, s{sHR}, {WS_LNF}")
    A(f"s_mul_i32 s30, s{S_CB}, 160"); A(f"s_add_u32 s{sO}, s{sO}, s30")
    S.A(f"s_waitcnt vmcnt({14+70-P.wdone})"); A("s_barrier")
    A(f"buffer_store_dwordx4 v[92:95], v{vFLa}, {WS4}, s58 offen sc1", "hf"); A(f"buffer_store_dwordx4 v[92:95], v{vFLa}, {WS4}, s57 offen sc1", "hf")
    stamp(S.A, C, "g2_go")
    def wr(p): return [(f"ds_write_b128 v{vRW}, {a(aACC+20*(p&1)+4*dt,4)} offset:{(p&1)*BUF+4*RS*dt}", "w") for dt in range(5)]
    def rd(p): return [(f"ds_read_b128 {v(vR+8*w+4*j,4)}, v{vRR} offset:{(p&1)*BUF+WR*w+RS*j}", ("rd", w)) for w in range(4) for j in range(2)]
    def stload(p): return [f"s_add_u32 s55, s{sSA}, {p*65536}", (f"buffer_load_dwordx4 {v(vSt+4*(p&1),4)}, v{vSA}, {WS4}, s55 offen sc1", ("r", p))]
    def fin1(p):
        st = vSt + 4 * (p & 1)
        chk = [f"v_xor_b32 v{vTm}, v{vTag}, v{st}", f"v_bitop3_b32 v{vTm}, v{st+3}, v{vTag}, v{vTm} bitop3:0xbe", f"v_cmp_ne_u32 vcc, 0, v{vTm}"]
        return ([("need", [("r", p)])] + spin(tail, f"g2s{p}", stload(p), chk, 2) + unpk(vTm, vRes + 4 * (p & 1), 4)
                + [f"v_fma_f32 v{vTm+j}, v{vTm+j}, v{st+2}, v{st+1}" for j in range(8)])
    def fin2(p):
        o = []
        for w in range(4):
            o.append(("need", None, [("rd", w)]))
            o += [f"v_add_f32 v{vTm+j}, v{vTm+j}, v{vR+8*w+j}" for j in range(8)]
        o += [f"v_cvt_pk_bf16_f32 v{vR+j}, v{vTm+2*j}, v{vTm+2*j+1}" for j in range(4)]
        return o + [f"s_add_u32 s31, s{sO}, {p*655360}", (f"buffer_store_dwordx4 {v(vR,4)}, v{vO}, {s(SRD_A,4)}, s31 offen", "st")]
    def resload(p): return [f"s_add_u32 s53, s{sHR}, {p*655360}", (f"buffer_load_dwordx4 {v(vRes+4*(p&1),4)}, v{vHR}, {WS4}, s53 offen sc1", ("r", p))]
    for p in range(4):
        acc = aACC + 20 * (p & 1)
        mf = [f"v_mfma_f32_16x16x32_bf16 {a(acc+4*dt,4)}, {W2(5*t+dt)}, {a(aHH+4*t,4)}, {'0' if t == 0 else a(acc+4*dt,4)}" for t in range(14) for dt in range(5)]
        q0 = Seq()
        for t in range(15):
            if t < 14: q0.add(("need", [("h", p, t)] + ([("w2", f) for f in range(5*t+5)] if p == 0 else [])), 5 * t, 5 * t)
            if t == 1 and p in (1, 2):
                q0.addl([("need", [("hp", 1)])] + spin(tail, f"g2p{p+1}", hh_poll(1, vPoll2), CMP(vPoll2) + (["s_nop 0", "s_lshl_b64 vcc, vcc, 32"] if p == 1 else []), 2), 5)
            if t >= 1 and p < 3: q0.addl(hload(p + 1, t - 1), 5 * t)
        q1 = Seq(); q1.addl(resload(p), 2); q1.addl(stload(p), 7, dl=10)
        if p in (0, 1): q1.addl(hh_poll(1, vPoll2), P.g2_pollgap)
        q2 = Seq(); q3 = Seq()
        if p > 0:
            q2.addl(wr(p - 1), 4, 4); q2.add(("need", None, ["w"]), 29); q2.add("s_barrier", 29); q2.addl(rd(p - 1), 30, 1)
            q2.addl(fin2(p - 1), 42)
            q3.addl(fin1(p - 1), 12, dl=40)
        A.extend(schedule(mf, [q0, q1, q2, q3]))
        stamp(S.A, C, f"g2_p{p}")
    A.extend(fin1(3)); A.extend(wr(3)); A.need(None, 0); A("s_barrier"); A.extend(rd(3)); A.extend(fin2(3))
    stamp(S.A, C, "g2_end")
P.g2_pollgap = 22

def build(diag):
    C = Ctx(diag)
    A = Asm(); tail = Asm()
    start(A, C)
    p0(A, C)
    S = Stream(A)
    if diag: A("s_mov_b32 s101, 0")
    conv(S, C, tail)
    stamp_flush(A, C)
    A.label("L_g1")
    g1(S, C, tail)
    stamp_flush(A, C)
    A.label("L_g2")
    g2(S, C, tail)
    stamps_out(A, C, "s101", 15, "f")
    A.label("L_end"); A("s_endpgm")
    A.label("L_nc")
    A("s_and_b32 s53, s53, 0xffff"); A("s_mov_b32 s54, L_code_end-L_pc"); A("s_mov_b32 s55, 0x20000")
    A(f"s_sub_u32 s30, s{S_J}, 20"); A("s_and_b32 s30, s30, 15"); A("s_lshl_b32 s30, s30, 7"); A("v_mul_u32_u24 v9, 1536, v0")
    A("buffer_load_dword v253, v9, s[52:55], s30 offen")
    if P.norole: A("s_endpgm")
    w1_touch_setup(A)
    A("s_waitcnt lgkmcnt(0)"); stamp(A, C, -1)
    epoch_load(A)
    if P.hold: A("s_waitcnt vmcnt(0)")
    A(f"s_cmp_ge_u32 s{S_J}, 27"); A("s_cbranch_scc1 L_nf")
    if diag: A("s_mov_b32 s101, 1")
    if P.touch & 1 and not P.ford: w1_touch(A)
    common_setup(A, 'f')
    A(f"s_sub_u32 s{S_ID}, s2, 160"); A(f"s_min_u32 s{S_ID}, s{S_ID}, 53")
    S = Stream(A)
    def flagregs():
        A("v_cmp_gt_u32 vcc, 8, v0"); A(f"v_bfrev_b32 v{vFLa}, 1"); A(f"s_lshl_b32 s51, s{S_ID}, 7"); A(f"v_cndmask_b32 v{vFLa}, v{vFLa}, v{vL16}, vcc")
        for i in range(4): A(f"v_mov_b32 v{92+i}, v{vTag}")
        A(f"s_add_u32 s51, s51, {FL_W2}")
    if P.fw1 < 3:
        def more():
            if P.touch & 1 and P.ford: w1_touch(A)
            for qd, sl in enumerate([1, 3][:P.fw1]): S.extend(w1_dma(qd, sl))
            epoch_finish(A)
        repack(A, more, 10 * P.fw1 + (2 if (P.touch & 1 and P.ford) else 0))
        flagregs()
        for qd, sl in list(enumerate([1, 3, 2]))[P.fw1:]: S.extend(w1_dma(qd, sl))
        A(f"s_waitcnt vmcnt({30-10*P.fw1})"); A("s_barrier")
        S(f"buffer_store_dwordx4 v[92:95], v{vFLa}, {WS4}, s51 offen sc1")
        stamp(A, C, "f_rp")
        S.extend(w1_dma(3, 0))
        for qd, sl in enumerate([1, 3, 2, 0]):
            if qd >= P.fw1: S.need([("w1", qd)], 0); A("s_barrier")
            S.extend(w1_tr(qd, sl, 2))
    else:
        S.extend(w1_dma(0, 0)); S.extend(w1_dma(1, 1)); epoch_finish(A); flagregs()
        S.need([("w1", 0)]); A("s_barrier"); S.extend(w1_tr(0, 0, 2)); S.extend(w1_dma(2, 3)); S.extend(w1_dma(3, 2))
        S.need([("w1", 1)], 0); A("s_barrier"); stamp(A, C, "f_q1")
        def more():
            S.extend(w1_tr(1, 1, 2)); A("s_waitcnt vmcnt(10)"); A("s_barrier"); stamp(A, C, "f_q3"); S.extend(w1_tr(2, 3, 2)); S.extend(w1_tr(3, 2, 5)); A("s_waitcnt lgkmcnt(0)")
        repack(A, more, 0)
        A("s_waitcnt vmcnt(0)"); A("s_barrier")
        S(f"buffer_store_dwordx4 v[92:95], v{vFLa}, {WS4}, s51 offen sc1")
    stamp(A, C, "f_w1"); stamp_flush(A, C)
    A("s_branch L_g1")
    A.label("L_nf")
    if P.only: A("s_endpgm")
    if diag: A("s_mov_b32 s101, 2")
    A(f"s_sub_u32 s{S_ID}, s2, 216")
    rworker(A, C, tail)
    A("s_waitcnt vmcnt(0)")
    S = Stream(A)
    ld, chk = w2_poll(tail, "msw2", 88, 89)
    S.extend(ld); S.extend(chk)
    S.extend(w2load(0, 32)); A("s_waitcnt vmcnt(16)"); S.extend(w2load(32, P.wdone))
    A(f"v_bfrev_b32 v{vFLa}, 1"); A("s_mov_b32 s57, 0"); A("s_mov_b32 s58, 0")
    S.extend(hh_polladdr(88)); S.extend(hh_poll(0, vPoll))
    A("s_waitcnt vmcnt(0)")
    A("s_branch L_g2")
    A.lines += tail.lines
    A.label("L_code_end")
    A.lines = hazcheck.autopad(A.lines, "f")
    errs = hazcheck.check(A.lines, "f")
    assert not errs or P.kill
    txt = module([], [(NAME, A, 256, 256)])
    if P.sw: txt = txt.replace("s_cmp_lg_u32 s3, 0\n    s_cbranch_scc1 L_nost_f", f"s_cmp_lg_u32 s3, {P.sw}\n    s_cbranch_scc1 L_nost_f")
    if P.cyc: txt = txt.replace("s_memrealtime", "s_memtime")
    return "; @launch grid=(256,1,1) block=(256,1,1) lds=163840\n" + (f"; stamps: start {' '.join(C.names)}\n" if diag else "") + txt

DIAGS = {"all": "p0_ld|c_kv0|c_s0|c_s7|r_prep|r_y0|r_l0|r_end|g1_l0|g1_go|g1_u7|g2_go|g2_p3|g2_end",
         "cv": "p0_[ls].|c_.*", "r1": "r_x.|r_prep|r_[yl][015]|r_f[125]|r_end", "g1": "g1_[lgu].*|c_s7|f_.*", "g2": "g1_u7|g2_.*", "r3": "r_[a-w,y]3|r_end", "r0": "r_[a-w,y]0|r_end", "fe": "p0_ld|c_kv0|c_s[0347]|c_w1|f_..|r_prep|r_y0|g1_go", "ch": "c_s[07]|r_x.|r_prep|r_[yl][01]|r_f[12]|g1_l0|g1_go", "y0": "c_kv0|c_s[013]|c_ack|r_prep|r_h.|r_[yl]0|r_f1|g1_l0", "gu": "g1_[abu][3456]", "gg": "g1_go|g1_u[0-7]|g2_go|g2_p."}
if __name__ == "__main__":
    pref = "k"; which = ""
    for o in sys.argv[1:]:
        k, val = o.split("=")
        if k == "pref": pref = val
        elif k == "which": which = val
        elif k in ("cnt", "tlbr"): setattr(P, k, val)
        else: setattr(P, k, float(val) if "." in val else int(val))
    for k, w in DIAGS.items():
        if which in ("", k): open(f"{pref}_{k}.s", "w").write(build(w))
    if which in ("", "rel"): open(f"{pref}.s", "w").write(build(False))
```

```python
import re

REG = re.compile(r"^(-?)(abs\()?([vas])(\d+|\[(\d+):(\d+)\])\)?$")
TRANS = ("v_exp_f32", "v_log_f32", "v_rcp_f32", "v_rsq_f32", "v_sqrt_f32", "v_sin_f32", "v_cos_f32", "v_rcp_iflag_f32")

def regs(tok):
    tok = tok.strip()
    if tok in ("vcc",): return {("s", "vcc")}
    if tok in ("m0",): return {("s", "m0")}
    if tok in ("exec",): return {("s", "exec")}
    m = REG.match(tok)
    if not m: return set()
    k = m.group(3)
    if m.group(5) is not None:
        return {(k, i) for i in range(int(m.group(5)), int(m.group(6)) + 1)}
    return {(k, int(m.group(4)))}

class I:
    pass

def parse(line):
    line = line.split(";")[0].strip()
    if not line or line.endswith(":") or line.startswith("."): return None
    parts = line.split(None, 1)
    op = parts[0]; rest = parts[1] if len(parts) > 1 else ""
    toks = [t.strip() for t in rest.split(",")] if rest else []
    mods = ""
    if toks:
        rest2 = re.sub(r"(op_sel|op_sel_hi|neg_lo|neg_hi|quad_perm):\[[^\]]*\]", lambda m: m.group(0).replace(",", "|"), rest)
        toks = [t.strip() for t in rest2.split(",")]
        last = toks[-1].split()
        toks[-1] = last[0] if last else ""
        mods = " ".join(last[1:])
    ins = I(); ins.op = op; ins.line = line; ins.mods = mods; ins.toks = toks
    R = [regs(t) for t in toks]
    U = lambda L: set().union(*L) if L else set()
    ins.kind = "other"; ins.w = set(); ins.r = set(); ins.srcC = set(); ins.srcAB = set(); ins.data = set()
    if op.startswith("v_mfma"):
        ins.kind = "mfma"; ins.w = R[0]; ins.srcAB = R[1] | R[2]; ins.srcC = R[3]; ins.r = ins.srcAB | ins.srcC
        ins.passes = 8 if "32x32x16" in op else 4
    elif op.startswith("buffer_") or op.startswith("global_"):
        ins.kind = "vmem"
        if "lds" in mods.split() or op.startswith("global_load_lds"):
            ins.r = U(R) | {("s", "m0")}; ins.dma = True
        elif "load" in op:
            ins.w = R[0]; ins.r = U(R[1:])
        elif "atomic" in op:
            ins.r = U(R)
            if "sc0" in mods.split(): ins.w = R[0]
        elif "store" in op:
            ins.r = U(R)
            ins.data = R[0] if op.startswith("buffer_") else R[1]
            ins.wide = ("x3" in op or "x4" in op)
        else:
            ins.r = U(R)
    elif op.startswith("ds_"):
        ins.kind = "ds"
        if "read" in op or "bpermute" in op or "permute" in op or "swizzle" in op:
            ins.w = R[0]; ins.r = U(R[1:])
            if "d16" in op: ins.r |= R[0]
        else:
            ins.r = U(R)
    elif op.startswith("s_load") or op.startswith("s_buffer_load") or op.startswith("s_memtime") or op.startswith("s_memrealtime"):
        ins.kind = "smem"; ins.w = R[0]; ins.r = U(R[1:])
    elif op.startswith("s_waitcnt"):
        ins.kind = "wait"
        m = re.search(r"vmcnt\((\d+)\)", line); ins.vm = int(m.group(1)) if m else None
        m = re.search(r"lgkmcnt\((\d+)\)", line); ins.lg = int(m.group(1)) if m else None
    elif op == "s_nop":
        ins.kind = "nop"; ins.n = int(toks[0], 0) + 1
    elif op.startswith("s_cmp") or op.startswith("s_bitcmp"):
        ins.kind = "salu"; ins.r = U(R)
    elif op.startswith("s_cbranch") or op in ("s_branch", "s_barrier", "s_endpgm", "s_sleep", "s_setprio"):
        ins.kind = "ctl"
        if "vcc" in op: ins.r = {("s", "vcc")}
    elif op.startswith("s_"):
        ins.kind = "salu"; ins.w = R[0] if R else set(); ins.r = U(R[1:])
        if "saveexec" in op: ins.w = ins.w | {("s", "exec")}
        if op in ("s_addk_i32", "s_mulk_i32"): ins.r |= R[0]
    elif op.startswith("v_"):
        ins.kind = "valu"
        ins.w = R[0]; ins.r = U(R[1:])
        if "_co_" in op: ins.w = R[0] | R[1]; ins.r = U(R[2:])
        if op.startswith("v_fmac") or op.startswith("v_dot2c") or op.startswith("v_writelane"): ins.r |= R[0]
        ins.dpp = "_dpp" in op
        if ins.dpp: ins.r |= R[0]
        ins.perm = op.startswith("v_permlane")
        if ins.perm: ins.w = R[0] | R[1]; ins.r = R[0] | R[1]
        ins.trans = any(op.startswith(t) for t in TRANS)
        ins.rdl = op.startswith("v_readlane") or op.startswith("v_readfirstlane")
        ins.sdwa = "_sdwa" in op
    else:
        raise ValueError("unknown op " + line)
    return ins

def autopad(lines, name=""):
    out = []
    check(lines, name, verbose=False, fix=out)
    isM = lambda l: l.startswith("v_mfma")
    res = list(out); i = 0
    while i < len(res):
        l = res[i]
        if l.startswith("s_nop") and l.endswith(";pad") and int(l.split()[1]) >= 1 and isM(res[i-1]):
            rem = int(l.split()[1]); j = i - 1; trial = list(res)
            while rem > 0 and isM(trial[j]) and isM(trial[j-1]):
                k = min(rem, 3); trial.insert(j, f"s_nop {k-1}"); rem -= k; j -= 1
            added = len(trial) - len(res)
            if added:
                trial[i + added] = f"s_nop {rem}"
                lo = max(0, i - 60)
                if not [e for e in check(trial[lo:i + added + 30], name, verbose=False) if " needs " in e]:
                    res = trial; i += added
        i += 1
    return res

def check(lines, name="", verbose=True, fix=None):
    errs = []
    prog = []
    for l in lines:
        p = parse(l)
        if p is None:
            p = I(); p.kind = "label"; p.line = l
        p.raw = l
        prog.append(p)
    pos = 0
    hist = []
    vmq = []; lgq = []; smem_pending = []
    def err(ins, msg):
        errs.append(f"[{name}] {msg}: {ins.line}")
    for ins in prog:
        if ins.kind == "label":
            if fix is not None: fix.append(ins.raw)
            continue
        short = 0
        if ins.kind == "wait":
            if ins.vm is not None:
                while len(vmq) > ins.vm: vmq.pop(0)
            if ins.lg is not None:
                if ins.lg == 0: lgq.clear()
                else:
                    ds = [q for q in lgq if q.kind == "ds"]
                    for q in ds[:max(0, len(ds) - ins.lg)]: lgq.remove(q)
        touch = ins.r | ins.w
        for q in vmq + lgq:
            if q.w & touch:
                if (q.w & ins.r) or not (ins.kind == q.kind and ins.kind != "smem"):
                    err(ins, f"uses reg with load in flight ({q.line})")
        for (p, h) in reversed(hist):
            d = pos - p
            if d >= 20: break
            need = 0; why = ""
            vw = {x for x in h.w if x[0] in "va"}; sw = {x for x in h.w if x[0] == "s"}
            if h.kind == "valu":
                if ins.kind == "mfma" and vw & ins.r: need, why = 2, "valu->mfma"
                if ins.kind == "valu":
                    if h.trans and not ins.trans and vw & ins.r: need, why = max(need, 1), "trans->valu"
                    if ins.dpp and vw & ins.r: need, why = 2, "valu->dpp"
                    if ins.perm and vw & ins.r: need, why = 2, "valu->permlane"
                    if ins.rdl and vw & ins.r: need, why = max(need, 1), "valu->readlane"
                    if sw & ins.r: need, why = 2, "valu sgpr->valu"
                    if sw & ins.r and (ins.op.startswith("v_readlane") or ins.op.startswith("v_writelane")): need = 4
                    if h.sdwa and vw & ins.r: need, why = max(need, 1), "sdwa->valu"
                if ins.kind == "vmem" and sw & ins.r: need, why = 5, "valu sgpr->vmem"
                if ins.kind in ("salu", "ctl") and sw & ins.r: need, why = 1, "valu sgpr->salu(pad)"
            if h.kind == "mfma":
                big = h.passes == 8
                if ins.kind == "mfma":
                    if h.w & ins.srcAB: need, why = (12 if big else 8), "mfma->mfma AB"
                    elif h.w & ins.srcC and (h.w != ins.srcC or h.passes != ins.passes): need, why = (10 if big else 6), "mfma->mfma C overlap"
                    elif h.w & ins.w and h.w != ins.srcC: need, why = (10 if big else 6), "mfma->mfma WAW"
                elif ins.kind in ("valu", "vmem", "ds") and h.w & touch: need, why = (12 if big else 8), "mfma D->use"
                elif ins.kind == "valu" and h.srcC & ins.w: need, why = (7 if big else 3), "mfma C WAR"
            if h.kind == "salu" and ("s", "m0") in h.w and ins.kind == "vmem" and getattr(ins, "dma", False): need, why = 1, "m0->dma"
            if h.kind == "vmem" and getattr(h, "wide", False) and h.data & ins.w: need, why = 2, "wide store WAR"
            if d < need:
                short = max(short, need - d)
                if fix is None: err(ins, f"{why} needs {need} got {d} (after {h.line})")
        if fix is not None:
            if short:
                fix.append(f"s_nop {short-1} ;pad"); pos += short
            fix.append(ins.raw)
        if ins.kind == "vmem": vmq.append(ins)
        if ins.kind in ("ds", "smem") and not ins.op.startswith("s_mem") and ";nowait" not in ins.raw: lgq.append(ins)
        if len(vmq) > 63: err(ins, "more than 63 vmem outstanding (count saturates)")
        n = ins.n if ins.kind == "nop" else 1
        pos += n
        hist.append((pos, ins))
        if len(hist) > 40: hist.pop(0)
    if verbose:
        for e in errs[:40]: print(e)
    return errs
```

```python
import sys, struct
from asmlib import *
from phases import (Ctx, stamp, stamp_flush, stamps_out, WS_LNF, WS_HR, WS_HHF, WS_W2F, WS_SIZE, OOB, NB_SD, NB_W,
                    P_Q, P_K, P_V, P_SH, P_SK, P_SD, P_BX, P_WG, P_WU, P_WD, P_OUT, P_DBG, P_WS, S_WAVE, SRD_A, SRD_B, SRD_C, SRD_WS)
from sched import *
import hazcheck
NAME = "sequential_preLN__ssm_conv_h3__glu_gated_glu__prompt_kernel"

WS_KT = 24 << 20
WS_YT = 32 << 20
WS_FL = 40 << 20
FL_E = WS_FL
FL_W2 = WS_FL + 0x1000
FL_LN = WS_FL + 0x100000
FL_HH = WS_FL + 0x40000
S_TAG32, S_TAG16, S_TAGF, S_X, S_J, S_SPIN = 100, 99, 98, 97, 96, 95
S_MSK, S_PM = 26, 27
sWsrc, sWb, sW2, sHH, sK0, S_CB, S_RT, S_I, S_C, S_ID = range(70, 80)
SPIN_MAX = 1 << 14
vL16, vTag = 10, 11
WS4 = s(SRD_WS, 4)
SLOT = 40960

class P:
    poll_at = 64
    poll_lead = 16
    w1step = 4.5
    npre = 0
    npre0 = 0
    g1_dstep = 4
    g1_wstep = 4
    xall = 1
    touch = 0
    cw1 = 1
    xw = 0
    rpre = 1
    m45 = 0
    g2g = 2
    mg = 2
    quiet = 0
    pair = 1
    rdel0 = 0
    mk = 24
    bt = 0
    sglc = 1
    cs0 = 0
    cs1 = 0
    fdelay = 0
    bpos = 1
    m1 = 56
    kpos = 0
    rg2 = 1
    wst = 1
    pl1 = 24
    pw = 1
    npw = 3
    fd = 58
    nfx = 2
    c2 = 1
    c3 = 20
    pl3 = 28
    plv = 64
    ud = 6
    gs0 = 0
    gs1 = 0
    ntail = 4
    wsp = 2
    fdw = 1
    fearly = 2
    rdstep = 1
    ab = 0
    bx = 276
    lp0 = 276
    hstep = 4
    hext = 0
    gflag = 60
    epil = 20
    eearly = 1
    x1 = 3
    x2 = 60
    x3 = 44
    x4 = 30
    pl = 36
    pl2 = 30
    xw2 = 590
    g2step = 3
    astep = 3
    adl = 94
    k4s = 12
    ack = -1
    tlb = 0
    tlbr = 'crf'
    hpos = 1
    hold = 2
    wlate = 1
    nor = 0
    rdelay = 0
    hearly = 0
    ford = 0
    k0 = 4
    k4 = 100
    tg = 60
    b0 = 150
    b1 = 190
    e1 = 7
    e2 = 6
    lsleep = 2
    nofree = 0
    w2max = 8
    rhint = 4
    rsleep = 1
    rhb = 1
    w2u = 1
    t2 = 0
    fw1 = 3
    w1g0 = 90
    w1g1 = 250
    cnt = ''
    g1x = 0
    ni = 8
    kburst = 3
    klead = 80
    rdlead = 24
    xtouch = 3
    tr1 = 51
    w1g2 = 0
    d1 = 12
    d2 = 12
    epidl = 36
    stearly = 1
    only = 0
    depth = 8
    grp = 2
    gboff = 5
    wev = 2
    sw = 0
    kill = 0
    cyc = 0
    rep = 0
    xy = 0
    spin = 1 << 14
    norole = 0

def unpk(dst, src, n):
    o = []
    for i in range(n):
        o += [f"v_lshlrev_b32 v{dst+2*i}, 16, v{src+i}", f"v_and_b32 v{dst+2*i+1}, s{S_MSK}, v{src+i}"]
    return o

def spin(tail, name, load, check, sleep=0, pre=()):
    tail.label(f"L_{name}r"); tail(f"s_mov_b32 s{S_SPIN}, {P.spin}")
    import re
    if P.cnt and re.fullmatch(P.cnt, name): tail("s_add_u32 s94, s94, 1")
    for x in pre: tail(text(x))
    tail.label(f"L_{name}l")
    if sleep: tail(f"s_sleep {sleep}")
    for x in load: tail(text(x))
    tail(f"s_sub_u32 s{S_SPIN}, s{S_SPIN}, 1"); tail("s_waitcnt vmcnt(0)"); tail(f"s_cbranch_scc1 L_{name}b")
    tail.extend(check); tail("s_nop 0"); tail(f"s_cbranch_vccnz L_{name}l"); tail(f"s_branch L_{name}b")
    if P.only: return list(check) + ["s_nop 0", f"L_{name}b:"]
    return list(check) + [f"s_cbranch_vccnz L_{name}r", f"L_{name}b:"]

P0L = 3 * SLOT
P0_K, P0_V, P0_W, P0_WF, P0_T, P0_O = 100, 128, 144, 160, 192, 216
vWa, vWb, vTR = 248, 249, 250

def epoch_load(A):
    A(f"s_add_u32 s30, s{P_WS}, {FL_E}"); A(f"s_addc_u32 s31, s{P_WS+1}, 0"); A(f"s_load_dword s{S_TAG32}, s[30:31], 0")
def common_setup(A, role):
    srd(A, SRD_WS, P_WS, WS_SIZE); A(f"s_mov_b32 s{S_MSK}, 0xffff0000")
    if P.tlb and (role in P.tlbr):
        A(f"v_cmp_gt_u32 vcc, {min(256, (42<<20)>>P.tlb)}, v0"); A(f"v_lshlrev_b32 v7, {P.tlb}, v0"); A(f"s_mov_b32 s30, {(1<<P.tlb)-128}"); A("v_cndmask_b32 v7, v8, v7, vcc")
        A(f"buffer_load_dword v253, v7, {WS4}, s30 offen")
    w1_setup(A); g2_setup(A)
def epoch_finish(A):
    A("s_waitcnt lgkmcnt(0)")
    A(f"s_mul_i32 s{S_TAG32}, s{S_TAG32}, 0x41c64e6d"); A(f"s_add_u32 s{S_TAG32}, s{S_TAG32}, 12345")
    A(f"s_and_b32 s{S_TAG16}, s{S_TAG32}, 0x1fff"); A(f"s_or_b32 s{S_TAG16}, s{S_TAG16}, 0x4000"); A(f"s_lshl_b32 s{S_TAGF}, s{S_TAG16}, 16")
    A(f"v_mov_b32 v{vTag}, s{S_TAG32}"); A(f"s_mov_b32 s4, s{S_TAG32}"); A(f"s_mov_b32 s5, s{S_TAG32}")

def start(A, C):
    stamp(A, C, 0)
    A("s_cmp_ge_u32 s2, 256"); A("s_cbranch_scc1 L_end")
    A("s_load_dwordx16 s[4:19], s[0:1], 0"); A("s_load_dwordx8 s[20:27], s[0:1], 64"); A("s_load_dwordx2 s[28:29], s[0:1], 96")
    A(f"s_and_b32 s{S_X}, s2, 7"); A(f"s_lshr_b32 s{S_J}, s2, 3")
    A("s_getpc_b64 s[52:53]"); A.label("L_pc")
    A("v_lshrrev_b32 v1, 6, v0"); A("v_bfrev_b32 v8, 1")
    A(f"v_readfirstlane_b32 s{S_WAVE}, v1"); A("v_and_b32 v1, 63, v0"); A(f"v_lshlrev_b32 v{vL16}, 4, v1")
    A(f"s_cmp_ge_u32 s{S_J}, {0 if P.only else 20}"); A("s_cbranch_scc1 L_nc")

PST = 17 * 1152
pK, pV, pW, pWF, pT, pO = 100, 114, 124, 132, 148, 172
def p0_loads(S, st):
    o = st * 1024 * 1280; b = st * PST; tg = ("p0", st)
    S(f"s_add_u32 m0, s62, {b}")
    if st: S(f"s_add_u32 s30, s61, {o}")
    S(f"buffer_load_dwordx4 v{5 if st else 14}, {s(SRD_A,4)}, {'s30' if st else 0} offen lds", tg)
    if not st: srd(S.A, SRD_B, P_V, NB_SD)
    for i in range(2):
        S(f"s_add_u32 m0, s62, {b+1152*(9+4*i)}"); S(f"s_add_u32 s30, s60, {o+40960*i}"); S(f"buffer_load_dwordx4 v5, {s(SRD_B,4)}, s30 offen lds", tg)
        if i == 0: S(f"s_add_u32 m0, s62, {b+1152*4}"); S(f"s_add_u32 s30, s61, {o+40960}"); S(f"buffer_load_dwordx4 v5, {s(SRD_A,4)}, s30 offen lds", tg)
    S(f"s_mov_b32 m0, {P0L+b+1152*8}"); S(f"s_add_u32 s30, s57, {o}"); S(f"buffer_load_dwordx4 v6, {s(SRD_A,4)}, s30 offen lds", tg)
def p0_reads(st):
    b = st * PST
    return ([(f"ds_read_b64 {v(pK+2*r,2)}, v{4 if r < 4 else 9} offset:{b+128*(r&3)}", "pk") for r in range(7)] +
            [(f"ds_read_b64 {v(pV+2*r,2)}, v4 offset:{b+9*1152+128*r}", "pv") for r in range(4)])
def p0_compute(st):
    Wf = lambda j, c: pWF + 4 * j + c
    ch = []
    for p in range(2):
        K = pT; acc = pT + 14
        ch.append(([("need", None, ["pk"])] if p == 0 else []) + [x for r in range(7) for x in unpk(K + 2 * r, pK + 2 * r + p, 1)])
        o = [".p2align 3"] + [f"v_pk_mul_f32 {v(acc+2*r,2)}, {v(K+2*r,2)}, {v(Wf(3,2*p),2)}" for r in range(4)]
        for j in (2, 1, 0): o += [f"v_pk_fma_f32 {v(acc+2*r,2)}, {v(K+2*(r+3-j),2)}, {v(Wf(j,2*p),2)}, {v(acc+2*r,2)}" for r in range(4)]
        ch.append(o)
        ch.append(([("need", None, ["pv"])] if p == 0 else []) + [x for r in range(4) for x in unpk(K + 2 * r, pV + 2 * r + p, 1)] + [".p2align 3"] +
                  [f"v_pk_mul_f32 {v(acc+2*r,2)}, {v(acc+2*r,2)}, {v(K+2*r,2)}" for r in range(4)])
        o = []
        for cc in range(2):
            c = 2 * p + cc; oo = pO + 4 * c
            o += [f"v_cvt_pk_bf16_f32 v{oo+r}, s{S_TAGF}, v{acc+2*r+cc}" for r in range(4)]
            o.append((f"buffer_store_dwordx4 {v(oo,4)}, v2, {WS4}, s{48+st} offen offset:{1024*c} sc1", ("p0st", st)))
        ch.append(o)
    return ch
def p0(S, C):
    A = S.A
    A("s_mul_i32 s50, s2, 6554"); A("s_lshr_b32 s50, s50, 16"); A("s_mul_i32 s51, s50, 10"); A("s_sub_u32 s51, s2, s51")
    A("s_mul_i32 s57, s50, 81920"); A("s_lshl_b32 s61, s51, 7"); A("s_add_u32 s57, s57, s61")
    A(f"s_mul_i32 s60, s{S_WAVE}, 10240"); A("s_add_u32 s60, s60, s57"); A("s_sub_u32 s61, s60, 3840"); A(f"s_add_u32 s57, s57, {81920-3840}")
    A("v_lshrrev_b32 v12, 3, v1"); A("v_and_b32 v3, 7, v1"); A("v_lshrrev_b32 v13, 5, v1"); A("v_lshlrev_b32 v13, 1, v13"); A("v_xor_b32 v13, v13, v3")
    A("v_mul_u32_u24 v6, 1280, v12"); A("v_lshl_add_u32 v6, v13, 4, v6")
    A(f"s_and_b32 s30, s{S_WAVE}, 2"); A("s_lshl_b32 s30, s30, 5"); A("v_xor_b32 v5, s30, v6"); A("v_cmp_gt_u32 vcc, 24, v1")
    A("v_add_u32 v14, s61, v5"); A("v_min_u32 v14, v14, v8"); A("v_cndmask_b32 v6, v8, v6, vcc"); A("v_cmp_gt_u32 vcc, 32, v1")
    A(f"s_mul_i32 s62, s{S_WAVE}, 1152"); A(f"s_add_u32 s62, s62, {P0L}"); A("s_lshl_b32 s63, s51, 9"); A(f"v_cndmask_b32 v9, v8, v{vL16}, vcc")
    A("s_waitcnt lgkmcnt(0)")
    stamp(A, C, -1); stamp(A, C, "p0_ka")
    srd(A, SRD_A, P_K, NB_SD)
    p0_loads(S, 0)
    epoch_load(A)
    srd(A, SRD_C, P_SH, 5120)
    A(f"s_mov_b32 m0, {P0L+2*PST}"); A("s_nop 0"); S(f"buffer_load_dwordx4 v9, {s(SRD_C,4)}, s63 offen lds", ("p0", 0))
    srd(A, 52, P_SK, NB_SD)
    A(f"s_mul_i32 s{S_ID}, s{S_X}, 20"); A(f"s_add_u32 s{S_ID}, s{S_ID}, s{S_J}"); A(f"s_lshl_b32 s56, s{S_ID}, 2"); A(f"s_add_u32 s56, s56, s{S_WAVE}")
    A(f"s_mul_i32 s64, s{S_WAVE}, 8320"); A(f"s_add_u32 s64, s64, {C_HC}");
    def hdma():
        A(f"s_add_u32 m0, s64, {4160+32}"); A("s_lshl_b32 s30, s56, 12")
        for i in range(4): S(f"buffer_load_dwordx4 v{vL16}, s[52:55], s30 offen offset:{1024*i} lds", "h")
    if P.bpos < 2: hdma()
    elif P.bpos == 2: p0_loads(S, 1)
    A(f"s_and_b32 s31, s{S_WAVE}, 1"); A("s_lshl_b32 s30, s31, 8"); A(f"s_add_u32 s30, s30, {P0L+2*PST}"); A("v_lshlrev_b32 v254, 5, v12"); A("v_add_u32 v254, s30, v254")
    A("v_lshlrev_b32 v2, 12, v12"); A("v_lshl_add_u32 v2, v3, 4, v2")
    A(f"s_lshr_b32 s63, s{S_WAVE}, 1"); A(f"s_mul_i32 s30, s63, {4*1152}"); A(f"s_add_u32 s30, s30, {P0L}"); A("s_lshl_b32 s31, s31, 6")
    A("v_lshlrev_b32 v7, 3, v12"); A("v_or_b32 v7, s31, v7")
    for d, reg in ((0, 4), (1, 9)):
        A(f"v_add_u32 v13, {d}, v3"); A("v_lshrrev_b32 v14, 1, v13"); A("v_mul_u32_u24 v14, 1152, v14"); A("v_and_b32 v15, 1, v13"); A("v_lshl_add_u32 v14, v15, 9, v14")
        A("v_and_b32 v13, 4, v13"); A("v_lshlrev_b32 v13, 4, v13"); A("v_lshl_or_b32 v13, v15, 5, v13"); A("v_xor_b32 v13, v13, v7"); A(f"v_add3_u32 v{reg}, v14, v13, s30")
    A("s_lshl_b32 s50, s50, 1"); A("s_add_u32 s50, s50, s63")
    A("s_lshr_b32 s48, s50, 3"); A("s_mul_i32 s48, s48, 655360"); A("s_lshl_b32 s49, s51, 16"); A("s_add_u32 s48, s48, s49"); A("s_lshl_b32 s49, s31, 9"); A("s_add_u32 s48, s48, s49")
    A("s_and_b32 s49, s50, 7"); A("s_lshl_b32 s49, s49, 7"); A("s_add_u32 s48, s48, s49"); A(f"s_add_u32 s48, s48, {WS_KT}"); A(f"s_add_u32 s49, s48, {4*655360}")
    A(f"v_mul_u32_u24 v{vYG}, 20480, v12"); A(f"v_lshl_add_u32 v{vYG}, v3, 4, v{vYG}")
    conv_setup(A); common_setup(A, 'c')
    if P.bpos == 3: p0_loads(S, 1)
    epoch_finish(A)
    S.need([("p0", 0)]); A("s_barrier")
    stamp(A, C, "p0_ld")
    for i in range(2): S(f"ds_read_b128 {v(pW+4*i,4)}, v254 offset:{16*i}", "pw")
    S.extend(p0_reads(0))
    if P.bpos == 0: p0_loads(S, 1)
    if P.bpos >= 2 and P.hpos == 1: hdma()
    S.need(None, ["pw"])
    for c in range(4):
        for hlf in range(2):
            A(f"v_lshlrev_b32 v{pWF+8*hlf+c}, 16, v{pW+2*c+hlf}"); A(f"v_and_b32 v{pWF+8*hlf+4+c}, s{S_MSK}, v{pW+2*c+hlf}")
    for chk in p0_compute(0): S.extend(chk)
    if P.bpos == 1: p0_loads(S, 1)
    if P.bpos >= 2 and P.hpos == 2: hdma()
    stamp(A, C, "p0_st")
    if P.bpos >= 2:
        S.need([("p0", 1)]); A("s_barrier"); stamp(A, C, "c_b"); S.extend(p0_reads(1))
        for chk in p0_compute(1): S.extend(chk)
        stamp(A, C, "c_b2")
    H = 60; E = 80
    S.need(["h"])
    for i in range(4): S(f"ds_read_b128 {v(H+4*i,4)}, v{vHW} offset:{4160+32+1024*i}"); S(f"ds_read_b32 v{H+16+i}, v{vHW} offset:{4160+28+1024*i}", ("hr", i))
    for i in range(4):
        S.need(None, [("hr", i)])
        A(f"v_alignbit_b32 v{E+4*i}, v{H+4*i}, v{H+16+i}, 16")
        for j in range(1, 4): A(f"v_alignbit_b32 v{E+4*i+j}, v{H+4*i+j}, v{H+4*i+j-1}, 16")
        S(f"ds_write_b128 v{vHW}, {v(E+4*i,4)} offset:{32+1024*i}")

def w1_touch_setup(A):
    A(f"s_mul_i32 s30, s{S_X}, 27"); A("s_add_u32 s31, s30, 26"); A("s_lshr_b32 s30, s30, 3"); A("s_lshr_b32 s31, s31, 3"); A("s_sub_u32 s31, s31, s30")
    A("v_mul_u32_u24 v251, 52429, v0"); A("v_lshrrev_b32 v251, 18, v251"); A("v_mul_u32_u24 v252, 5, v251"); A("v_sub_u32 v252, v0, v252")
    A("v_cmp_ge_u32 vcc, s31, v252"); A("s_lshl_b32 s67, s30, 7")
    A(f"s_sub_u32 s30, s{S_J}, 22"); A(f"s_mul_i32 s30, s30, {32*3456}"); A("s_add_u32 s67, s67, s30"); A("v_cmp_gt_u32 s[30:31], 32, v251")
    A("v_mul_u32_u24 v251, 3456, v251"); A("v_lshl_add_u32 v251, v252, 7, v251"); A("s_and_b64 vcc, vcc, s[30:31]"); A("v_cndmask_b32 v255, v8, v251, vcc")
def w1_touch(S):
    A = S.A if isinstance(S, Stream) else S
    srd(A, SRD_A, P_WG, NB_W); srd(A, SRD_B, P_WU, NB_W)
    S(f"buffer_load_dword v251, v255, {s(SRD_A,4)}, s67 offen"); S(f"buffer_load_dword v252, v255, {s(SRD_B,4)}, s67 offen")
    return 2

def w1_setup(A):
    t0, t1 = 30, 31
    lg = {8: 3, 4: 2, 2: 1, 1: 0}[P.ni]
    A(f"s_add_u32 s31, s{S_X}, 2"); A("s_and_b32 s31, s31, 3"); A(f"s_add_u32 s30, s{S_J}, 3"); A("s_sub_u32 s30, s30, s31"); A("s_mul_i32 s30, s30, 21846"); A("s_lshr_b32 s30, s30, 16")
    A(f"s_add_u32 s30, s30, s{S_J}"); A(f"s_lshl2_add_u32 s31, s{S_J}, s31"); A("s_sub_u32 s31, s31, 80"); A("s_min_u32 s31, s31, 26")
    A(f"s_cmp_lt_u32 s{S_J}, 20"); A("s_cselect_b32 s31, s30, s31")
    A(f"s_lshr_b32 s30, s{S_X}, {3-lg}"); A(f"s_mul_i32 s30, s30, 27"); A(f"s_add_u32 s30, s30, s31"); A(f"s_lshr_b32 s{S_C}, s30, {lg}"); A(f"s_and_b32 s{S_I}, s30, {P.ni-1}")
    if lg < 3: A(f"s_and_b32 s30, s{S_X}, {8//P.ni-1}"); A(f"s_lshl_b32 s30, s30, {lg}"); A(f"s_add_u32 s{S_I}, s{S_I}, s30")
    A(f"v_lshrrev_b32 v{t0}, 3, v1"); A(f"v_mul_u32_u24 v{vWa}, 3456, v{t0}")
    A(f"v_and_b32 v{t0}, 2, v{t0}"); A(f"v_and_b32 v{t1}, 7, v1"); A(f"v_xor_b32 v{t0}, v{t0}, v{t1}"); A(f"v_xor_b32 v{t1}, 4, v{t0}")
    A(f"v_lshl_add_u32 v{vWb}, v{t1}, 4, v{vWa}"); A(f"v_lshl_add_u32 v{vWa}, v{t0}, 4, v{vWa}")
    A(f"s_and_b32 s30, s{S_WAVE}, 1"); A(f"s_mul_i32 s{sWsrc}, s30, {80*3456}"); A(f"s_lshl_b32 s30, s{S_C}, 7"); A(f"s_add_u32 s{sWsrc}, s{sWsrc}, s30")
    A(f"s_mul_i32 s{sWb}, s{S_WAVE}, 10240")
    A(f"s_cmp_ge_u32 s{S_WAVE}, 2")
    A(f"s_cselect_b32 s{SRD_C}, s{P_WU}, s{P_WG}"); A(f"s_cselect_b32 s{SRD_C+1}, s{P_WU+1}, s{P_WG+1}")
    A(f"s_and_b32 s{SRD_C+1}, s{SRD_C+1}, 0xffff"); A(f"s_mov_b32 s{SRD_C+2}, {NB_W}"); A(f"s_mov_b32 s{SRD_C+3}, 0x20000")
    A(f"v_lshrrev_b32 v{t0}, 4, v1"); A(f"v_bfe_u32 v{t1}, v1, 2, 2"); A(f"v_lshl_add_u32 v{vTR}, v{t0}, 3, v{t1}"); A(f"v_lshlrev_b32 v{vTR}, 7, v{vTR}")
    A(f"v_bfe_u32 v{t0}, v1, 3, 2"); A(f"v_xor_b32 v{t0}, s{S_WAVE}, v{t0}"); A(f"v_lshl_add_u32 v{vTR}, v{t0}, 5, v{vTR}")
    A(f"v_and_b32 v{t0}, 3, v1"); A(f"v_lshl_add_u32 v{vTR}, v{t0}, 3, v{vTR}")
def w1_dma(qd, slot, i0=0, i1=10):
    o = []
    for i in range(i0, i1):
        if i % 4 == 0 or i == i0: o.append(f"s_add_u32 m0, s{sWb}, {slot*SLOT+1024*(i-i%4)}")
        if P.xw != 6 or (i == 0 and qd == 0): o.append(f"s_add_u32 s31, s{sWsrc}, {(160*qd+8*i)*3456-1024*(i%4)}")
        if P.xw == 1: o.append((f"buffer_load_dwordx4 v{vL16}, {s(SRD_C,4)}, 0 offen offset:{1024*(i%4)} lds", ("w1", qd)))
        elif P.xw == 4: o.append((f"buffer_load_dwordx4 v{vWa}, {s(SRD_C,4)}, 0 offen offset:{1024*(i%4)} lds", ("w1", qd)))
        else: o.append((f"buffer_load_dwordx4 v{vWb if i&1 else vWa}, {s(SRD_C,4)}, s31 offen offset:{1024*(i%4)} lds", ("w1", qd)))
    return o
def w1_tr(qd, slot, tmp):
    o = [f"v_add_u32 v{tmp}, {slot*SLOT}, v{vTR}"]
    for kk in range(5):
        for mat in range(2):
            for hh in range(2):
                o.append((f"ds_read_b64_tr_b16 {a(8*(5*qd+kk)+4*mat+2*hh,2)}, v{tmp} offset:{mat*20480+(32*kk+4*hh)*128}", "tr"))
    return o

CS = 4576; C_XR = 0; C_YS = 18304; C_HC = SLOT
vXW, vXR, vHA, vYW, vYR, vYG, vM, vHW = range(12, 20)
cT = 20; vAD = 24; cACC = 28; cB = 60; cK = 188; cY = 220
sKT, sY = 68, 69
def conv_setup(A):
    A(f"s_lshl_b32 s30, s{S_ID}, 3"); A(f"s_load_dwordx2 s[58:59], {s(P_SD,2)}, s30")
    T1, T2 = 30, 31
    A(f"v_and_b32 v{T1}, 15, v1"); A(f"v_lshrrev_b32 v{T2}, 4, v1")
    A(f"s_mul_i32 s63, s{S_WAVE}, {CS}"); A(f"s_add_u32 s31, s63, {C_XR+480}")
    A(f"v_lshlrev_b32 v{vXR}, 5, v{T1}"); A(f"v_sub_u32 v{vXR}, s31, v{vXR}"); A(f"v_lshl_add_u32 v{vXR}, v{T2}, 4, v{vXR}")
    A(f"s_add_u32 s31, s63, {C_XR+504}"); A(f"v_lshlrev_b32 v{vXW}, 3, v1"); A(f"v_sub_u32 v{vXW}, s31, v{vXW}")
    A(f"v_and_b32 v{vHA}, 1, v1"); A(f"v_mul_u32_u24 v{vHA}, 4160, v{vHA}")
    A(f"v_lshrrev_b32 v{vYW}, 1, v{T1}"); A(f"v_lshl_add_u32 v{vHA}, v{vYW}, 2, v{vHA}")
    A(f"v_lshl_add_u32 v{vHA}, v{T2}, 4, v{vHA}"); A(f"v_add3_u32 v{vHA}, v{vHA}, s64, 4")
    A(f"s_mul_i32 s65, s{S_WAVE}, 576"); A(f"s_add_u32 s65, s65, {C_YS}")
    A(f"v_lshlrev_b32 v{vYW}, 5, v{T1}"); A(f"v_lshl_add_u32 v{vYW}, v{T2}, 3, v{vYW}"); A(f"v_add_u32 v{vYW}, s65, v{vYW}")
    A(f"v_bfe_u32 v{vYR}, v1, 2, 2"); A(f"v_mul_u32_u24 v{vYR}, 576, v{vYR}"); A(f"v_lshl_add_u32 v{vYR}, v{T2}, 5, v{vYR}")
    A(f"v_and_b32 v7, 3, v1"); A(f"v_lshl_add_u32 v{vYR}, v7, 3, v{vYR}")
    A(f"s_lshl_b32 s66, s{S_WAVE}, 7"); A(f"s_add_u32 s66, s66, {C_YS}"); A(f"v_add_u32 v{vYR}, s66, v{vYR}")
    A(f"s_mul_i32 s{sY}, s{S_WAVE}, {8*20480}"); A(f"s_lshl_b32 s66, s{S_ID}, 7"); A(f"s_add_u32 s{sY}, s{sY}, s66"); A(f"s_add_u32 s{sY}, s{sY}, {WS_YT}")
    A(f"s_lshl_b32 s{sKT}, s56, 10"); A(f"s_add_u32 s{sKT}, s{sKT}, {WS_KT}")
    A(f"s_mov_b32 s{S_PM}, 0x07060302"); A(f"v_mov_b32 v{vM}, 0xffff")
    for i in range(4): A(f"v_mov_b32 v{cT+i}, 0")
    A(f"v_add_u32 v7, s63, v{vL16}"); A(f"v_add_u32 v{vHW}, s64, v{vL16}")
    A("s_mov_b64 exec, 0x3fffffff"); A(f"ds_write_b128 v7, {v(cT,4)} offset:{C_XR+4096}")
    A("s_mov_b64 exec, 3"); A(f"ds_write_b128 v{vHW}, {v(cT,4)}"); A(f"ds_write_b128 v{vHW}, {v(cT,4)} offset:4160"); A("s_mov_b64 exec, -1")
    A(f"v_lshl_add_u32 v{T1}, v{T2}, 3, v{T1}"); A(f"v_sub_u32 v{T1}, 15, v{T1}")
    A(f"v_and_b32 v{T2}, 1, v{T1}"); A(f"v_lshlrev_b32 v{cACC+1}, 4, v{T2}"); A(f"v_ashrrev_i32 v{cACC}, 1, v{T1}")

def tagcheck(regs, tmp):
    o = [f"v_xor_b32 v{tmp}, s{S_TAG16}, v{regs[0]}"]
    for r in regs[1:]: o.append(f"v_bitop3_b32 v{tmp}, v{r}, s{S_TAG16}, v{tmp} bitop3:0xbe")
    return o + [f"v_cmp_ne_u16 vcc, 0, v{tmp}"]

def conv(S, C, tail):
    A = S
    order = [(0,0),(1,0),(2,0),(1,1),(2,1),(3,0),(2,2),(3,1),(3,2),(3,3)] + [(n, nu) for nu in range(4) for n in (4, 5)] + [(4,4),(5,4),(5,5)]
    for n, l in ((6, [2,3,4,5,0,1,6]), (7, [5,0,1,6,2,3,4,7])): order += [(n, nu) for nu in l]
    APOS = {7 - nu: i for i, (n, nu) in enumerate(order[-8:])}
    AI = lambda m: 32 * APOS[m >> 3] + 4 * (m & 7)
    def kload(nu): return [f"s_add_u32 s30, s{sKT}, {nu*655360}", (f"buffer_load_dwordx4 {v(cK+4*nu,4)}, v{vL16}, {WS4}, s30 offen sc1", ("k", nu))]
    def aread(m):
        o = 16 * (m % 16)
        return ([f"v_add_u32 v{vHA}, 1024, v{vHA}"] if (m and m % 16 == 0) else []) + [
            (f"ds_read2_b32 {a(AI(m),2)}, v{vHA} offset0:{o} offset1:{o+1}", ("A", m >> 3)), (f"ds_read2_b32 {a(AI(m)+2,2)}, v{vHA} offset0:{o+2} offset1:{o+3}", ("A", m >> 3))]
    MA = P.poll_at
    for m in range(P.m1):
        if m == 7:
            A(f"s_lshl_b32 s30, s{S_WAVE}, 4"); A("s_lshr_b64 s[58:59], s[58:59], s30"); A("s_and_b32 s58, s58, 0xffff")
            A(f"v_lshlrev_b32 v{cACC+1}, v{cACC+1}, s58")
            for j in range(4):
                A(f"v_cmp_eq_u32 vcc, {j}, v{cACC}"); A("s_nop 1"); A(f"v_cndmask_b32 v{vAD+j}, 0, v{cACC+1}, vcc")
        A.extend(aread(m))
    if P.bpos < 2:
        stamp(S.A, C, "c_a1")
        A.need([("p0", 1)]); A("s_barrier")
        stamp(S.A, C, "c_b")
        A.extend(p0_reads(1))
        m = P.m1
        for i, chk in enumerate(p0_compute(1)):
            if i == P.kpos:
                for n2 in range(P.k0): A.extend(kload(n2))
            if P.kpos > 7 and i == 7: m2x = MA - P.mk
            m2 = P.m1 + ((MA - (P.mk if P.kpos > 7 else 0) - P.m1) * (i + 1)) // 8
            if i:
                while m < m2: A.extend(aread(m)); m += 1
            A.extend(chk)
        if P.kpos > 7:
            for n2 in range(P.k0): A.extend(kload(n2))
            while m < MA: A.extend(aread(m)); m += 1
    else:
        for n2 in range(P.k0): A.extend(kload(n2))
        for m in range(P.m1, MA): A.extend(aread(m))
    stamp(S.A, C, "c_ab")
    def kvin(nu):
        kd = cK + 4 * nu
        o = [("need", [("k", nu)])] + spin(tail, f"cv{nu}", kload(nu), tagcheck([kd, kd+1, kd+2, kd+3], cT))
        return o + [f"v_perm_b32 v{cT}, v{kd+2}, v{kd+3}, s{S_PM}", f"v_perm_b32 v{cT+1}, v{kd}, v{kd+1}, s{S_PM}", f"ds_write_b64 v{vXW}, {v(cT,2)} offset:{512*(7-nu)}"]
    def bread(li, nu): return [(f"ds_read_b128 {v(cB+32*(li&3)+4*rho,4)}, v{vXR} offset:{512*(7-nu)+64*rho}", ("B", li, rho)) for rho in range(8)]
    A.extend(kvin(0)); A.extend(bread(0, 0))
    for n2 in range(P.k0, 4): A.extend(kload(n2))
    stamp(S.A, C, "c_kv0")
    mf = []; loads = []; res = {}; lfirst = {}; llast = {}; afirst = {}; alast = {}; done = {}; seen = set()
    for (n, nu) in order:
        if nu not in res:
            li = len(loads); loads.append(nu)
            if li >= 4: del res[loads[li - 4]]
            res[nu] = li
        li = res[nu]; acc = v(cACC + 4 * n, 4); bb = cB + 32 * (li & 3)
        lfirst.setdefault(li, len(mf)); afirst.setdefault(n - nu, len(mf))
        for rho in range(8):
            mf.append(f"v_mfma_f32_16x16x32_bf16 {acc}, {a(AI(8*(n-nu)+rho),4)}, {v(bb+4*rho,4)}, {acc if (n in seen or rho) else 0}")
        seen.add(n)
        if n == nu: mf.append(f"v_mfma_f32_16x16x32_bf16 {acc}, {v(vAD,4)}, {v(bb,4)}, {acc}"); done[n] = len(mf)
        llast[li] = len(mf); alast[APOS[n - nu]] = len(mf)
    N = len(mf)
    q1 = Seq(); q2 = Seq(); q3 = Seq(); q4 = Seq(); q5 = Seq(); q7 = Seq(); ev = []
    ev += [(0, ("need", None, [("B", 0, 2)])), (3, ("need", None, [("B", 0, 5)])), (6, ("need", None, [("B", 0, 7)]))]
    for m in range(MA, 64):
        q3.addl(aread(m), 7 + P.astep * (m - MA), dl=min(afirst[m >> 3] - 5, P.adl))
        if m % 8 == 7: ev.append((afirst[m >> 3], ("need", None, [("A", m >> 3)])))
    have = {0}
    for li in range(1, len(loads)):
        nu = loads[li]
        ev.append((lfirst[li], ("need", None, [("B", li, 7)])))
        rd0 = lfirst[li] - 18 if li < 4 else max(llast[li - 4], lfirst[li] - (14 if li < 6 else 24))
        if nu not in have:
            have.add(nu)
            if nu >= 4: q5.addl([x.replace("s30", "s66") if isinstance(x, str) else (x[0].replace("s30", "s66"), x[1]) for x in kload(nu)], P.k4 + P.k4s * (nu - 4), dl=rd0 - 12)
            if nu < 4: q2.addl(kvin(nu), max(0, rd0 - 8))
            else: q7.addl(kvin(nu), min(rd0 - 8, P.k4 + P.k4s * (nu - 4) + 60), dl=rd0 - 1)
        q2.addl(bread(li, nu), rd0, 1, dl=lfirst[li] - 1)
    if C.diag and P.cs1:
        for gg in range(P.cs0, min(N, P.cs0 + 11 * P.cs1), P.cs1): ev += [(gg - 0.2, "s_nop 0"), (gg - 0.1, ("call", lambda gg=gg: stamp(S.A, C, f"b{gg}")))]
    q0 = Seq()
    for g, x in sorted(ev, key=lambda e: e[0]): q0.add(x, round(g), round(g))
    gbs = []
    for nu in range(8):
        an = cACC + 4 * nu; y = cY + 2
        q1.addl([f"v_cvt_pk_bf16_f32 v{cY}, v{an}, v{an+1}", f"v_cvt_pk_bf16_f32 v{cY+1}, v{an+2}, v{an+3}", (f"ds_write_b64 v{vYW}, {v(cY,2)} offset:{2304*(nu&1)}", "yw")], min(done[nu] + 3, N))
        d1, d2 = (P.e1, P.e2) if nu in (0, 1, 2, 4) else (P.d1, P.d2)
        gb = min(done[nu] + 4 + d1, N); gbs.append(gb)
        q1.add(("need", [("w1", 1)] if nu == 6 else None, ["yw", "tr", ("A", 7)] if gb > P.adl else ["yw"]), gb)
        if nu == 6:
            def chk(): assert S.vm.count(("w1", 1)) == 10
            q1.add(("call", chk), gb)
        q1.add("s_barrier", gb, gb)
        q1.add((f"ds_read_b64_tr_b16 {v(y,2)}, v{vYR} offset:{2304*(nu&1)}", "yr"), gb, gb)
        q1.addl([("need", None, ["yr"]),
            f"v_lshl_or_b32 v{y+2}, v{y}, 16, s{S_TAG16}", f"v_bfi_b32 v{y+3}, v{vM}, s{S_TAG16}, v{y}",
            f"v_lshl_or_b32 v{y+4}, v{y+1}, 16, s{S_TAG16}", f"v_bfi_b32 v{y+5}, v{vM}, s{S_TAG16}, v{y+1}",
            (f"buffer_store_dwordx4 {v(y+2,4)}, v{vYG}, {WS4}, s{sY} offen sc1", "yst"), f"s_add_u32 s{sY}, s{sY}, {32*20480}",
            ("call", lambda nu=nu: stamp(S.A, C, f"c_s{nu}"))], min(gb + d2, N))
        if nu == 6:
            q1.add(("need", [("w1", 2)], [("tr", 0)]), P.bx)
            def chk(): assert S.vm.count(("w1", 2)) == 10 and S.lg.count(("tr", 0)) == 20
            q1.add(("call", chk), P.bx); q1.add("s_barrier", P.bx, P.bx)
    trq = lambda qd, sl, t: [(x[0], ("tr", 0)) if (isinstance(x, tuple) and qd == 0) else x for x in w1_tr(qd, sl, t)]
    afree = lambda qd: max(alast[pp] for pp in range(8) if 32 * pp < 40 * (qd + 1))
    q3.addl(trq(0, 2, cT + 2), max(gbs[6] + 1, afree(0)), 1, dl=P.bx - 6)
    q3.addl(trq(1, 3, cT + 3), max(gbs[6] + 1, afree(1)), 1, dl=N - 1)
    assert P.bx >= afree(2)
    g = float(P.w1g0)
    for qd, sl in enumerate([2, 3, 1]):
        assert g > gbs[0] + 2
        if qd == 2: assert g > [b for b in gbs if b > P.adl][0] + 2, (g, gbs)
        g = q4.addl(w1_dma(qd, sl), g, (P.w1g1 - P.w1g0) / 30, dl=(gbs[6] if qd < 2 else P.bx) - 1, stepon=isvm)
    q4.addl(w1_dma(3, 2), P.bx + 3, 2, dl=N - 1, stepon=isvm)
    ld, ck = w2_poll(tail, "cw2", 234, 235)
    s48 = lambda L: [(x.replace("s30", "s48") if isinstance(x, str) else (x[0].replace("s30", "s48"), x[1])) for x in L]
    q6 = Seq(); q6.addl(g1_setup(), 150, 1); q6.addl(s48(ld), 230)
    A.extend(schedule(mf, [q0, q1, q2, q7, q5, q4, q3, q6]))
    A.extend(slpoll(0, 6)); A.extend(ck); A.extend(w2load(0, P.npre0)); A.extend(w1_tr(2, 1, cT + 2))
    A.need(None, 0); A.extend(slcheck(tail, 0, 6, "c"))
    stamp(S.A, C, "g1_l0")
    for d in lndma(0): A.extend(d)
    A.need([("w1", 3)]); A("s_barrier"); A.extend(w1_tr(3, 2, cT + 3)); A.extend(w2load(P.npre0, P.npre)); A.extend(slpoll(1, 8))
    A.need([("ln", 0)], 0); A("s_barrier")

def repack(A, more, nmore):
    srd(A, SRD_A, P_WD, NB_W)
    A(f"s_mul_i32 s48, s{S_ID}, 40960"); A(f"s_add_u32 s48, s48, s{sWb}")
    for i in range(10):
        if i % 4 == 0: A(f"s_add_u32 m0, s{sWb}, {1024*i}"); A(f"s_add_u32 s50, s48, {1024*i}")
        A(f"buffer_load_dwordx4 v{vL16}, {s(SRD_A,4)}, s50 offen offset:{1024*(i%4)} lds")
    more()
    A("v_lshrrev_b32 v3, 4, v1"); A("v_bfe_u32 v4, v1, 2, 2"); A("v_lshl_add_u32 v3, v3, 3, v4"); A("v_mul_u32_u24 v3, 1280, v3")
    A("v_and_b32 v4, 3, v1"); A("v_lshl_add_u32 v3, v4, 3, v3"); A(f"s_mul_i32 s50, s{S_WAVE}, 320"); A("v_add_u32 v3, s50, v3")
    A(f"s_mul_i32 s50, s{S_WAVE}, 108"); A(f"s_add_u32 s50, s50, s{S_ID}"); A("s_mul_i32 s50, s50, 5120"); A(f"s_add_u32 s50, s50, {WS_W2F}")
    A(f"s_waitcnt vmcnt({nmore})"); A("s_barrier")
    for i in range(10):
        A(f"ds_read_b64_tr_b16 {v(12+4*i,2)}, v3 offset:{32*i}"); A(f"ds_read_b64_tr_b16 {v(14+4*i,2)}, v3 offset:{32*i+5120}")
    for i in range(10):
        if i == 4 or i == 9: A("s_add_u32 s50, s50, 4096")
        if i == 5: A(f"s_add_u32 s50, s50, {54*5120-4096}")
        A(f"s_waitcnt lgkmcnt({min(14, 18-2*i)})")
        A(f"buffer_store_dwordx4 {v(12+4*i,4)}, v{vL16}, {WS4}, s50 offen offset:{1024*((i%5)%4)} sc1")

R_XB = 69632; R_PX = 86016; R_ST = 91136; R_PM = 92160
def sums(xs, vS):
    o = [".p2align 3", f"v_pk_add_f32 {v(vS,2)}, {v(xs,2)}, {v(xs+2,2)}", f"v_pk_mul_f32 {v(vS+2,2)}, {v(xs,2)}, {v(xs,2)}",
         f"v_pk_fma_f32 {v(vS+2,2)}, {v(xs+2,2)}, {v(xs+2,2)}, {v(vS+2,2)}"]
    for i in range(2, 10):
        o += [f"v_pk_add_f32 {v(vS,2)}, {v(vS,2)}, {v(xs+2*i,2)}", f"v_pk_fma_f32 {v(vS+2,2)}, {v(xs+2*i,2)}, {v(xs+2*i,2)}, {v(vS+2,2)}"]
    o += [f"v_add_f32 v{vS}, v{vS}, v{vS+1}", f"v_add_f32 v{vS+1}, v{vS+2}, v{vS+3}",
          f"v_permlane16_swap_b32 v{vS}, v{vS+1}", f"v_add_f32 v{vS}, v{vS}, v{vS+1}",
          f"v_add_f32_dpp v{vS}, v{vS}, v{vS} row_ror:8 row_mask:0xf bank_mask:0xf"]
    return o
def finalize(vS, vP, vF=None):
    inv = struct.unpack("<I", struct.pack("<f", 1.0 / 640))[0]
    eps = struct.unpack("<I", struct.pack("<f", 1e-5))[0]
    o = []
    for b in (vP, vP + 8): o += [f"v_pk_add_f32 {v(b,2)}, {v(b,2)}, {v(b+2,2)}", f"v_pk_add_f32 {v(b+4,2)}, {v(b+4,2)}, {v(b+6,2)}"]
    for b in (vP, vP + 8): o += [f"v_pk_add_f32 {v(b,2)}, {v(b,2)}, {v(b+4,2)}"]
    o += [f"v_add_f32 v{vS}, v{vP}, v{vP+1}", f"v_add_f32 v{vS+1}, v{vP+8}, v{vP+9}",
          f"v_mul_f32 v{vS}, {inv:#x}, v{vS}", f"v_mul_f32 v{vS+1}, {inv:#x}, v{vS+1}",
          f"v_fma_f32 v{vS+1}, -v{vS}, v{vS}, v{vS+1}", f"v_max_f32 v{vS+1}, 0, v{vS+1}",
          f"v_cvt_pk_bf16_f32 v{vS+1}, 0, v{vS+1}", f"v_add_f32 v{vS+1}, {eps:#x}, v{vS+1}", f"v_cvt_pk_bf16_f32 v{vS+1}, 0, v{vS+1}",
          f"v_sqrt_f32 v{vS+1}, v{vS+1}", f"v_cvt_pk_bf16_f32 v{vF or vS}, 0, v{vS}", f"v_cvt_pk_bf16_f32 v{(vF or vS)+1}, 0, v{vS+1}", f"v_rcp_f32 v{vS+1}, v{(vF or vS)+1}",
          f"v_mul_f32 v{vS}, v{vF or vS}, v{vS+1}"]
    return o

def rworker(A, C, tail):
    NW = 40
    vYA, vYB, vLB, vLW, vLR, vFL, vFLn, vXA = range(2, 10)
    vXB, vSR, vrow, vq, vt = 12, 13, 14, 15, 16
    vXr = 20; vSX = 30; vX = 32; vQ = 52; vYr = 72; vS = 92; vPt = 96; vP = 112; vP2 = 124
    sYb, sL, sF, sCnt = 56, 57, 58, 59
    srd(A, 52, P_Q, NB_SD)
    A(f"v_lshrrev_b32 v{vt}, 4, v1"); A(f"v_and_b32 v{vt+1}, 15, v1"); A(f"v_lshlrev_b32 v{vt+2}, 1, v{vt}"); A(f"v_xor_b32 v{vt+1}, v{vt+1}, v{vt+2}")
    A(f"v_mul_u32_u24 v{vt}, 1280, v{vt}"); A(f"v_xor_b32 v{vt+2}, 8, v{vt+1}")
    A(f"v_lshl_add_u32 v{vt+1}, v{vt+1}, 4, v{vt}"); A(f"v_lshl_add_u32 v{vt+2}, v{vt+2}, 4, v{vt}")
    A(f"s_mul_i32 s60, s{S_ID}, 10240"); A(f"s_mul_i32 s61, s{S_WAVE}, {NW*10240}"); A("s_add_u32 s60, s60, s61")
    A(f"s_mul_i32 s61, s{S_WAVE}, 8704"); A(f"s_lshl_b32 s62, s{S_WAVE}, 11")
    def xdma(hf):
        for r in range(8):
            A(f"s_add_u32 m0, s61, {hf*4*8704+r*1088}"); A(f"s_add_u32 s30, s60, {hf*4*NW*10240+r*1280}")
            A(f"buffer_load_dwordx4 v{vL16}, s[52:55], s30 offen lds")
        for h in range(2):
            A(f"s_add_u32 m0, s62, {R_XB+hf*8192+h*1024}"); A(f"s_add_u32 s30, s60, {hf*4*NW*10240+h*5120+1024}")
            A(f"buffer_load_dwordx4 v{vt+1+h}, s[52:55], s30 offen lds")
    if P.rdel0: A(f"s_sleep {P.rdel0}")
    xdma(0)
    common_setup(A, 'r'); epoch_finish(A)
    A(f"v_and_b32 v{vrow}, 7, v0"); A(f"v_lshrrev_b32 v{vq}, 3, v0")
    A(f"v_lshlrev_b32 v{vYB}, 4, v{vrow}"); A(f"v_lshl_add_u32 v{vYA}, v{vq}, 8, v{vYB}"); A(f"v_lshl_add_u32 v{vYB}, v{vq}, 7, v{vYB}")
    A(f"v_and_b32 v{vt}, 8, v1"); A(f"v_cmp_eq_u32 vcc, 0, v{vt}"); A(f"v_bfrev_b32 v{vFL}, 1"); A("s_nop 0"); A(f"v_cndmask_b32 v{vLB}, v{vFL}, v{vYB}, vcc")
    A(f"v_cmp_gt_u32 vcc, 8, v1"); A(f"v_mul_u32_u24 v{vXA}, 1088, v{vrow}"); A(f"v_lshl_add_u32 v{vXA}, v{vq}, 4, v{vXA}"); A(f"v_cndmask_b32 v{vFLn}, v{vFL}, v{vL16}, vcc")
    for i in range(4): A(f"v_mov_b32 v{136+i}, v{vTag}")
    A(f"v_lshrrev_b32 v{vt}, 1, v{vq}"); A(f"v_lshlrev_b32 v{vt+3}, 1, v{vrow}"); A(f"v_xor_b32 v{vt}, v{vt}, v{vt+3}"); A(f"v_lshlrev_b32 v{vt}, 4, v{vt}")
    A(f"v_lshl_add_u32 v{vXB}, v{vrow}, 8, v{vt}"); A(f"v_and_b32 v{vt}, 1, v{vq}"); A(f"v_lshl_add_u32 v{vXB}, v{vt}, 3, v{vXB}"); A(f"v_add_u32 v{vXB}, {R_XB}, v{vXB}")
    A(f"v_mul_u32_u24 v{vLR}, 80, v{vrow}"); A(f"v_add_u32 v{vLR}, {R_PX}, v{vLR}")
    A(f"v_bfe_u32 v{vLW}, v1, 4, 1"); A(f"v_lshl_add_u32 v{vLW}, v{vLW}, 5, v{vLR}")
    A(f"v_lshrrev_b32 v{vt}, 5, v1"); A(f"v_lshl_add_u32 v{vLW}, v{vt}, 2, v{vLW}"); A(f"s_lshl_b32 s30, s{S_WAVE}, 3"); A(f"v_add_u32 v{vLW}, s30, v{vLW}")
    A(f"s_mul_i32 s{sYb}, s{S_ID}, 20480"); A(f"s_add_u32 s{sYb}, s{sYb}, {WS_YT}")
    A(f"s_lshr_b32 s{sL}, s{S_ID}, 1"); A(f"s_mul_i32 s{sL}, s{sL}, 20480"); A(f"s_and_b32 s30, s{S_ID}, 1"); A("s_lshl_b32 s30, s30, 7")
    A(f"s_add_u32 s{sL}, s{sL}, s30"); A(f"s_add_u32 s{sL}, s{sL}, {WS_LNF}")
    A(f"s_lshl_b32 s{sF}, s{S_ID}, 10"); A(f"s_add_u32 s{sF}, s{sF}, {FL_LN-NW*1024}")
    def prewrite():
        A(f"s_cmp_lg_u32 s{S_WAVE}, 0"); A("s_cbranch_scc1 L_rpw")
        for i in range(4): A(f"v_not_b32 v{vP+i}, v{vTag}")
        for k in range(7):
            A(f"s_add_u32 s30, s{sF}, {(k+1)*NW*1024}"); A(f"buffer_store_dwordx4 {v(vP,4)}, v{vL16}, {WS4}, s30 offen sc1")
        A.label("L_rpw")
    xread = [f"ds_read_b128 {v(vXr,4)}, v{vXA}", f"ds_read_b128 {v(vXr+4,4)}, v{vXA} offset:512", f"ds_read_b64 {v(vXr+8,2)}, v{vXB}"]
    xadv = [f"v_add_u32 v{vXA}, 8704, v{vXA}", f"v_add_u32 v{vXB}, 2048, v{vXB}"]
    for hf in range(2):
        nt = 2 if P.touch else 0
        if hf == 0 and P.xall:
            xdma(1)
            if P.touch: w1_touch(A)
        A(f"s_waitcnt vmcnt({nt + (P.rpre == 1) if hf else (10 + nt if P.xall else 0)})"); A("s_barrier"); stamp(A, C, f"r_x{hf}")
        if hf == 1 and P.pw & 1: prewrite()
        if hf == P.rpre - 1:
            A(f"v_lshlrev_b32 v{vP+8}, 7, v0"); A(f"v_min_u32 v{vP+8}, {159*128}, v{vP+8}"); A(f"buffer_load_dword v{vP+9}, v{vP+8}, {WS4}, s{sYb} offen sc1")
        if hf == 0 and not P.xall:
            xdma(1)
            if P.touch: w1_touch(A)
        A.extend(xread); A(f"s_mov_b32 s{sCnt}, {3-hf}"); A("s_waitcnt lgkmcnt(0)")
        A.label(f"L_rp{hf}")
        A.extend(xadv); A("s_waitcnt lgkmcnt(1)"); A.extend(unpk(vX, vXr, 10)); A.extend(xread); A.extend(sums(vX, vS))
        A(f"ds_write_b32 v{vLW}, v{vS}"); A(f"v_add_u32 v{vLW}, 640, v{vLW}")
        A(f"s_sub_u32 s{sCnt}, s{sCnt}, 1"); A(f"s_cbranch_scc0 L_rp{hf}")
        A("s_waitcnt lgkmcnt(0)")
    A("s_barrier")
    A(f"v_lshrrev_b32 v{vt}, 3, v1"); A(f"v_mul_u32_u24 v{vt}, 640, v{vt}"); A(f"v_add_u32 v{vt}, v{vt}, v{vLR}")
    for i in range(4): A(f"ds_read_b128 {v(vPt+4*i,4)}, v{vt} offset:{16*i}")
    A(f"v_subrev_u32 v{vXA}, {7*8704}, v{vXA}"); A(f"v_subrev_u32 v{vXB}, {7*2048}, v{vXB}"); A.extend(xread)
    A(f"v_add_u32 v{vLW}, {R_PM-R_PX-7*640}, v{vLW}"); A(f"v_add_u32 v{vLR}, {R_PM-R_PX}, v{vLR}")
    A(f"v_lshlrev_b32 v{vt}, 3, v1"); A(f"v_add_u32 v{vt}, {R_ST}, v{vt}"); A(f"v_lshlrev_b32 v{vSR}, 3, v{vrow}"); A(f"v_add_u32 v{vSR}, {R_ST}, v{vSR}")
    A("s_waitcnt lgkmcnt(3)"); A.extend(finalize(vS, vPt))
    A(f"ds_write_b64 v{vt}, {v(vS,2)}"); A(f"ds_read_b64 {v(vSX,2)}, v{vSR}")
    A(f"s_cmp_lt_u32 s{S_ID}, {256 - 6*NW}"); A(f"s_cselect_b32 s{sCnt}, 6, 5"); A(f"s_mov_b32 s65, 0")
    stamp(A, C, "r_prep"); stamp_flush(A, C)
    NRM = "op_sel:[0,1,0] op_sel_hi:[1,1,0] neg_lo:[0,0,1] neg_hi:[0,0,1]"
    YS = [vYr, 140]
    def yl(par, i, sreg): return f"buffer_load_dwordx4 {v(YS[par]+4*i,4)}, v{vYA if i < 4 else vYB}, {WS4}, s{sreg} offen offset:{128*(i&1) if i < 4 else 0} sc1"
    def yload(par): return [f"s_add_u32 s30, s{sYb}, 8192", f"s_add_u32 s31, s{sYb}, 16384"] + [yl(par, i, (sYb, sYb, 30, 30, 31)[i]) for i in range(5)]
    def ycheck(par):
        Y = YS[par]
        o = [f"v_xor_b32 v{Y+i}, s{S_TAG16}, v{Y+i}" for i in range(20)]
        o += [f"v_or3_b32 v{vt}, v{Y}, v{Y+1}, v{Y+2}", f"v_or3_b32 v{vt+1}, v{Y+3}, v{Y+4}, v{Y+5}"]
        o += [f"v_or3_b32 v{vt+(i&1)}, v{Y+6+2*i}, v{Y+7+2*i}, v{vt+(i&1)}" for i in range(7)]
        return o + [f"v_or_b32 v{vt}, v{vt}, v{vt+1}", f"v_cmp_ne_u16 vcc, 0, v{vt}"]
    def flag(lbl): return ["s_cmp_lg_u32 s66, 0", f"s_cbranch_scc1 {lbl}", f"buffer_store_dwordx4 v[136:139], v{vL16}, {WS4}, s{sF} offen sc1", f"{lbl}:"]
    def nextx(l1=None, l2=None):
        A("s_waitcnt lgkmcnt(0)"); u = unpk(vX, vXr, 10); A.extend(u[:12])
        if l1: A(l1)
        A.extend(u[12:]); A(".p2align 3")
        A.extend([f"v_pk_fma_f32 {v(vQ+2*i,2)}, {v(vX+2*i,2)}, {v(vSX,2)}, {v(vSX,2)} {NRM}" for i in range(8)])
        if l2: A(l2)
        A.extend([f"v_pk_fma_f32 {v(vQ+2*i,2)}, {v(vX+2*i,2)}, {v(vSX,2)}, {v(vSX,2)} {NRM}" for i in range(8, 10)])
        A.extend(xadv + [f"v_add_u32 v{vSR}, 64, v{vSR}"])
    D = NW * 20480
    if P.nor: A("s_endpgm")
    if P.rdelay: A(f"s_sleep {P.rdelay}")
    if P.rhint:
        nextx()
        A(f"v_min_u32 v{vt+2}, {P.rhint-1}, v1"); A(f"s_mul_i32 s30, s{S_WAVE}, {P.rhint}"); A(f"v_add_u32 v{vt+2}, s30, v{vt+2}"); A(f"v_mul_u32_u24 v{vt+2}, {128*(40//P.rhint)}, v{vt+2}")
        A(f"s_mul_i32 s30, s{S_ID}, {128*(40//P.rhint)}"); A("s_mul_hi_u32 s30, s30, 107374183"); A("s_and_b32 s30, s30, 0xffffff80"); A(f"v_add_u32 v{vt+2}, s30, v{vt+2}")
        hl = [f"buffer_load_dword v{vYr}, v{vt+2}, {WS4}, s{sYb} offen sc1"]
        A.extend(hl); A("s_waitcnt vmcnt(0)")
        A.extend(spin(tail, "rh", hl, [f"v_xor_b32 v{vYr}, s{S_TAG16}, v{vYr}", f"v_cmp_ne_u16 vcc, 0, v{vYr}"], P.rsleep))
        stamp(A, C, "r_h0"); A("s_barrier"); stamp(A, C, "r_h1"); A.extend(yload(0)); stamp_flush(A, C)
    else: A.extend(yload(0)); nextx()
    A("s_mov_b32 s66, 1")
    A(f"s_add_u32 s62, s{sYb}, {D}"); A("s_add_u32 s60, s62, 8192"); A("s_add_u32 s61, s62, 16384"); A("s_waitcnt vmcnt(0)")
    A.extend(spin(tail, "ry", yload(0), ycheck(0), P.rsleep))
    for i in range(4): A(yl(1, i, (62, 62, 60, 60)[i]))
    A("s_branch L_ry0b")
    for par in range(2):
        Y = YS[par]
        A.label(f"L_rtop{par}")
        if C.diag: rstamp(A, C, 65, "r_t", par)
        ck = spin(tail, f"ry{par}", yload(par), ycheck(par), P.rsleep)
        A.extend(ck[:8]); A(yl(1 - par, 2, 60)); A.extend(ck[8:24]); A(yl(1 - par, 3, 60)); A.extend(ck[24:])
        if C.diag: rstamp(A, C, 65, "r_y", par)
        A(".p2align 3")
        for i in range(10): A(f"v_pk_fma_f32 {v(vX+2*i,2)}, {v(vQ+2*i,2)}, {v(Y+2*i,2)}, {v(vX+2*i,2)}")
        A(yl(1 - par, 4, 61)); A.extend(sums(vX, vS)); A(f"ds_write_b32 v{vLW}, v{vS}")
        A(f"s_add_u32 s63, s{sL}, 8192"); A(f"s_add_u32 s64, s{sL}, 16384"); A(f"v_xor_b32 v{vLW}, 1024, v{vLW}")
        A(f"s_add_u32 s{sYb}, s{sYb}, {D}"); A(f"s_add_u32 s62, s{sYb}, {D}"); A(f"s_cmp_lt_u32 s{sCnt}, 2"); A(f"s_cselect_b32 s62, {OOB}, s62")
        A("s_add_u32 s60, s62, 8192"); A("s_add_u32 s61, s62, 16384")
        if C.diag: rstamp(A, C, 65, "r_a", par)
        A("s_waitcnt vmcnt(5) lgkmcnt(0)"); A("s_barrier")
        for i in range(4): A(f"ds_read_b128 {v(vPt+4*i,4)}, v{vLR} offset:{16*i}")
        A.extend(xread + [f"ds_read_b64 {v(vSX,2)}, v{vSR}"])
        A.extend(flag(f"L_rnf{par}_"))
        if C.diag: rstamp(A, C, 65, "r_f", par)
        A(f"v_xor_b32 v{vLR}, 1024, v{vLR}")
        A("s_waitcnt lgkmcnt(4)"); A.extend(finalize(vS, vPt, 137)); A(".p2align 3")
        lnv = lambda i: f"v_pk_fma_f32 {v(vQ+2*i,2)}, {v(vX+2*i,2)}, {v(vS,2)}, {v(vS,2)} {NRM}"
        cv = lambda i: f"v_cvt_pk_bf16_f32 v{vP+i}, v{vQ+2*i}, v{vQ+2*i+1}"
        A.extend([lnv(i) for i in range(4)] + [cv(i) for i in range(4)])
        A(f"buffer_store_dwordx4 {v(vP,4)}, v{vYA}, {WS4}, s{sL} offen sc1")
        A.extend([lnv(i) for i in range(4, 10)] + [cv(i) for i in (8, 9, 4, 5, 6, 7)])
        A(f"buffer_store_dwordx4 {v(vP+4,4)}, v{vYA}, {WS4}, s63 offen sc1")
        for k in range(2): A(f"v_mov_b32_dpp v{vP+10+k}, v{vP+8+k} row_shl:8 row_mask:0xf bank_mask:0xf bound_ctrl:0")
        A(f"s_add_u32 s{sL}, s{sL}, {NW*10240}"); A(f"s_add_u32 s{sF}, s{sF}, {NW*1024}"); A(f"s_mov_b32 s66, s{S_WAVE}")
        A(f"buffer_store_dwordx4 {v(vP+8,4)}, v{vLB}, {WS4}, s64 offen sc1")
        if C.diag: rstamp(A, C, 65, "r_l", par)
        nextx(yl(par, 0, 62), yl(par, 1, 62))
        if C.diag: rstamp(A, C, 65, "r_n", par); A("s_add_u32 s65, s65, 1")
        A(f"s_sub_u32 s{sCnt}, s{sCnt}, 1"); A("s_waitcnt vmcnt(5)")
        A("s_cbranch_scc1 L_rdone" if par == 0 else "s_cbranch_scc0 L_rtop0")
    A.label("L_rdone")
    A("s_waitcnt vmcnt(0)"); A("s_barrier"); A.extend(flag("L_rnf2"))
    stamp(A, C, "r_end"); stamp_flush(A, C)

def epoch_update(A, tail):
    A("s_sub_u32 s30, s2, 216"); A(f"s_or_b32 s30, s30, s{S_WAVE}"); A("s_cbranch_scc1 L_noep")
    A("v_and_b32 v20, 31, v1"); A("v_min_u32 v20, 26, v20"); A("v_lshlrev_b32 v20, 8, v20"); A("v_lshrrev_b32 v21, 5, v1"); A("v_lshl_add_u32 v20, v21, 13, v20")
    A("v_min_u32 v21, 39, v1"); A("v_lshlrev_b32 v21, 10, v21"); A("v_lshlrev_b32 v23, 2, v1")
    el = []
    for i in range(4): el += [f"s_mov_b32 s30, {FL_HH+16384*i}", f"buffer_load_dword v{24+i}, v20, {WS4}, s30 offen sc1"]
    el += [f"s_mov_b32 s30, {FL_LN}", f"buffer_load_dword v28, v21, {WS4}, s30 offen sc1"]
    ec = [f"v_xor_b32 v22, v{vTag}, v24"] + [f"v_bitop3_b32 v22, v{25+i}, v{vTag}, v22 bitop3:0xbe" for i in range(4)] + ["v_cmp_ne_u32 vcc, 0, v22"]
    A.extend(el); A("s_waitcnt vmcnt(0)"); A.extend(spin(tail, "ep", el, ec, 16))
    A(f"s_mov_b32 s30, {FL_E}"); A(f"buffer_store_dword v{vTag}, v23, {WS4}, s30 offen sc1")
    A.label("L_noep")

def rstamp(A, C, sCnt, nm, par):
    import re
    for j in range(par, 8, 2):
        if re.fullmatch(C.want, f"{nm}{j}"):
            A(f"s_cmp_lg_u32 s{sCnt}, {j}"); A(f"s_cbranch_scc1 L_st_{nm}{j}")
            stamp(A, C, f"{nm}{j}")
            if not P.cyc: stamp_flush(A, C)
            A.label(f"L_st_{nm}{j}")

vFLa, vPoll, vPA, vLast, vST = 9, 8, 7, 6, 5
vRD = [2, 3, 4]; SL = [3, 1, 2]
sSrc, sSt, sNL, sLF, sHF = 50, 51, 52, 53, 54
aHH = 0; aWX = 56; aACC = 80
NU = 8; US = 8
def W2(f):
    if f < 40: return v(96 + 4 * f, 4)
    if f < 64: return a(160 + 4 * (f - 40), 4)
    return a(aWX + 4 * (f - 64), 4)
def g2_setup(A):
    A(f"s_lshr_b32 s{S_RT}, s{S_X}, 1"); A(f"s_lshl_b32 s{S_RT}, s{S_RT}, 3"); A(f"s_lshr_b32 s30, s{S_J}, 2"); A(f"s_add_u32 s{S_RT}, s{S_RT}, s30")
    A(f"s_and_b32 s{S_CB}, s{S_X}, 1"); A(f"s_lshl_b32 s{S_CB}, s{S_CB}, 2"); A(f"s_and_b32 s30, s{S_J}, 3"); A(f"s_add_u32 s{S_CB}, s{S_CB}, s30")
    A(f"s_mul_i32 s{sK0}, s{S_WAVE}, 14"); A(f"s_cmp_eq_u32 s{S_WAVE}, 3"); A(f"s_cselect_b32 s{sK0}, 41, s{sK0}")
    A(f"s_mul_i32 s{sW2}, s{S_CB}, 54"); A(f"s_add_u32 s{sW2}, s{sW2}, s{sK0}"); A(f"s_mul_i32 s{sW2}, s{sW2}, 5120"); A(f"s_add_u32 s{sW2}, s{sW2}, {WS_W2F}")
    A(f"s_mul_i32 s{sHH}, s{S_RT}, 54"); A(f"s_add_u32 s{sHH}, s{sHH}, s{sK0}"); A(f"s_lshl_b32 s{sHH}, s{sHH}, 10"); A(f"s_add_u32 s{sHH}, s{sHH}, {WS_HHF}")
def w2one(f, force=False):
    return ([f"s_add_u32 s31, s{sW2}, {1024*(f-f%4)}"] if (force or f % 4 == 0) else []) + [
        (f"buffer_load_dwordx4 {W2(f)}, v{vLast if f>=65 else vL16}, {WS4}, s31 offen offset:{1024*(f%4)} sc1", ("w2", f))]
def w2load(f0, f1): return [x for f in range(f0, f1) for x in w2one(f, f == f0)]
def hload(p, t, force=False):
    return ([f"s_add_u32 s49, s{sHH}, {p*32*55296+1024*(t-t%4)}"] if (force or t % 4 == 0) else []) + [
        (f"buffer_load_dwordx4 {a(aHH+4*t,4)}, v{vLast if t==13 else vL16}, {WS4}, s49 offen offset:{1024*(t%4)} sc1", ("h", p, t))]
CMP = lambda r: [f"v_cmp_ne_u32 vcc, v{vTag}, v{r}"]
def w2_poll(tail, name, reg, adr):
    ld = [f"s_mov_b32 s30, {FL_W2}", (f"buffer_load_dword v{reg}, v{adr}, {WS4}, s30 offen sc1", "pw")]
    pre = [f"v_min_u32 v{adr}, 13, v1", f"v_add_u32 v{adr}, s{sK0}, v{adr}", f"v_min_u32 v{adr}, 53, v{adr}", f"v_lshlrev_b32 v{adr}, 8, v{adr}"]
    return pre + ld, [("need", ["pw"])] + spin(tail, name, ld, CMP(reg), 8)
def hh_poll(p2, reg=vPoll):
    return [f"s_add_u32 s30, s59, {p2*16*8192}", (f"buffer_load_dword v{reg}, v{vPA}, {WS4}, s30 offen sc1", ("hp", p2))]
def hh_polladdr(t0):
    return [f"s_lshr_b32 s59, s{S_RT}, 1", "s_lshl_b32 s59, s59, 5", f"s_lshr_b32 s30, s{sK0}, 1", "s_add_u32 s59, s59, s30", "s_lshl_b32 s59, s59, 1", f"s_and_b32 s30, s{S_X}, 1", "s_add_u32 s59, s59, s30",
            "s_lshl_b32 s59, s59, 7", f"s_add_u32 s59, s59, {FL_HH}",
            f"v_min_u32 v{vPA}, 6, v1", f"v_lshlrev_b32 v{vPA}, 8, v{vPA}"]
def sspin(tail, name, load, pre, last, sload):
    if P.sglc:
        tail.label(f"L_{name}r"); tail(f"s_mov_b32 s{S_SPIN}, {P.spin}")
        import re
        if P.cnt and re.fullmatch(P.cnt, name): tail("s_add_u32 s94, s94, 1")
        tail.label(f"L_{name}l")
        for x in sload: tail(x + " glc")
        tail(f"s_sub_u32 s{S_SPIN}, s{S_SPIN}, 1"); tail("s_waitcnt lgkmcnt(0)"); tail(f"s_cbranch_scc1 L_{name}b")
        tail.extend(pre); tail(last); tail(f"s_cbranch_scc1 L_{name}l"); tail(f"s_branch L_{name}b")
    else: spin(tail, name, load, CMP(vPoll), 2)
    return pre + [last + (f"\ns_cbranch_scc1 L_{name}r" if not P.only else ""), f"L_{name}b:"]
def slpoll(u, r): return [f"s_buffer_load_dword s{r+k}, {WS4}, s{sLF} offset:{u*US*4096+1024*k}" for k in range(2)]
def slcheck(tail, u, r, sfx=""): return sspin(tail, f"g1l{u}{sfx}", lpoll(u), [], f"s_cmp_lg_u64 s[{r}:{r+1}], s[4:5]", slpoll(u, r))
def shpoll(p): return [f"s_buffer_load_dword s{6+k}, {WS4}, s59 offset:{p*16*8192+256*k}" for k in range(7)]
def shcheck(tail, p, sfx=""):
    pre = ["s_mov_b32 s13, s12"] + [f"s_xor_b64 s[{r}:{r+1}], s[{r}:{r+1}], s[4:5]" for r in (6, 8, 10, 12)] + ["s_or_b64 s[6:7], s[6:7], s[8:9]", "s_or_b64 s[10:11], s[10:11], s[12:13]"]
    return sspin(tail, f"g2p{p}{sfx}", hh_poll(p), pre, "s_or_b64 s[6:7], s[6:7], s[10:11]", shpoll(p))
def res_setup():
    return ["v_lshrrev_b32 v89, 2, v1", "v_and_b32 v88, 3, v1", f"s_lshl_b32 s63, s{S_WAVE}, 2", "v_add_u32 v88, s63, v88",
            "v_add_u32 v90, 24, v1", "v_lshrrev_b32 v90, 6, v90", "v_lshlrev_b32 v90, 31, v90", "v_lshl_or_b32 v90, v89, 8, v90", "v_lshl_add_u32 v90, v88, 4, v90",
            f"s_mul_i32 s61, s{S_RT}, 20480", f"s_mul_i32 s63, s{S_CB}, 2560", "s_add_u32 s61, s61, s63", f"s_add_u32 s61, s61, {WS_LNF}",
            "v_and_b32 v91, 7, v88", "v_lshlrev_b32 v91, 4, v91", f"s_lshr_b32 s62, s{S_WAVE}, 1", f"s_lshl_b32 s63, s{S_RT}, 1", "s_add_u32 s62, s62, s63", "s_lshl_b32 s62, s62, 10",
            f"s_lshl_b32 s63, s{S_X}, 7", "s_add_u32 s62, s62, s63", f"s_add_u32 s62, s62, {FL_LN}"]
def vlast(): return [f"s_lshr_b32 s48, s{S_WAVE}, 1", "s_lshl_b32 s48, s48, 31", f"v_or_b32 v{vLast}, s48, v{vL16}"]
def lpoll(j): return [f"s_add_u32 s30, s{sLF}, {j*US*4096}", (f"buffer_load_dword v{vPoll}, v{vPA}, {WS4}, s30 offen sc1", ("lp", j))]
def lcheck(tail, j, sfx=""): return spin(tail, f"g1l{j}{sfx}", lpoll(j), CMP(vPoll), P.lsleep)
def lndma(j):
    o = []
    for i in range(10):
        pre = [f"s_add_u32 m0, s{sWb}, {SL[j%3]*SLOT+i*1024}", f"s_add_u32 s55, s{sSrc}, {j*US*40960+i*1024}"] if i % 4 == 0 else []
        o.append(pre + [(f"buffer_load_dwordx4 v{vL16}, {WS4}, s55 offen offset:{(i%4)*1024} sc1 lds", ("ln", j))])
    return o
def g1_setup():
    o = [f"s_lshl_b32 s{sLF}, s{S_I}, 12", f"s_lshr_b32 s48, s{S_WAVE}, 1", "s_lshl_b32 s48, s48, 11", f"s_add_u32 s{sLF}, s{sLF}, s48", f"s_add_u32 s{sLF}, s{sLF}, {FL_LN}",
         f"s_lshl_b32 s48, s{S_X}, 7", f"s_add_u32 s{sLF}, s{sLF}, s48", f"v_min_u32 v{vPA}, 1, v1", f"v_lshlrev_b32 v{vPA}, 10, v{vPA}",
         f"s_mul_i32 s{sSt}, s{S_I}, {2*55296}", f"s_lshl_b32 s48, s{S_C}, 11", f"s_add_u32 s{sSt}, s{sSt}, s48",
         f"s_lshl_b32 s48, s{S_WAVE}, 9", f"s_add_u32 s{sSt}, s{sSt}, s48", f"s_add_u32 s{sSt}, s{sSt}, {WS_HHF}",
         f"s_mul_i32 s{sSrc}, s{S_I}, 40960", f"s_add_u32 s{sSrc}, s{sSrc}, s{sWb}", f"s_add_u32 s{sSrc}, s{sSrc}, {WS_LNF}", f"s_mov_b32 s{sNL}, 0xbfb8aa3b",
         f"s_lshl_b32 s{sHF}, s{S_I}, 5", f"s_add_u32 s{sHF}, s{sHF}, s{S_C}", f"s_lshl_b32 s{sHF}, s{sHF}, 8", f"s_add_u32 s{sHF}, s{sHF}, {FL_HH}",
         f"v_bfe_u32 v{vLast}, v1, 4, 1", f"v_mul_u32_u24 v{vST}, 55296, v{vLast}", f"v_lshrrev_b32 v{vLast}, 5, v1", f"v_lshl_add_u32 v{vST}, v{vLast}, 8, v{vST}",
         f"v_and_b32 v{vLast}, 15, v1", f"v_lshl_add_u32 v{vST}, v{vLast}, 4, v{vST}",
         f"v_lshrrev_b32 v{vLast}, {6 if P.fdw else 4}, v0", f"v_min_u32 v{vLast}, 1, v{vLast}", f"v_lshrrev_b32 v{vFLa}, {2 if P.fdw else 0}, v{vL16}", f"v_lshl_or_b32 v{vFLa}, v{vLast}, 31, v{vFLa}"]
    return o + [f"v_add_u32 v{vRD[k]}, {SL[k]*SLOT}, v{vL16}" for k in range(3)] + vlast()
TAG4 = [f"v_mov_b32 v{92+i}, v{vTag}" for i in range(4)]
def flagst(sr): return f"buffer_store_dword v{vTag}, v{vFLa}, {WS4}, s{sr} offen sc1" if P.fdw else f"buffer_store_dwordx4 v[92:95], v{vFLa}, {WS4}, s{sr} offen sc1"

def backend(S, C, tail):
    A = S
    vACC = 12; vE = 44; vP = 52; FR = 56
    depth = 8; grp = P.grp; ahead = depth - grp
    for i in range(ahead): A((f"ds_read_b128 {v(FR+4*i,4)}, v{vRD[0]} offset:{i*1024}", ("f", 0, i)))
    stamp(S.A, C, "g1_go")
    mf = []; ev = []; gbs = []
    SB = {0: {}, 1: {j: j + 1 for j in range(NU - 1 - P.nfx)}, 2: {0: 2, 1: 2, 2: 4, 3: 4, 4: 5}, 3: {0: 2, 1: 2, 2: 4, 3: 4, 4: 6, 5: 6, 6: 7}}[P.mg]
    FB = {j: j + 2 for j in range(min(NU - 2, NU - 1 - P.nfx))}
    if P.mg == 2: FB.update({0: 4, 1: 4, 2: 5, 3: 5})
    if P.mg == 3: FB.update({0: 4, 1: 4, 2: 6, 3: 6, 4: 7, 5: 7}); assert P.nfx == 0
    for j in range(NU):
        acc = vACC + 16 * (j & 1); last = j == NU - 1; g0 = len(mf); fr = []
        for st in range(2):
            for k0 in range(0, 20, grp):
                for gu in range(2):
                    for kk in range(k0, k0 + grp):
                        i = st * 20 + kk; ac = acc + 8 * st + 4 * gu
                        mf.append(f"v_mfma_f32_16x16x32_bf16 {v(ac,4)}, {a(8*kk+4*gu,4)}, {v(FR+4*(i%depth),4)}, {'0' if kk == 0 else v(ac,4)}"); fr.append(i)
        last_use = {f: idx for idx, f in enumerate(fr)}
        first_use = {f: idx for idx, f in reversed(list(enumerate(fr)))}
        gb = last_use[40 - depth] + P.gboff; gbs.append(g0 + gb)
        for nx in range(ahead, 40 if last else 40 + ahead):
            g = (last_use[nx - depth] + 1) if nx >= depth else nx - ahead
            if nx >= 40: g = max(g, gb + nx - 40)
            ev.append((g0 + g, 1, (f"ds_read_b128 {v(FR+4*(nx%depth),4)}, v{vRD[(j + nx // 40) % 3]} offset:{(nx%40)*1024}", ("f", j + nx // 40, nx % 40))))
        for f in range(0, 40, 2):
            if first_use[f] < gb: ev.append((g0 + first_use[f], 0.7, ("need", None, [("f", j, f + 1)])))
        ev.append((g0 + gb, 0, ("need", [("ln", j + 1), ("ln", j)] + [("hs", k) for k in range(NU) if FB.get(k) == j], 0)))
        def chk(j=j): assert (j + 1 == NU or S.vm.count(("ln", j + 1)) == 10) and all(("hs", k) in S.vm for k in range(NU) if FB.get(k) == j)
        ev.append((g0 + gb, 0.2, ("call", chk))); ev.append((g0 + gb, 0.5, "s_barrier"))
        ev.append((g0 + 80, 0.8, ("call", lambda j=j: stamp(S.A, C, f"g1_u{j}"))))
    G2 = len(mf); gstart = {}; gend = {}
    cuts = lambda p: sorted(set(c for c in range(0, 14, P.g2g) if p < 3 or c <= 14 - P.ntail) | ({14 - P.ntail} if p == 3 else set()) | {14})
    for p in range(4):
        acc = aACC + 20 * (p & 1)
        for t in range(14):
            tags = [("h", p, t)] + ([("w2", f) for f in range(min(5*t+5, 64 if P.wst else 70))] if p == 0 else [])
            ev.append((len(mf), 0.75, ("need", tags, ["wsr"] if (P.wst and p == 0 and t == 4) else None)))
            def chk(tags=tags): assert all(tg in S.vm for tg in tags), tags
            ev.append((len(mf), 0.76, ("call", chk)))
            m1 = lambda t, dt: f"v_mfma_f32_16x16x32_bf16 {a(acc+4*dt,4)}, {W2(5*t+dt)}, {a(aHH+4*t,4)}, {'0' if t == 0 else a(acc+4*dt,4)}"
            gstart[(p, t)] = len(mf)
            if t + 1 in cuts(p):
                t0 = max(c for c in cuts(p) if c <= t)
                mf += [m1(tt, dt) for dt in range(5) for tt in range(t0, t + 1)]
                for tt in range(t0, t + 1): gend[(p, tt)] = len(mf) - (t - tt)
        if p < 3: ev.append((len(mf), 0.8, ("call", lambda p=p: stamp(S.A, C, f"g2_p{p}"))))
    N = len(mf)
    gF = G2 + P.gflag
    if C.diag and P.gs1:
        for gg in range(P.gs0, P.gs0 + 13 * P.gs1, P.gs1): ev += [(gg, -2, "s_nop 0"), (gg, -1, ("call", lambda gg=gg: stamp(S.A, C, f"b{gg}")))]
    gX = {j: 80 * (j + 1) + P.epidl + 2 + P.fd for j in range(NU - 1 - P.nfx, NU - 1)}; gX[NU - 1] = gF
    for j, gg in gX.items(): ev += [(gg, 0, ("need", [("hs", j)])), (gg, 0.5, "s_barrier")]
    assert sum(g < G2 for g in gX.values()) == sum(g < G2 - 3 for g in gX.values())
    for p in (2, 3): ev.append((G2 + 70 * (p - 1) + (P.c2, P.c3)[p - 2], 0.9, ("need", None, 0)))
    ev.sort(key=lambda e: (e[0], e[1]))
    q0 = Seq()
    for g, _, x in ev: q0.add(x, g, g)
    def epi(j):
        pacc = vACC + 16 * (j & 1); vP = (52, 92)[j & 1]
        G = lambda i: pacc + 8 * (i >> 2) + (i & 3)
        st = [lambda i: f"v_mul_f32 v{vE+i}, s{sNL}, v{G(i)}", lambda i: f"v_exp_f32 v{vE+i}, v{vE+i}", lambda i: f"v_add_f32 v{vE+i}, 1.0, v{vE+i}",
              lambda i: f"v_rcp_f32 v{vE+i}, v{vE+i}", lambda i: f"v_mul_f32 v{vE+i}, v{vE+i}, v{G(i)+4}"]
        prs = []
        for i0 in range(0, 8, 2):
            o = []
            for f in st: o += [f(i0), f(i0 + 1)]
            prs.append(o + [f"v_cvt_pk_bf16_f32 v{vP+i0//2}, v{vE+i0}, v{vE+i0+1}"])
        return prs, [f"v_permlane16_swap_b32 v{vP}, v{vP+2}", f"v_permlane16_swap_b32 v{vP+1}, v{vP+3}", f"s_add_u32 s56, s{sSt}, {j*US*2*55296}",
                     (f"buffer_store_dwordx4 {v(vP,4)}, v{vST}, {WS4}, s56 offen sc1", ("hs", j))]
    def hflag(j): return [f"s_add_u32 s57, s{sHF}, {j*US*8192}", (flagst(57), "hf")]
    qe = [Seq() for _ in range(4)]; q2 = Seq(); busy = set(); fl = []; st_at = {}
    for j in range(NU):
        prs, fin = epi(j); g0 = 80 * (j + 1)
        early = P.eearly and (j < 2 or st_at[j - 2] + 6 < g0 - 80 + 46)
        dl = g0 + ((P.epidl if early else 58) if j < NU - 1 else P.epil)
        for k, o in enumerate(prs):
            r = g0 + 4 + 2 * k
            if k < 2 and early: r = g0 - 80 + 46 + 2 * k
            elif early: r -= 4
            assert j < 2 or r > st_at[j - 2] + 5
            qe[k].addl(o, r, dl=dl)
        st_at[j] = gbs[SB[j]] + 1 if j in SB else dl + 2
        assert j not in gX or gX[j] > st_at[j] + 30
        fl += [(dl + 1, fin[:2], dl + 4), (st_at[j], fin[2:], st_at[j] + 5), ((gX[j] if j in gX else (gbs[FB[j]] if j in FB else gF)) + 1.5, hflag(j), None)]
        b = (st_at[j] + 1) // 4
        while b in busy: b += 1
        busy.add(b)
        for k in range(P.quiet): busy.add(b + 1 + k)
    for gg, it, dl in sorted(fl, key=lambda e: e[0]): q2.addl(it, gg, dl=dl)
    q1 = Seq(); side = []
    X = {1: P.x1}; q5 = Seq(); sp = []
    side.append((max(X[1] - 2, 0), slcheck(tail, 1, 8)))
    for u in range(2, NU):
        b = u - 2 if u < P.ud else u - 3; r = 6 + 2 * (u & 1)
        X[u] = gbs[b] + 2; sp.append((gbs[b] - (P.pl if u > 3 else P.pl1), slpoll(u, r), gbs[b] - 1)); side.append((gbs[b] + 1, slcheck(tail, u, r)))
    XH = G2 - 36
    sp.append((X[NU - 1] + 25, hh_polladdr(88), X[NU - 1] + 44))
    cp = [XH - 4, G2 - 8, G2 + 70 + P.c2, G2 + 140 + P.c3]
    assert X[NU - 1] + 44 < cp[0] - P.plv and P.fdw
    for p in (0, 1):
        rg = (vPoll, 0)[p]
        side += [(cp[p] - P.plv, hh_poll(p, rg)), (cp[p], [("need", [("hp", p)])] + spin(tail, f"g2p{p}", hh_poll(p, rg), CMP(rg), 2))]
    for p in (2, 3): sp.append((cp[p] - (P.pl2, P.pl3)[p - 2], shpoll(p), cp[p] - 1)); side.append((cp[p] + 1, shcheck(tail, p)))
    for gg, it, dl in sorted(sp, key=lambda e: e[0]): q5.addl([x.replace("s30", "s48") for x in it], gg, dl=dl)
    side.sort(key=lambda e: e[0])
    lnq = [(X[u], d) for u in range(1, NU) for d in lndma(u)]
    hq = [(XH + 4 * (t // 4) if p == 0 else max(gend[(p - 1, t)], cp[p] + 2), p, t) for p in range(4) for t in range(14)]
    XE = X[NU - 1] + 44; nearly = 64 - P.npre - ((XH - XE) // 4 - P.wsp)
    wf = P.npre; g = 3; pre_h = []; first2 = True; nslot = 0
    WE = 70
    if P.wst:
        WE = 64
        stg = [([f"s_add_u32 m0, s{sWb}, {1024*(k-k%4)}", f"s_add_u32 s55, s{sW2}, {1024*(64+k-k%4)}"] if k % 4 == 0 else []) +
               [(f"buffer_load_dwordx4 v{vLast if k else vL16}, {WS4}, s55 offen offset:{1024*(k%4)} sc1 lds", "wst")] for k in range(6)]
        k0 = 10 * P.wst; lnq[k0:k0] = [(lnq[k0 - 1][0], d) for d in stg]
        q5.addl([f"v_add_u32 v2, s{sWb}, v{vL16}", ("need", ["wst"])], G2 - 24)
        q5.addl([(f"ds_read_b128 {W2(64+k)}, v2 offset:{1024*k}", "wsr") for k in range(6)], G2 - 14, 1, dl=G2 - 1)
        q5.items.sort(key=lambda e: e[1])
    free = []; k = 0
    for gg in range(3, XH - 1, 4):
        if gg // 4 in busy: continue
        if k < len(lnq) and lnq[k][0] <= gg: k += 1
        else: free.append(gg)
    extra = len(free) - (64 - P.npre); wslots = set(free)
    early = [gg for gg in free if gg < XE]
    for i in range(max(extra, 0)): wslots.discard(early[(i * len(early)) // extra])
    while lnq or hq or wf < WE:
        while side and side[0][0] <= g: gg, it = side.pop(0); q1.addl(it, gg, dl=(min(G2 - 1, gg + 20) if gg < G2 else gg + 8))
        force = g >= G2 and first2
        dlv = G2 - 1 if g < G2 else None
        if g // 4 in busy and g < G2: pass
        elif lnq and lnq[0][0] <= g: q1.addl(lnq.pop(0)[1], g, dl=dlv)
        elif hq and hq[0][0] <= g and (hq[0][1] == 0 or wf == WE):
            _, p, t = hq.pop(0); q1.addl(hload(p, t, g >= G2 and p == 0), g, dl=min(gstart[(p, t)] - 1, dlv or N))
            if g < G2: pre_h.append(t)
        elif wf < WE and (wf < 64 or g >= G2 - 16) and (g >= XH - 1 or g in wslots):
            q1.addl(w2one(wf, g >= G2 or wf == P.npre), g, dl=min(G2 + wf - 5, dlv or N)); wf += 1
            if g < G2: P.wdone = wf
        g += 4 if g < XH - 1 else (P.hstep if g < G2 + P.hext else P.g2step)
        if G2 <= g < G2 + 2: g = G2 + 2
    for gg, it in side: q1.addl(it, gg)
    P.pre_h = pre_h
    vRW, vRR, vO, vHR, vSA, vT0, vT1 = 2, 3, 4, 90, 91, 88, 89
    vR = 12; vSt = 60; vRes = 68; vTm = 76
    sO, sHR, sSA = 60, 61, 62
    RS = 288; WR = 20 * RS; BUF = 4 * WR
    T = Asm()
    T(f"v_min_u32 v{vRR}, 9, v{vT1}"); T(f"v_mul_u32_u24 v{vRR}, {2*RS}, v{vRR}"); T(f"v_lshl_add_u32 v{vRR}, v{vT0}, 4, v{vRR}")
    T(f"v_mul_u32_u24 v{vO}, 1280, v{vT0}"); T(f"v_lshl_add_u32 v{vO}, v{vT1}, 4, v{vO}"); T(f"v_and_b32 v{vT1}, 0x80000000, v{vHR}"); T(f"v_or_b32 v{vO}, v{vO}, v{vT1}")
    T(f"s_mul_i32 s{sO}, s{S_RT}, 20480"); T(f"s_mul_i32 s66, s{S_CB}, 160"); T(f"s_add_u32 s{sO}, s{sO}, s66")
    T(f"v_lshrrev_b32 v{vT0}, 4, v1"); T(f"v_mul_u32_u24 v{vRW}, {RS}, v{vT0}"); T(f"v_and_b32 v{vT0}, 15, v1"); T(f"v_lshl_add_u32 v{vRW}, v{vT0}, 4, v{vRW}")
    T(f"s_mul_i32 s66, s{S_WAVE}, {WR}"); T(f"v_add_u32 v{vRW}, s66, v{vRW}")
    srd(T, SRD_A, P_OUT, NB_SD)
    def wr(p): return [(f"ds_write_b128 v{vRW}, {a(aACC+20*(p&1)+4*dt,4)} offset:{(p&1)*BUF+4*RS*dt}", "w") for dt in range(5)]
    def rd(p): return [(f"ds_read_b128 {v(vR+8*w+4*j,4)}, v{vRR} offset:{(p&1)*BUF+WR*w+RS*j}", ("rd", w)) for w in range(4) for j in range(2)]
    def stload(p): return [f"s_add_u32 s64, s{sSA}, {p*65536}", (f"buffer_load_dwordx4 {v(vSt+4*(p&1),4)}, v{vSA}, {WS4}, s64 offen sc1", ("r", p))]
    def resload(p): return [f"s_add_u32 s63, s{sHR}, {p*655360}", (f"buffer_load_dwordx4 {v(vRes+4*(p&1),4)}, v{vHR}, {WS4}, s63 offen sc1", ("r", p))]
    TM = lambda p, j: (vTm + j) if p < 3 else (44 + j)
    def fin1(p):
        st = vSt + 4 * (p & 1); t0 = TM(p, 0)
        chk = [f"v_xor_b32 v{t0}, v{vTag}, v{st}", f"v_bitop3_b32 v{t0}, v{st+3}, v{vTag}, v{t0} bitop3:0xbe", f"v_cmp_ne_u32 vcc, 0, v{t0}"]
        return ([("need", [("r", p)])] + spin(tail, f"g2s{p}", stload(p), chk, 2) + unpk(t0, vRes + 4 * (p & 1), 4)
                + [f"v_fma_f32 v{t0+j}, v{t0+j}, v{st+2}, v{st+1}" for j in range(8)])
    def fin2(p):
        o = []; t0 = TM(p, 0)
        for w in range(4):
            o.append(("need", None, [("rd", w)]))
            if p < 3: o += [f"v_add_f32 v{t0+j}, v{t0+j}, v{vR+8*w+j}" for j in range(8)]
            else: o += [f"v_pk_add_f32 {v(t0+j,2)}, {v(t0+j,2)}, {v(vR+8*w+j,2)}" for j in range(0, 8, 2)]
        o += [f"v_cvt_pk_bf16_f32 v{vR+j}, v{t0+2*j}, v{t0+2*j+1}" for j in range(4)]
        return [f"s_add_u32 s65, s{sO}, {p*655360}"] + o + [(f"buffer_store_dwordx4 {v(vR,4)}, v{vO}, {s(SRD_A,4)}, s65 offen", "st")]
    q3 = Seq(); q4 = Seq()
    q3.addl(res_setup(), XH - 30, dl=G2 - 1)
    for p in range(4):
        g0 = G2 + 70 * p
        q3.addl(resload(p) + stload(p), g0 + 3, 2, dl=g0 + 12)
        if p == 0: q3.addl(T.lines, G2 + 12, dl=G2 + 60)
        if p > 0:
            q3.addl(fin1(p - 1), g0 + 14, dl=g0 + 40)
            q4.addl(wr(p - 1), g0 + 4, 4); q4.add(("need", None, ["w"]), g0 + 28); q4.add("s_barrier", g0 + 28); q4.addl(rd(p - 1), g0 + 29, P.rdstep)
            q4.addl(fin2(p - 1), g0 + (42 if p < 3 else 38), dl=g0 + 69)
    q3.addl(fin1(3), N - 20)
    for dt, x in enumerate(wr(3)): q2.add(x, N - 5 * P.ntail + P.ntail * (dt + 1) + 3)
    out = schedule(mf, [q0, q1, q5, q2, q4] + qe + [q3])
    k = [i for i, x in enumerate(out) if isinstance(x, str) and x.startswith("v_mfma")][G2 - 1] + 1
    A.extend(out[:k]); stamp_flush(S.A, C); A.label("L_g2"); A.extend(out[k:])
    stamp(S.A, C, "g2_p3")
    A.need(None, 0); A("s_barrier"); A.extend(rd(3)); A.extend(fin2(3))
    stamp(S.A, C, "g2_end")

def build(diag):
    assert P.xall or not P.rpre
    P.npre = max(P.npre, P.npre0)
    C = Ctx(diag)
    A = Asm(); tail = Asm()
    start(A, C)
    S = Stream(A)
    p0(S, C)
    if diag: A("s_mov_b32 s101, 0")
    conv(S, C, tail)
    stamp_flush(A, C)
    A.label("L_g1")
    backend(S, C, tail)
    stamps_out(A, C, "s101", 15, "f")
    A.label("L_end"); A("s_endpgm")
    A.label("L_nc")
    A("s_and_b32 s53, s53, 0xffff"); A("s_mov_b32 s54, L_code_end-L_pc"); A("s_mov_b32 s55, 0x20000")
    A(f"s_sub_u32 s30, s{S_J}, 20"); A("s_and_b32 s30, s30, 15"); A("s_lshl_b32 s30, s30, 7"); A("v_mul_u32_u24 v9, 1536, v0")
    A("buffer_load_dword v253, v9, s[52:55], s30 offen")
    if P.norole: A("s_endpgm")
    w1_touch_setup(A)
    if P.bt:
        A("v_cmp_gt_u32 vcc, 107, v0"); A("v_lshlrev_b32 v2, 7, v0"); A("s_sub_u32 s48, s2, 160"); A("v_cndmask_b32 v2, v8, v2, vcc")
        A(f"s_mul_i32 s48, s48, {107*128}"); A(f"s_add_u32 s48, s48, {1021*1280}")
    A("s_waitcnt lgkmcnt(0)"); stamp(A, C, -1)
    if P.bt:
        srd(A, SRD_A, P_K, NB_SD); A(f"buffer_load_dword v246, v2, {s(SRD_A,4)}, s48 offen")
        srd(A, SRD_B, P_V, NB_SD); A(f"buffer_load_dword v247, v2, {s(SRD_B,4)}, s48 offen")
    epoch_load(A)
    if P.hold == 1: A("s_waitcnt vmcnt(0)")
    A(f"s_cmp_ge_u32 s{S_J}, 27"); A("s_cbranch_scc1 L_nf")
    if diag: A("s_mov_b32 s101, 1")
    common_setup(A, 'f')
    if P.fdelay: A(f"s_sleep {P.fdelay}")
    if P.hold == 2: epoch_finish(A)
    A(f"s_sub_u32 s{S_ID}, s2, 160"); A(f"s_min_u32 s{S_ID}, s{S_ID}, 53")
    S = Stream(A)
    H = lambda qd, h: w1_dma(qd, (1, 0, 3, 2)[qd], 5 * h, 5 * h + 5)
    seqs = [[(0,0),(0,1),(2,0),(2,1),(3,0),(3,1)], [(2,1),(3,0),(3,1),(0,0),(0,1),(2,0)]]
    if not P.touch:
        H = lambda qd, h: w1_dma(qd, (1, 3, 2, 0)[qd], 5 * h, 5 * h + 5)
        seqs = [[(q, h) for q in o for h in (0, 1)] for o in ((0, 2, 1, 3), (1, 3, 0, 2))]
    def both(a0, a1, tag):
        if P.pair: A(f"s_bitcmp1_b32 s{S_I}, 2"); A(f"s_cbranch_scc1 L_fp{tag}")
        for q in seqs[0][a0:a1]: S.extend(H(*q))
        if P.pair:
            A.label(f"L_fq{tag}"); tail.label(f"L_fp{tag}")
            for q in seqs[1][a0:a1]: tail.extend([text(x) for x in H(*q)])
            tail(f"s_branch L_fq{tag}")
    def more():
        both(0, 2, "a")
        if P.hold != 2: epoch_finish(A)
    repack(A, more, 10)
    A.extend(g1_setup()); A(f"s_lshl_b32 s57, s{S_ID}, 8"); A(f"s_add_u32 s57, s57, {FL_W2}")
    if not P.touch: A("s_barrier")
    both(2, 3, "b"); A("s_waitcnt vmcnt(5)"); A("s_barrier")
    S(flagst(57))
    stamp(A, C, "f_rp")
    ld, ck = w2_poll(tail, "fw2", 88, 89)
    if P.touch:
        both(3, 6, "c"); S.extend(w1_dma(1, 0)); S.extend(ld)
        S.need([("w1", 3)]); A("s_barrier"); S.extend(w1_tr(2, 3, 12)); S.extend(w1_tr(0, 1, 13)); S.extend(w1_tr(3, 2, 14))
        S.need(0, 0); A("s_barrier"); S.extend(w1_tr(1, 0, 12))
    else:
        both(3, 8, "c"); S.extend(ld)
        S.need([("w1", 1)]); A("s_barrier"); S.extend(w1_tr(1, 3, 12)); S.extend(w1_tr(0, 1, 13))
        S.need(0, 0); A("s_barrier"); S.extend(w1_tr(2, 2, 12)); S.extend(w1_tr(3, 0, 13))
    stamp(A, C, "f_w1")
    S.extend(ck); S.extend(w2load(0, P.npre)); S.extend(slpoll(0, 6)); S.need(None, 0)
    S.extend(slcheck(tail, 0, 6, "f"))
    stamp(A, C, "g1_l0")
    for d in lndma(0): S.extend(d)
    A("s_waitcnt vmcnt(4)"); S.extend(slpoll(1, 8)); A("s_waitcnt vmcnt(0) lgkmcnt(0)"); A("s_barrier")
    stamp_flush(A, C)
    A("s_branch L_g1")
    A.label("L_nf")
    if P.only: A("s_endpgm")
    if diag: A("s_mov_b32 s101, 2")
    A(f"s_sub_u32 s{S_ID}, s2, 216")
    rworker(A, C, tail)
    A("s_waitcnt vmcnt(0)")
    S = Stream(A)
    ld, chk = w2_poll(tail, "msw2", 88, 89)
    S.extend(ld); A.extend(vlast()); S.extend(chk)
    S.extend(w2load(0, 32)); A("s_waitcnt vmcnt(16)"); S.extend(w2load(32, P.wdone + (6 if P.wst else 0)))
    assert not P.wst or P.wdone == 64
    A(f"v_bfrev_b32 v{vFLa}, 1"); A(f"v_bfrev_b32 v{vST}, 1"); A(f"s_mov_b32 s{sSt}, 0"); A(f"s_mov_b32 s{sHF}, 0"); A("s_mov_b32 s56, 0"); A("s_mov_b32 s57, 0")
    S.extend(hh_polladdr(88))
    if P.rg2 >= 0:
        A(f"s_cmp_lg_u32 s{S_WAVE}, 0"); A("s_cbranch_scc1 L_msh")
        A(f"s_mul_i32 s30, s{S_ID}, 2731"); A("s_lshr_b32 s30, s30, 12"); A("s_lshl_b32 s30, s30, 8"); A("v_mov_b32 v88, s30")
        hl = [f"s_add_u32 s30, s59, {P.rg2*16*8192}", f"buffer_load_dword v{vPoll}, v88, {WS4}, s30 offen sc1"]
        A.extend(hl); A("s_waitcnt vmcnt(0)"); A.extend(spin(tail, "msh", hl, CMP(vPoll), 8))
        A.label("L_msh"); A("s_barrier")
    A.extend(shpoll(0)); A("s_waitcnt lgkmcnt(0)"); A.extend(shcheck(tail, 0, "m"))
    for t in P.pre_h: S.extend(hload(0, t))
    A.extend(shpoll(1)); A("s_waitcnt lgkmcnt(0)"); A.extend(shcheck(tail, 1, "m"))
    A.extend(res_setup()); epoch_update(A, tail)
    A("s_waitcnt vmcnt(0)")
    A("s_branch L_g2")
    A.lines += tail.lines
    A.label("L_code_end")
    A.lines = hazcheck.autopad(A.lines, "f")
    errs = hazcheck.check(A.lines, "f")
    assert not errs or P.kill
    txt = module([], [(NAME, A, 256, 256)])
    if P.ab:
        import re
        L = txt.split("\n"); o = []
        on = False
        for l in L:
            if P.ab & 4096 and re.search(r"s_cbranch_scc1 L_g1l0.r", l): l = "    s_nop 0"
            if l == "L_g1:": on = True
            if l == "L_end:": on = False
            if not on: o.append(l); continue
            if P.ab & 256 and re.search(r"s55 offen.*lds", l): l = l.replace("v10,", "v9,")
            if P.ab & 512 and re.search(r"buffer_store_dwordx4 .*s5[67] offen", l): l = "    buffer_load_dword v89, v9, s[44:47], 0 offen"
            if P.ab & 1024 and re.search(r"v_(exp|rcp|mul|add|cvt_pk_bf16|fma)_f32", l): continue
            if P.ab & 2048 and "s_barrier" in l: l = "    s_nop 0"
            if P.ab & 1 and re.search(r"buffer_load_dwordx4 .*s31 offen offset:\d+ sc1$", l): l = re.sub(r"v(10|6), s\[44:47\]", "v9, s[44:47]", l).replace("s31", "0")
            if P.ab & 2 and re.search(r"s_cbranch_(scc1|vccnz) L_g2p.r", l): l = "    s_nop 0"
            if P.ab & 4 and re.search(r"s_add_u32 s49, s73,", l): l = re.sub(r"s73, (\d+)", lambda m: f"s71, {WS_HHF + int(m.group(1)) % 327680}", l)
            if P.ab & 8 and re.search(r"s_add_u32 s55, s50,", l): l = re.sub(r"s50, (\d+)", lambda m: f"s50, {int(m.group(1)) % 40960}", l)
            if P.ab & 16 and "s56 offen sc1" in l: l = l.replace(" sc1", "")
            if P.ab & 32 and re.search(r"s_add_u32 s31, s72,", l): l = re.sub(r"s72, (\d+)", lambda m: f"s71, {WS_W2F + int(m.group(1))}", l)
            if P.ab & 64 and re.search(r"buffer_load_dwordx4 .*s49 offen offset:\d+ sc1$", l): l = re.sub(r"v(10|6), s\[44:47\]", "v9, s[44:47]", l).replace("s49", "0")
            if P.ab & 128 and re.search(r"s_cbranch_scc1 L_g1l[1-7]r", l): l = "    s_nop 0"
            o.append(l)
        txt = "\n".join(o)
    if P.sw: txt = txt.replace("s_cmp_lg_u32 s3, 0\n    s_cbranch_scc1 L_nost_f", f"s_cmp_lg_u32 s3, {P.sw}\n    s_cbranch_scc1 L_nost_f")
    if P.cyc: txt = txt.replace("s_memrealtime", "s_memtime")
    return "; @launch grid=(256,1,1) block=(256,1,1) lds=163840\n" + (f"; stamps: start {' '.join(C.names)}\n" if diag else "") + txt

DIAGS = {"all": "p0_ld|c_kv0|c_s0|c_s7|r_y0|r_f1|r_end|f_rp|g1_l0|g1_go|g1_u7|g2_p3|g2_end",
         "cv": "p0_[ls].|c_[abk].*|c_s[0-6]", "r1": "r_x.|r_prep|r_[yl][015]|r_f[125]|r_end", "g1": "g1_[lgu].*|c_s7|f_.*", "g2": "g1_u7|g2_.*", "r3": "r_[a-w,y]3|r_end", "r0": "r_[a-w,y]0|r_end", "fe": "p0_ld|c_kv0|c_s[0367]|f_..|r_prep|r_y0|g1_l0|g1_go", "ch": "c_s[07]|r_x.|r_prep|r_[yl][01]|r_f[12]|g1_l0|g1_go", "y0": "c_kv0|c_s[013]|c_ack|r_prep|r_h.|r_[yl]0|r_f1|g1_l0", "end": "g2_end", "st": "p0_ld|c_b|c_kv0|c_s[0356]|g1_l0|g1_go|g1_u[37]|g2_end", "bs": "b[0-9]+", "bc": "b[0-9]+|g1_l0|g1_go", "gu": "g1_[abu][3456]", "gg": "g1_go|g1_u[0-7]|g2_p.|g2_end"}
if __name__ == "__main__":
    pref = "k"; which = ""
    for o in sys.argv[1:]:
        k, val = o.split("=")
        if k == "pref": pref = val
        elif k == "which": which = val
        elif k in ("cnt", "tlbr"): setattr(P, k, val)
        else: setattr(P, k, float(val) if "." in val else int(val))
    for k, w in DIAGS.items():
        if which in ("", k): open(f"{pref}_{k}.s", "w").write(build(w))
    if which in ("", "rel"): open(f"{pref}.s", "w").write(build(False))
```

```python
TRANS = ("v_permlane", "v_exp_f32", "v_rcp_f32", "v_rsq_f32", "v_sqrt_f32", "v_log_f32")

class Stream:
    def __init__(self, A, like=None):
        self.A = A
        self.vm = list(like.vm) if like else []
        self.lg = list(like.lg) if like else []
    def __call__(self, x, tag=None):
        if isinstance(x, tuple):
            if x[0] == "need": return self.need(*x[1:])
            if x[0] == "call": return x[1]()
            x, tag = x
        self.A(x)
        if x.startswith("buffer_") or x.startswith("global_"): self.vm.append(tag)
        elif x.startswith("ds_"): self.lg.append(tag)
    def extend(self, L, tag=None):
        for x in L: self(x, tag)
    def need(self, vt=None, lt=None):
        parts = []
        if vt == 0: parts.append("vmcnt(0)")
        elif vt:
            idx = [i for i, tg in enumerate(self.vm) if tg in vt]
            assert idx, vt
            parts.append(f"vmcnt({min(len(self.vm) - 1 - max(idx), 62)})")
        if lt == 0: parts.append("lgkmcnt(0)")
        elif lt:
            idx = [i for i, tg in enumerate(self.lg) if tg in lt]
            assert idx, lt
            parts.append(f"lgkmcnt({min(len(self.lg) - 1 - max(idx), 14)})")
        self.A("s_waitcnt " + " ".join(parts))
    def label(self, l): self.A.label(l)

def text(x):
    if isinstance(x, tuple):
        if x[0] == "need": return "s_waitcnt"
        if x[0] == "call": return ":"
        return x[0]
    return x
def kind(x):
    t = text(x)
    if t.endswith(":"): return "label", 0
    if t.startswith("v_"):
        return "valu", (2 if t.startswith(TRANS) else 1)
    if t.startswith("ds_write") or t.startswith("buffer_store"): return "mem", 2
    if t.startswith("ds_") or t.startswith("buffer_"): return "mem", 1
    return "sc", 1 + t.count("\n")

class Seq:
    def __init__(self): self.items = []
    def add(self, x, rel=0, dl=None):
        self.items.append((x, rel, dl)); return self
    def addl(self, L, rel=0, step=0, dl=None, stepon=None):
        for x in L:
            self.items.append((x, int(rel), dl))
            if stepon is None or stepon(text(x)): rel += step
        return int(rel)

def isvm(t): return t.startswith("buffer_")

def schedule(mf, seqs):
    n = len(mf); out = []
    ptr = [0] * len(seqs)
    for g in range(n + 1):
        slots = 3; first = True; hadv = False
        def head(i): return seqs[i].items[ptr[i]] if ptr[i] < len(seqs[i].items) else None
        def cost(x):
            k, c = kind(x)
            if c and first and k != "sc": c += 1
            if k == "mem" and hadv: c += 2
            return c
        def emit(i):
            nonlocal slots, first, hadv
            x = seqs[i].items[ptr[i]][0]; k, c = kind(x)
            slots -= cost(x)
            if c: first = False
            if k == "valu": hadv = True
            out.append(x); ptr[i] += 1
            while head(i) and kind(head(i)[0])[0] == "label": out.append(head(i)[0]); ptr[i] += 1
        def due(i):
            return any(dl is not None and dl <= g for (_, _, dl) in seqs[i].items[ptr[i]:])
        if g == n:
            for i in range(len(seqs)):
                while head(i): emit(i)
            break
        for i in range(len(seqs)):
            h = head(i)
            if h and kind(h[0])[0] == "sc" and (h[1] <= g or (h[1] <= g + 2 and text(h[0]).startswith("s_add_u32"))): emit(i); break
        for i in range(len(seqs)):
            while head(i) and due(i): emit(i)
        prog = True
        while slots > 0 and prog:
            prog = False
            for want in ("mem", None):
                for i in range(len(seqs)):
                    h = head(i)
                    if not h or h[1] > g: continue
                    if want and kind(h[0])[0] != want: continue
                    if cost(h[0]) <= slots:
                        emit(i); prog = True; break
                if prog: break
        out.append(mf[g])
    return out
```

```python
import sys
import importlib, os
k2 = importlib.import_module(os.environ.get("KM", "k2"))
from asmlib import *
from phases import WS_TS
out, nm, role, mode = sys.argv[1:5]; role = int(role)
for o in sys.argv[5:]:
    k, val = o.split("="); setattr(k2.P, k, int(val))
txt = k2.build(nm if nm != "start" else "g2_end")
idx = 0 if nm == "start" else 1
b0, b1 = [(0, 160), (160, 216), (216, 256), (0, 256)][role]
E = Asm()
E("s_cmp_ge_u32 s2, 1"); E("s_cbranch_scc1 L_pr_end")
E("s_load_dwordx2 s[4:5], s[0:1], 96"); E("s_waitcnt lgkmcnt(0)"); srd(E, 8, 4, 256 << 20)
E("v_cmp_le_u32 vcc, 160, v0"); E("v_lshlrev_b32 v1, 6, v0"); E("v_mov_b32 v5, 0x10000"); E("v_cndmask_b32 v2, 0, v5, vcc"); E("v_add_u32 v1, v1, v2")
E("v_cmp_le_u32 vcc, 216, v0"); E("s_nop 1"); E("v_cndmask_b32 v2, 0, v5, vcc"); E("v_add_u32 v1, v1, v2")
E(f"s_mov_b32 s3, {WS_TS}")
E("buffer_load_dword v3, v1, s[8:11], s3 offen"); E(f"buffer_load_dword v4, v1, s[8:11], s3 offen offset:{4*idx}")
E("v_mov_b32 v6, 0"); E("v_mov_b32 v7, -1"); E("ds_write_b32 v6, v7"); E("ds_write_b32 v6, v6 offset:4"); E("s_waitcnt vmcnt(0) lgkmcnt(0)"); E("s_barrier")
E("ds_min_u32 v6, v3"); E("s_waitcnt lgkmcnt(0)"); E("s_barrier"); E("ds_read_b32 v8, v6"); E("s_waitcnt lgkmcnt(0)")
E("v_sub_u32 v4, v4, v8"); E(f"v_subrev_u32 v9, {b0}, v0"); E(f"v_cmp_gt_u32 vcc, {b1-b0}, v9"); E("s_nop 1"); E("v_cndmask_b32 v4, 0, v4, vcc")
E("ds_max_u32 v6, v4 offset:4" if mode == "max" else "ds_add_u32 v6, v4 offset:4"); E("s_waitcnt lgkmcnt(0)"); E("s_barrier")
E("ds_read_b32 v8, v6 offset:4"); E("s_memrealtime s[12:13]"); E("s_waitcnt lgkmcnt(0)"); E("v_readfirstlane_b32 s6, v8"); E("s_nop 3")
if mode == "max": E("s_mul_i32 s6, s6, 20")
elif mode == "zero": E("s_mov_b32 s6, 0")
else: E(f"s_mul_i32 s6, s6, {round(20*256/(b1-b0))}"); E("s_lshr_b32 s6, s6, 8")
E("s_min_u32 s6, s6, 200000")
E.label("L_pr_loop")
E("s_memrealtime s[14:15]"); E("s_waitcnt lgkmcnt(0)"); E("s_sub_u32 s16, s14, s12"); E("s_cmp_lt_u32 s16, s6"); E("s_cbranch_scc1 L_pr_loop")
E.label("L_pr_end"); E("s_endpgm")
L = txt.split("\n")
L[0] = f"; @launch kernel={k2.NAME} grid=(256,1,1) block=(256,1,1) lds=163840\n; @launch kernel=probe_kernel grid=(1,1,1) block=(256,1,1) lds=64"
txt = "\n".join(L)
i = txt.index('.section .rodata')
txt = txt[:i] + kernel_header("probe_kernel") + E.text() + txt[i:] + ".p2align 6\n" + kernel_desc("probe_kernel", 16, 0)
open(out, "w").write(txt)
```

```python
import sys, struct
from asmlib import *
from phases import (Ctx, stamp, stamp_flush, stamps_out, WS_LNF, WS_HR, WS_HHF, WS_W2F, WS_SIZE, OOB, NB_SD, NB_W,
                    P_Q, P_K, P_V, P_SH, P_SK, P_SD, P_BX, P_WG, P_WU, P_WD, P_OUT, P_DBG, P_WS, S_WAVE, SRD_A, SRD_B, SRD_C, SRD_WS)
from sched import *
import hazcheck
NAME = "sequential_preLN__ssm_conv_h3__glu_gated_glu__prompt_kernel"

WS_KT = 24 << 20
WS_YT = 32 << 20
WS_FL = 40 << 20
FL_E = WS_FL
FL_W2 = WS_FL + 0x1000
FL_LN = WS_FL + 0x100000
FL_HH = WS_FL + 0x40000
S_TAG32, S_TAG16, S_TAGF, S_X, S_J, S_SPIN = 100, 99, 98, 97, 96, 95
S_MSK, S_PM = 26, 27
sWsrc, sWb, sW2, sHH, sK0, S_CB, S_RT, S_I, S_C, S_ID = range(70, 80)
SPIN_MAX = 1 << 14
vL16, vTag = 10, 11
WS4 = s(SRD_WS, 4)
SLOT = 40960

class P:
    poll_at = 64
    poll_lead = 16
    w1step = 4.5
    npre = 0
    npre0 = 0
    g1_dstep = 4
    g1_wstep = 4
    xall = 1
    touch = 0
    cw1 = 1
    xw = 0
    gbl = 1
    nolg = 0
    nb7 = 0
    nx = 2
    zz = 0
    nosleep = 1
    hs = 0
    m2 = 48
    KG = 4096
    YP = 20480
    HS = 55296
    LS = 20480
    WC = 276480
    wdir = 0
    q0e = 0
    epid2 = 60
    nb1 = 3
    w64 = 0
    ring = 18
    rl5 = 27
    cv6 = 0
    m6 = 40
    k6 = 170
    k6s = 4
    d61 = 9
    d62 = 9
    l6 = 6
    l6p = 24
    w6g = 100
    w6s = 4.5
    r2 = 1
    rhold = 0
    rl1 = 18
    rl2 = 27
    bst = 1
    pre1 = 0
    om = ' nt'
    nt = 15
    lite = 0
    xo = 0
    wb = 0
    g2m = 0
    ord = 1
    rl4 = 18
    l0e = 0
    hlate = 0
    e4 = 529
    rpre = 1
    m45 = 0
    g2g = 2
    mg = 5
    quiet = 0
    pair = 1
    rdel0 = 0
    mk = 24
    bt = 0
    sglc = 1
    cs0 = 0
    cs1 = 0
    fdelay = 0
    bpos = 1
    m1 = 56
    kpos = 0
    rg2 = 1
    wst = 2
    pl1 = 24
    pw = 1
    npw = 3
    fd = 58
    nfx = 2
    c2 = 1
    c3 = 20
    pl3 = 28
    plv = 64
    ud = 7
    gs0 = 0
    gs1 = 0
    ntail = 4
    wsp = 2
    fdw = 1
    fearly = 2
    rdstep = 1
    ab = 0
    bx = 276
    lp0 = 276
    hstep = 4
    hext = 0
    gflag = 68
    epil = 20
    eearly = 1
    x1 = 3
    x2 = 60
    x3 = 44
    x4 = 30
    pl = 36
    pl2 = 30
    xw2 = 46
    plw = 44
    g2step = 3
    astep = 3
    adl = 94
    k4s = 12
    ack = -1
    tlb = 0
    tlbr = 'crf'
    hpos = 1
    hold = 2
    wlate = 1
    nor = 0
    rdelay = 0
    hearly = 0
    ford = 1
    k0 = 4
    k4 = 126
    tg = 60
    b0 = 168
    b1 = 205
    e1 = 7
    e2 = 6
    lsleep = 2
    nofree = 0
    w2max = 8
    rhint = 0
    rsleep = 1
    rhb = 1
    w2u = 1
    t2 = 0
    fw1 = 3
    w1g0 = 100
    w1g1 = 250
    cnt = ''
    g1x = 0
    ni = 4
    kburst = 3
    klead = 80
    rdlead = 24
    xtouch = 3
    tr1 = 51
    w1g2 = 0
    d1 = 12
    d2 = 12
    epidl = 33
    stearly = 1
    only = 0
    depth = 8
    grp = 2
    gboff = 5
    wev = 2
    sw = 0
    kill = 0
    cyc = 0
    rep = 0
    xy = 0
    spin = 1 << 17
    norole = 0

def unpk(dst, src, n):
    o = []
    for i in range(n):
        o += [f"v_lshlrev_b32 v{dst+2*i}, 16, v{src+i}", f"v_and_b32 v{dst+2*i+1}, s{S_MSK}, v{src+i}"]
    return o

def spin(tail, name, load, check, sleep=0, pre=()):
    tail.label(f"L_{name}r"); tail(f"s_mov_b32 s{S_SPIN}, {P.spin}")
    import re
    if P.cnt and re.fullmatch(P.cnt, name): tail("s_add_u32 s94, s94, 1")
    for x in pre: tail(text(x))
    tail.label(f"L_{name}l")
    if sleep and not P.nosleep: tail(f"s_sleep {sleep}")
    for x in load: tail(text(x))
    tail(f"s_sub_u32 s{S_SPIN}, s{S_SPIN}, 1"); tail("s_waitcnt vmcnt(0)"); tail(f"s_cbranch_scc1 L_{name}b")
    tail.extend(check); tail("s_nop 0"); tail(f"s_cbranch_vccnz L_{name}l"); tail(f"s_branch L_{name}b")
    if P.only: return list(check) + ["s_nop 0", f"L_{name}b:"]
    return list(check) + [f"s_cbranch_vccnz L_{name}r", f"L_{name}b:"]

P0L = 3 * SLOT
P0_K, P0_V, P0_W, P0_WF, P0_T, P0_O = 100, 128, 144, 160, 192, 216
vWa, vWb, vTR = 248, 249, 250

def epoch_load(A):
    A(f"s_add_u32 s30, s{P_WS}, {FL_E}"); A(f"s_addc_u32 s31, s{P_WS+1}, 0"); A(f"s_load_dword s{S_TAG32}, s[30:31], 0")
def common_setup(A, role):
    srd(A, SRD_WS, P_WS, WS_SIZE); A(f"s_mov_b32 s{S_MSK}, 0xffff0000")
    if P.tlb and (role in P.tlbr):
        A(f"v_cmp_gt_u32 vcc, {min(256, (42<<20)>>P.tlb)}, v0"); A(f"v_lshlrev_b32 v7, {P.tlb}, v0"); A(f"s_mov_b32 s30, {(1<<P.tlb)-128}"); A("v_cndmask_b32 v7, v8, v7, vcc")
        A(f"buffer_load_dword v253, v7, {WS4}, s30 offen")
    w1_setup(A); g2_setup(A)
def epoch_finish(A):
    A("s_waitcnt lgkmcnt(0)")
    A(f"s_mul_i32 s{S_TAG32}, s{S_TAG32}, 0x41c64e6d"); A(f"s_add_u32 s{S_TAG32}, s{S_TAG32}, 12345")
    A(f"s_and_b32 s{S_TAG16}, s{S_TAG32}, 0x1fff"); A(f"s_or_b32 s{S_TAG16}, s{S_TAG16}, 0x4000"); A(f"s_lshl_b32 s{S_TAGF}, s{S_TAG16}, 16")
    A(f"v_mov_b32 v{vTag}, s{S_TAG32}"); A(f"s_mov_b32 s4, s{S_TAG32}"); A(f"s_mov_b32 s5, s{S_TAG32}")

def start(A, C):
    stamp(A, C, 0)
    A("s_cmp_ge_u32 s2, 256"); A("s_cbranch_scc1 L_end")
    A("s_load_dwordx16 s[4:19], s[0:1], 0"); A("s_load_dwordx8 s[20:27], s[0:1], 64"); A("s_load_dwordx2 s[28:29], s[0:1], 96")
    A(f"s_and_b32 s{S_X}, s2, 7"); A(f"s_lshr_b32 s{S_J}, s2, 3")
    A("s_getpc_b64 s[52:53]"); A.label("L_pc")
    A("v_lshrrev_b32 v1, 6, v0"); A("v_bfrev_b32 v8, 1")
    A(f"v_readfirstlane_b32 s{S_WAVE}, v1"); A("v_and_b32 v1, 63, v0"); A(f"v_lshlrev_b32 v{vL16}, 4, v1")
    A(f"s_cmp_ge_u32 s{S_J}, {0 if P.only else 20}"); A("s_cbranch_scc1 L_nc")

PST = 17 * 1152
pK, pV, pW, pWF, pT, pO = 100, 114, 124, 228, 148, 172
def p0_loads(S, st):
    o = st * 1024 * 1280; b = st * PST; tg = ("p0", st)
    S(f"s_add_u32 m0, s62, {b}")
    if st: S(f"s_add_u32 s30, s61, {o}")
    S(f"buffer_load_dwordx4 v{5 if st else 14}, {s(SRD_A,4)}, {'s30' if st else 0} offen lds", tg)
    if not st: srd(S.A, SRD_B, P_V, NB_SD)
    for i in range(2):
        S(f"s_add_u32 m0, s62, {b+1152*(9+4*i)}"); S(f"s_add_u32 s30, s60, {o+40960*i}"); S(f"buffer_load_dwordx4 v5, {s(SRD_B,4)}, s30 offen lds", tg)
        if i == 0: S(f"s_add_u32 m0, s62, {b+1152*4}"); S(f"s_add_u32 s30, s61, {o+40960}"); S(f"buffer_load_dwordx4 v5, {s(SRD_A,4)}, s30 offen lds", tg)
    S(f"s_mov_b32 m0, {P0L+b+1152*8}"); S(f"s_add_u32 s30, s57, {o}"); S(f"buffer_load_dwordx4 v6, {s(SRD_A,4)}, s30 offen lds", tg)
def p0map(st):
    if st == 1 and P.cv6 == 1: return dict(K=188, V=202, T=[28, 30, 32, 34, 36, 38, 218], acc=[52, 54, 56, 58], O=[210, 214, 244, 252])
    return dict(K=pK, V=pV, T=[pT + 2 * r for r in range(7)], acc=[pT + 14 + 2 * r for r in range(4)], O=[pO + 4 * c for c in range(4)])
def p0_reads(st):
    b = st * PST; M = p0map(st)
    return ([(f"ds_read_b64 {v(M['K']+2*r,2)}, v{4 if r < 4 else 9} offset:{b+128*(r&3)}", "pk") for r in range(7)] +
            [(f"ds_read_b64 {v(M['V']+2*r,2)}, v4 offset:{b+9*1152+128*r}", "pv") for r in range(4)])
def p0_compute(st):
    Wf = lambda j, c: pWF + 4 * j + c
    ch = []; M = p0map(st); T = M["T"]; acc = M["acc"]
    for p in range(2):
        ch.append(([("need", None, ["pk"])] if p == 0 else []) + [x for r in range(7) for x in unpk(T[r], M["K"] + 2 * r + p, 1)])
        o = [".p2align 3"] + [f"v_pk_mul_f32 {v(acc[r],2)}, {v(T[r],2)}, {v(Wf(3,2*p),2)}" for r in range(4)]
        for j in (2, 1, 0): o += [f"v_pk_fma_f32 {v(acc[r],2)}, {v(T[r+3-j],2)}, {v(Wf(j,2*p),2)}, {v(acc[r],2)}" for r in range(4)]
        ch.append(o)
        ch.append(([("need", None, ["pv"])] if p == 0 else []) + [x for r in range(4) for x in unpk(T[r], M["V"] + 2 * r + p, 1)] + [".p2align 3"] +
                  [f"v_pk_mul_f32 {v(acc[r],2)}, {v(acc[r],2)}, {v(T[r],2)}" for r in range(4)])
        o = []
        for cc in range(2):
            c = 2 * p + cc; oo = M["O"][c]
            o += [f"v_cvt_pk_bf16_f32 v{oo+r}, s{S_TAGF}, v{acc[r]+cc}" for r in range(4)]
            o.append((f"buffer_store_dwordx4 {v(oo,4)}, v2, {WS4}, s{48+st} offen offset:{1024*c} sc1", ("p0st", st)))
        ch.append(o)
    return ch
def p0(S, C):
    A = S.A
    A("s_mul_i32 s50, s2, 6554"); A("s_lshr_b32 s50, s50, 16"); A("s_mul_i32 s51, s50, 10"); A("s_sub_u32 s51, s2, s51")
    A("s_mul_i32 s57, s50, 81920"); A("s_lshl_b32 s61, s51, 7"); A("s_add_u32 s57, s57, s61")
    A(f"s_mul_i32 s60, s{S_WAVE}, 10240"); A("s_add_u32 s60, s60, s57"); A("s_sub_u32 s61, s60, 3840"); A(f"s_add_u32 s57, s57, {81920-3840}")
    A("v_lshrrev_b32 v12, 3, v1"); A("v_and_b32 v3, 7, v1"); A("v_lshrrev_b32 v13, 5, v1"); A("v_lshlrev_b32 v13, 1, v13"); A("v_xor_b32 v13, v13, v3")
    A("v_mul_u32_u24 v6, 1280, v12"); A("v_lshl_add_u32 v6, v13, 4, v6")
    A(f"s_and_b32 s30, s{S_WAVE}, 2"); A("s_lshl_b32 s30, s30, 5"); A("v_xor_b32 v5, s30, v6"); A("v_cmp_gt_u32 vcc, 24, v1")
    A("v_add_u32 v14, s61, v5"); A("v_min_u32 v14, v14, v8"); A("v_cndmask_b32 v6, v8, v6, vcc"); A("v_cmp_gt_u32 vcc, 32, v1")
    A(f"s_mul_i32 s62, s{S_WAVE}, 1152"); A(f"s_add_u32 s62, s62, {P0L}"); A("s_lshl_b32 s63, s51, 9"); A(f"v_cndmask_b32 v9, v8, v{vL16}, vcc")
    if P.wdir: A(f"s_and_b32 s30, s{S_WAVE}, 1"); A("s_lshl_b32 s30, s30, 8"); A("s_add_u32 s63, s63, s30"); A("v_lshlrev_b32 v9, 5, v12")
    A("s_waitcnt lgkmcnt(0)")
    stamp(A, C, -1); stamp(A, C, "p0_ka")
    if P.wdir:
        srd(A, SRD_C, P_SH, 5120)
        for i in range(2): S(f"buffer_load_dwordx4 {v(pW+4*i,4)}, v9, {s(SRD_C,4)}, s63 offen offset:{16*i}", "pw")
    srd(A, SRD_A, P_K, NB_SD)
    p0_loads(S, 0)
    epoch_load(A)
    if not P.wdir: srd(A, SRD_C, P_SH, 5120)
    if not P.wdir: A(f"s_mov_b32 m0, {P0L+2*PST}"); A("s_nop 0"); S(f"buffer_load_dwordx4 v9, {s(SRD_C,4)}, s63 offen lds", ("p0", 0))
    srd(A, 52, P_SK, NB_SD)
    A(f"s_mul_i32 s{S_ID}, s{S_X}, 20"); A(f"s_add_u32 s{S_ID}, s{S_ID}, s{S_J}"); A(f"s_lshl_b32 s56, s{S_ID}, 2"); A(f"s_add_u32 s56, s56, s{S_WAVE}")
    A(f"s_mul_i32 s64, s{S_WAVE}, 8320"); A(f"s_add_u32 s64, s64, {C_HC}");
    def hdma():
        A(f"s_add_u32 m0, s64, {4160+32}"); A("s_lshl_b32 s30, s56, 12")
        for i in range(4): S(f"buffer_load_dwordx4 v{vL16}, s[52:55], s30 offen offset:{1024*i} lds", "h")
    if P.bpos < 2 and not P.hlate: hdma()
    elif P.bpos == 2: p0_loads(S, 1)
    A(f"s_and_b32 s31, s{S_WAVE}, 1"); A("s_lshl_b32 s30, s31, 8"); A(f"s_add_u32 s30, s30, {P0L+2*PST}"); A("v_lshlrev_b32 v254, 5, v12"); A("v_add_u32 v254, s30, v254")
    A(f"v_mul_u32_u24 v2, {P.KG}, v12"); A("v_lshl_add_u32 v2, v3, 4, v2")
    A(f"s_lshr_b32 s63, s{S_WAVE}, 1"); A(f"s_mul_i32 s30, s63, {4*1152}"); A(f"s_add_u32 s30, s30, {P0L}"); A("s_lshl_b32 s31, s31, 6")
    A("v_lshlrev_b32 v7, 3, v12"); A("v_or_b32 v7, s31, v7")
    for d, reg in ((0, 4), (1, 9)):
        A(f"v_add_u32 v13, {d}, v3"); A("v_lshrrev_b32 v14, 1, v13"); A("v_mul_u32_u24 v14, 1152, v14"); A("v_and_b32 v15, 1, v13"); A("v_lshl_add_u32 v14, v15, 9, v14")
        A("v_and_b32 v13, 4, v13"); A("v_lshlrev_b32 v13, 4, v13"); A("v_lshl_or_b32 v13, v15, 5, v13"); A("v_xor_b32 v13, v13, v7"); A(f"v_add3_u32 v{reg}, v14, v13, s30")
    A("s_lshl_b32 s50, s50, 1"); A("s_add_u32 s50, s50, s63")
    A("s_lshr_b32 s48, s50, 3"); A(f"s_mul_i32 s48, s48, {160*P.KG}"); A(f"s_mul_i32 s49, s51, {16*P.KG}"); A("s_add_u32 s48, s48, s49"); A(f"s_mul_i32 s49, s31, {P.KG//8}"); A("s_add_u32 s48, s48, s49")
    A("s_and_b32 s49, s50, 7"); A("s_lshl_b32 s49, s49, 7"); A("s_add_u32 s48, s48, s49"); A(f"s_add_u32 s48, s48, {WS_KT}"); A(f"s_add_u32 s49, s48, {4*160*P.KG}")
    A(f"v_mul_u32_u24 v{vYG}, {P.YP}, v12"); A(f"v_lshl_add_u32 v{vYG}, v3, 4, v{vYG}")
    conv_setup(A); common_setup(A, 'c')
    if P.bpos == 3: p0_loads(S, 1)
    if P.hlate == 1: hdma()
    epoch_finish(A)
    def wunp():
        for c in range(4):
            for hlf in range(2):
                A(f"v_lshlrev_b32 v{pWF+8*hlf+c}, 16, v{pW+2*c+hlf}"); A(f"v_and_b32 v{pWF+8*hlf+4+c}, s{S_MSK}, v{pW+2*c+hlf}")
    if P.wdir: S.need(["pw"]); wunp()
    S.need([("p0", 0)]); A("s_barrier")
    stamp(A, C, "p0_ld")
    if not P.wdir:
        for i in range(2): S(f"ds_read_b128 {v(pW+4*i,4)}, v254 offset:{16*i}", "pw")
    S.extend(p0_reads(0))
    if P.bpos == 0: p0_loads(S, 1)
    if (P.bpos >= 2 and P.hpos == 1) or P.hlate == 2: hdma()
    if not P.wdir: S.need(None, ["pw"]); wunp()
    for chk in p0_compute(0): S.extend(chk)
    if P.bpos == 1 and P.cv6 != 1: p0_loads(S, 1)
    if P.bpos >= 2 and P.hpos == 2: hdma()
    stamp(A, C, "p0_st")
    if P.bpos >= 2:
        S.need([("p0", 1)]); A("s_barrier"); stamp(A, C, "c_b"); S.extend(p0_reads(1))
        for chk in p0_compute(1): S.extend(chk)
        stamp(A, C, "c_b2")
    H = 60; E = 80
    S.need(["h"])
    for i in range(4): S(f"ds_read_b128 {v(H+4*i,4)}, v{vHW} offset:{4160+32+1024*i}"); S(f"ds_read_b32 v{H+16+i}, v{vHW} offset:{4160+28+1024*i}", ("hr", i))
    for i in range(4):
        S.need(None, [("hr", i)])
        A(f"v_alignbit_b32 v{E+4*i}, v{H+4*i}, v{H+16+i}, 16")
        for j in range(1, 4): A(f"v_alignbit_b32 v{E+4*i+j}, v{H+4*i+j}, v{H+4*i+j-1}, 16")
        S(f"ds_write_b128 v{vHW}, {v(E+4*i,4)} offset:{32+1024*i}")

def w1_touch_setup(A):
    A(f"s_mul_i32 s30, s{S_X}, 27"); A("s_add_u32 s31, s30, 26"); A("s_lshr_b32 s30, s30, 3"); A("s_lshr_b32 s31, s31, 3"); A("s_sub_u32 s31, s31, s30")
    A("v_mul_u32_u24 v251, 52429, v0"); A("v_lshrrev_b32 v251, 18, v251"); A("v_mul_u32_u24 v252, 5, v251"); A("v_sub_u32 v252, v0, v252")
    A("v_cmp_ge_u32 vcc, s31, v252"); A("s_lshl_b32 s67, s30, 7")
    A(f"s_sub_u32 s30, s{S_J}, 22"); A(f"s_mul_i32 s30, s30, {32*3456}"); A("s_add_u32 s67, s67, s30"); A("v_cmp_gt_u32 s[30:31], 32, v251")
    A("v_mul_u32_u24 v251, 3456, v251"); A("v_lshl_add_u32 v251, v252, 7, v251"); A("s_and_b64 vcc, vcc, s[30:31]"); A("v_cndmask_b32 v255, v8, v251, vcc")
def w1_touch(S):
    A = S.A if isinstance(S, Stream) else S
    srd(A, SRD_A, P_WG, NB_W); srd(A, SRD_B, P_WU, NB_W)
    S(f"buffer_load_dword v251, v255, {s(SRD_A,4)}, s67 offen"); S(f"buffer_load_dword v252, v255, {s(SRD_B,4)}, s67 offen")
    return 2

def w1_setup(A):
    t0, t1 = 30, 31
    lg = {8: 3, 4: 2, 2: 1, 1: 0}[P.ni]
    A(f"s_lshr_b32 s31, s{S_X}, {3-lg}"); A("s_add_u32 s31, s31, 2"); A("s_and_b32 s31, s31, 3"); A(f"s_add_u32 s30, s{S_J}, 3"); A("s_sub_u32 s30, s30, s31"); A("s_mul_i32 s30, s30, 21846"); A("s_lshr_b32 s30, s30, 16")
    A(f"s_add_u32 s30, s30, s{S_J}"); A(f"s_lshl2_add_u32 s31, s{S_J}, s31"); A("s_sub_u32 s31, s31, 80"); A("s_min_u32 s31, s31, 26")
    A(f"s_cmp_lt_u32 s{S_J}, 20"); A("s_cselect_b32 s31, s30, s31")
    A(f"s_lshr_b32 s30, s{S_X}, {3-lg}"); A(f"s_mul_i32 s30, s30, 27"); A(f"s_add_u32 s30, s30, s31"); A(f"s_lshr_b32 s{S_C}, s30, {lg}"); A(f"s_and_b32 s{S_I}, s30, {P.ni-1}")
    if lg < 3: A(f"s_and_b32 s30, s{S_X}, {8//P.ni-1}"); A(f"s_lshl_b32 s30, s30, {lg}"); A(f"s_add_u32 s{S_I}, s{S_I}, s30")
    A(f"v_lshrrev_b32 v{t0}, 3, v1"); A(f"v_mul_u32_u24 v{vWa}, 3456, v{t0}")
    A(f"v_and_b32 v{t0}, 2, v{t0}"); A(f"v_and_b32 v{t1}, 7, v1"); A(f"v_xor_b32 v{t0}, v{t0}, v{t1}"); A(f"v_xor_b32 v{t1}, 4, v{t0}")
    A(f"v_lshl_add_u32 v{vWb}, v{t1}, 4, v{vWa}"); A(f"v_lshl_add_u32 v{vWa}, v{t0}, 4, v{vWa}")
    A(f"s_and_b32 s30, s{S_WAVE}, 1"); A(f"s_mul_i32 s{sWsrc}, s30, {80*3456}"); A(f"s_lshl_b32 s30, s{S_C}, 7"); A(f"s_add_u32 s{sWsrc}, s{sWsrc}, s30")
    A(f"s_mul_i32 s{sWb}, s{S_WAVE}, 10240")
    A(f"s_cmp_ge_u32 s{S_WAVE}, 2")
    A(f"s_cselect_b32 s{SRD_C}, s{P_WU}, s{P_WG}"); A(f"s_cselect_b32 s{SRD_C+1}, s{P_WU+1}, s{P_WG+1}")
    A(f"s_and_b32 s{SRD_C+1}, s{SRD_C+1}, 0xffff"); A(f"s_mov_b32 s{SRD_C+2}, {NB_W}"); A(f"s_mov_b32 s{SRD_C+3}, 0x20000")
    A(f"v_lshrrev_b32 v{t0}, 4, v1"); A(f"v_bfe_u32 v{t1}, v1, 2, 2"); A(f"v_lshl_add_u32 v{vTR}, v{t0}, 3, v{t1}"); A(f"v_lshlrev_b32 v{vTR}, 7, v{vTR}")
    A(f"v_bfe_u32 v{t0}, v1, 3, 2"); A(f"v_xor_b32 v{t0}, s{S_WAVE}, v{t0}"); A(f"v_lshl_add_u32 v{vTR}, v{t0}, 5, v{vTR}")
    A(f"v_and_b32 v{t0}, 3, v1"); A(f"v_lshl_add_u32 v{vTR}, v{t0}, 3, v{vTR}")
def w1_dma(qd, slot, i0=0, i1=10):
    o = []
    for i in range(i0, i1):
        if i % 4 == 0 or i == i0: o.append(f"s_add_u32 m0, s{sWb}, {slot*SLOT+1024*(i-i%4)}")
        if P.xw != 6 or (i == 0 and qd == 0): o.append(f"s_add_u32 s31, s{sWsrc}, {(160*qd+8*i)*3456-1024*(i%4)}")
        if P.xw == 1: o.append((f"buffer_load_dwordx4 v{vL16}, {s(SRD_C,4)}, 0 offen offset:{1024*(i%4)} lds", ("w1", qd)))
        elif P.xw == 4: o.append((f"buffer_load_dwordx4 v{vWa}, {s(SRD_C,4)}, 0 offen offset:{1024*(i%4)} lds", ("w1", qd)))
        else: o.append((f"buffer_load_dwordx4 v{vWb if i&1 else vWa}, {s(SRD_C,4)}, s31 offen offset:{1024*(i%4)} lds", ("w1", qd)))
    return o
def w1_tr(qd, slot, tmp):
    o = [f"v_add_u32 v{tmp}, {slot*SLOT}, v{vTR}"]
    for kk in range(5):
        for mat in range(2):
            for hh in range(2):
                o.append((f"ds_read_b64_tr_b16 {a(8*(5*qd+kk)+4*mat+2*hh,2)}, v{tmp} offset:{mat*20480+(32*kk+4*hh)*128}", "tr"))
    return o

CS = 4576; C_XR = 0; C_YS = 18304; C_HC = SLOT
vXW, vXR, vHA, vYW, vYR, vYG, vM, vHW = range(12, 20)
cT = 20; vAD = 24; cACC = 28; cB = 60; cK = 188; cY = 220
sKT, sY = 68, 69
def conv_setup(A):
    A(f"s_lshl_b32 s30, s{S_ID}, 3"); A(f"s_load_dwordx2 s[58:59], {s(P_SD,2)}, s30")
    T1, T2 = 30, 31
    A(f"v_and_b32 v{T1}, 15, v1"); A(f"v_lshrrev_b32 v{T2}, 4, v1")
    A(f"s_mul_i32 s63, s{S_WAVE}, {CS}"); A(f"s_add_u32 s31, s63, {C_XR+480}")
    A(f"v_lshlrev_b32 v{vXR}, 5, v{T1}"); A(f"v_sub_u32 v{vXR}, s31, v{vXR}"); A(f"v_lshl_add_u32 v{vXR}, v{T2}, 4, v{vXR}")
    A(f"s_add_u32 s31, s63, {C_XR+504}"); A(f"v_lshlrev_b32 v{vXW}, 3, v1"); A(f"v_sub_u32 v{vXW}, s31, v{vXW}")
    A(f"v_and_b32 v{vHA}, 1, v1"); A(f"v_mul_u32_u24 v{vHA}, 4160, v{vHA}")
    A(f"v_lshrrev_b32 v{vYW}, 1, v{T1}"); A(f"v_lshl_add_u32 v{vHA}, v{vYW}, 2, v{vHA}")
    A(f"v_lshl_add_u32 v{vHA}, v{T2}, 4, v{vHA}"); A(f"v_add3_u32 v{vHA}, v{vHA}, s64, 4")
    A(f"s_mul_i32 s65, s{S_WAVE}, 576"); A(f"s_add_u32 s65, s65, {C_YS}")
    A(f"v_lshlrev_b32 v{vYW}, 5, v{T1}"); A(f"v_lshl_add_u32 v{vYW}, v{T2}, 3, v{vYW}"); A(f"v_add_u32 v{vYW}, s65, v{vYW}")
    A(f"v_bfe_u32 v{vYR}, v1, 2, 2"); A(f"v_mul_u32_u24 v{vYR}, 576, v{vYR}"); A(f"v_lshl_add_u32 v{vYR}, v{T2}, 5, v{vYR}")
    A(f"v_and_b32 v7, 3, v1"); A(f"v_lshl_add_u32 v{vYR}, v7, 3, v{vYR}")
    A(f"s_lshl_b32 s66, s{S_WAVE}, 7"); A(f"s_add_u32 s66, s66, {C_YS}"); A(f"v_add_u32 v{vYR}, s66, v{vYR}")
    A(f"s_mul_i32 s{sY}, s{S_WAVE}, {8*P.YP}"); A(f"s_lshl_b32 s66, s{S_ID}, 7"); A(f"s_add_u32 s{sY}, s{sY}, s66"); A(f"s_add_u32 s{sY}, s{sY}, {WS_YT}")
    A(f"s_mul_i32 s{sKT}, s{S_ID}, {P.KG}"); A(f"s_lshl_b32 s66, s{S_WAVE}, 10"); A(f"s_add_u32 s{sKT}, s{sKT}, s66"); A(f"s_add_u32 s{sKT}, s{sKT}, {WS_KT}")
    A(f"s_mov_b32 s{S_PM}, 0x07060302"); A(f"v_mov_b32 v{vM}, 0xffff")
    for i in range(4): A(f"v_mov_b32 v{cT+i}, 0")
    A(f"v_add_u32 v7, s63, v{vL16}"); A(f"v_add_u32 v{vHW}, s64, v{vL16}")
    A("s_mov_b64 exec, 0x3fffffff"); A(f"ds_write_b128 v7, {v(cT,4)} offset:{C_XR+4096}")
    A("s_mov_b64 exec, 3"); A(f"ds_write_b128 v{vHW}, {v(cT,4)}"); A(f"ds_write_b128 v{vHW}, {v(cT,4)} offset:4160"); A("s_mov_b64 exec, -1")
    A(f"v_lshl_add_u32 v{T1}, v{T2}, 3, v{T1}"); A(f"v_sub_u32 v{T1}, 15, v{T1}")
    A(f"v_and_b32 v{T2}, 1, v{T1}"); A(f"v_lshlrev_b32 v{cACC+1}, 4, v{T2}"); A(f"v_ashrrev_i32 v{cACC}, 1, v{T1}")

def tagcheck(regs, tmp):
    o = [f"v_xor_b32 v{tmp}, s{S_TAG16}, v{regs[0]}"]
    for r in regs[1:]: o.append(f"v_bitop3_b32 v{tmp}, v{r}, s{S_TAG16}, v{tmp} bitop3:0xbe")
    return o + [f"v_cmp_ne_u16 vcc, 0, v{tmp}"]

def conv(S, C, tail):
    A = S
    order = [(0,0),(1,0),(2,0),(1,1),(2,1),(3,0),(2,2),(3,1),(3,2),(3,3)] + [(n, nu) for nu in range(4) for n in (4, 5)] + [(4,4),(5,4),(5,5)]
    for n, l in ((6, [2,3,4,5,0,1,6]), (7, [5,0,1,6,2,3,4,7])): order += [(n, nu) for nu in l]
    if P.ord == 1:
        order = order[:10] + [(n, nu) for nu in range(4) for n in (4, 5, 6)] + [(4,4),(5,4),(5,5),(6,4),(6,5),(6,6)] + [(7, nu) for nu in (3,4,5,6,0,1,2,7)]
    if P.ord == 2:
        order = order[:10] + [(4,0),(5,0),(6,0),(4,1),(5,1),(6,1),(4,2),(5,2),(4,3),(5,3),(4,4),(6,2),(5,4),(5,5),(6,3),(6,4),(6,5),(6,6)] + [(7, nu) for nu in (3,4,5,6,0,1,2,7)]
    APOS = {7 - nu: i for i, (n, nu) in enumerate(order[-8:])}
    AI = lambda m: 32 * APOS[m >> 3] + 4 * (m & 7)
    def kload(nu): return [f"s_add_u32 s30, s{sKT}, {nu*160*P.KG}", (f"buffer_load_dwordx4 {v(cK+4*nu,4)}, v{vL16}, {WS4}, s30 offen sc1", ("k", nu))]
    def aread(m):
        o = 16 * (m % 16)
        if P.zz & 4: return [(f"ds_read_b128 {a(AI(m),4)}, v{vHW} offset:{32+48*m}", ("A", m >> 3))]
        if P.zz & 16: return [(f"ds_read_b64 {a(AI(m)+2*k,2)}, v{vXW} offset:{C_HC+64+48*m+512*k}", ("A", m >> 3)) for k in range(2)]
        return ([f"v_add_u32 v{vHA}, 1024, v{vHA}"] if (m and m % 16 == 0) else []) + [
            (f"ds_read2_b32 {a(AI(m),2)}, v{vHA} offset0:{o} offset1:{o+1}", ("A", m >> 3)), (f"ds_read2_b32 {a(AI(m)+2,2)}, v{vHA} offset0:{o+2} offset1:{o+3}", ("A", m >> 3))]
    MA = P.poll_at
    for m in range(P.m1):
        if m == 7:
            A(f"s_lshl_b32 s30, s{S_WAVE}, 4"); A("s_lshr_b64 s[58:59], s[58:59], s30"); A("s_and_b32 s58, s58, 0xffff")
            A(f"v_lshlrev_b32 v{cACC+1}, v{cACC+1}, s58")
            for j in range(4):
                A(f"v_cmp_eq_u32 vcc, {j}, v{cACC}"); A("s_nop 1"); A(f"v_cndmask_b32 v{vAD+j}, 0, v{cACC+1}, vcc")
        A.extend(aread(m))
    if P.hs:
        stamp(S.A, C, "c_a1"); A.need([("p0", 1)]); A("s_barrier"); stamp(S.A, C, "c_b"); A.extend(p0_reads(1))
        m = P.m1; held = []
        for i, chk in enumerate(p0_compute(1)):
            while i and m < P.m1 + ((P.m2 - P.m1) * (i + 1)) // 8: A.extend(aread(m)); m += 1
            held += [x for x in chk if isvm(text(x))]; A.extend([x for x in chk if not isvm(text(x))])
        while m < P.hs: A.extend(aread(m)); m += 1
        A.need([("p0st", 0)]); A("s_barrier"); stamp(S.A, C, "c_b2")
        for n2 in range(4): A.extend(kload(n2))
        for i, x in enumerate(held):
            while m < P.hs + ((MA - P.hs) * (i + 1)) // 4: A.extend(aread(m)); m += 1
            A(x)
    elif P.bpos < 2:
        stamp(S.A, C, "c_a1")
        A.need([("p0", 1)]); A("s_barrier")
        stamp(S.A, C, "c_b")
        A.extend(p0_reads(1))
        m = P.m1
        for i, chk in enumerate(p0_compute(1)):
            if i == P.kpos:
                for n2 in range(P.k0): A.extend(kload(n2))
            if P.kpos > 7 and i == 7: m2x = MA - P.mk
            m2 = P.m1 + ((MA - (P.mk if P.kpos > 7 else 0) - P.m1) * (i + 1)) // 8
            if i:
                while m < m2: A.extend(aread(m)); m += 1
            if P.q0e and i < 8: A.extend(w1_dma(0, 2, (P.q0e * i) // 8, (P.q0e * (i + 1)) // 8))
            A.extend(chk)
        if P.kpos > 7:
            for n2 in range(P.k0): A.extend(kload(n2))
            while m < MA: A.extend(aread(m)); m += 1
    else:
        for n2 in range(P.k0): A.extend(kload(n2))
        for m in range(P.m1, MA): A.extend(aread(m))
    stamp(S.A, C, "c_ab")
    def kvin(nu):
        kd = cK + 4 * nu
        o = [("need", [("k", nu)])] + spin(tail, f"cv{nu}", kload(nu), tagcheck([kd, kd+1, kd+2, kd+3], cT))
        return o + [f"v_perm_b32 v{cT}, v{kd+2}, v{kd+3}, s{S_PM}", f"v_perm_b32 v{cT+1}, v{kd}, v{kd+1}, s{S_PM}", f"ds_write_b64 v{vXW}, {v(cT,2)} offset:{512*(7-nu)}"]
    def bread(li, nu): return [(f"ds_read_b128 {v(cB+32*(li&3)+4*rho,4)}, v{vXR} offset:{512*(7-nu)+64*rho}", ("B", li, rho)) for rho in range(8)]
    A.extend(kvin(0)); A.extend(bread(0, 0))
    if P.pre1: A.extend(kvin(1))
    for n2 in range(P.k0, 4): A.extend(kload(n2))
    stamp(S.A, C, "c_kv0")
    mf = []; loads = []; res = {}; lfirst = {}; llast = {}; afirst = {}; alast = {}; done = {}; seen = set()
    for (n, nu) in order:
        if nu not in res:
            li = len(loads); loads.append(nu)
            if li >= 4: del res[loads[li - 4]]
            res[nu] = li
        li = res[nu]; acc = v(cACC + 4 * n, 4); bb = cB + 32 * (li & 3)
        lfirst.setdefault(li, len(mf)); afirst.setdefault(n - nu, len(mf))
        for rho in range(8):
            mf.append(f"v_mfma_f32_16x16x32_bf16 {acc}, {a(AI(8*(n-nu)+rho),4)}, {v(bb+4*rho,4)}, {acc if (n in seen or rho) else 0}")
        seen.add(n)
        if n == nu: mf.append(f"v_mfma_f32_16x16x32_bf16 {acc}, {v(vAD,4)}, {v(bb,4)}, {acc}"); done[n] = len(mf)
        llast[li] = len(mf); alast[APOS[n - nu]] = len(mf)
    N = len(mf)
    q1 = Seq(); q2 = Seq(); q3 = Seq(); q4 = Seq(); q5 = Seq(); q7 = Seq(); ev = []
    ev += [(0, ("need", None, [("B", 0, 2)])), (3, ("need", None, [("B", 0, 5)])), (6, ("need", None, [("B", 0, 7)]))]
    for m in range(MA, 64):
        q3.addl(aread(m), 7 + P.astep * (m - MA), dl=min(afirst[m >> 3] - 5, P.adl))
        if m % 8 == 7: ev.append((afirst[m >> 3], ("need", None, [("A", m >> 3)])))
    have = {0, 1} if P.pre1 else {0}
    for li in range(1, len(loads)):
        nu = loads[li]
        ev.append((lfirst[li], ("need", None, [("B", li, 7)])))
        rd0 = lfirst[li] - (P.rl1 if li == 1 else P.rl2) if li < 4 else max(llast[li - 4], lfirst[li] - (P.rl4 if li < 6 else 24))
        if nu not in have:
            have.add(nu)
            if nu >= 4: q5.addl([x.replace("s30", "s66") if isinstance(x, str) else (x[0].replace("s30", "s66"), x[1]) for x in kload(nu)], P.k4 + P.k4s * (nu - 4), dl=rd0 - 12)
            if nu < 4: q2.addl(kvin(nu), max(0, rd0 - 8))
            else: q7.addl(kvin(nu), min(rd0 - 8, P.k4 + P.k4s * (nu - 4) + 60), dl=rd0 - 1)
        q2.addl(bread(li, nu), rd0, P.bst if li >= 6 else 1, dl=lfirst[li] - 1)
    if C.diag and P.cs1:
        for gg in range(P.cs0, min(N, P.cs0 + 11 * P.cs1), P.cs1): ev += [(gg - 0.2, "s_nop 0"), (gg - 0.1, ("call", lambda gg=gg: stamp(S.A, C, f"b{gg}")))]
    q0 = Seq()
    for g, x in sorted(ev, key=lambda e: e[0]): q0.add(x, round(g), round(g))
    gbs = []
    for nu in range(8):
        an = cACC + 4 * nu; y = cY + 2
        q1.addl([f"v_cvt_pk_bf16_f32 v{cY}, v{an}, v{an+1}", f"v_cvt_pk_bf16_f32 v{cY+1}, v{an+2}, v{an+3}", (f"ds_write_b64 v{vYW}, {v(cY,2)} offset:{2304*(nu&1)}", "yw")], min(done[nu] + 3, N))
        d1, d2 = (P.e1, P.e2) if (nu < 3 or (nu < 7 and done[nu + 1] - done[nu] < 24)) else (P.d1, P.d2)
        gb = min(done[nu] + 4 + d1, N); gbs.append(gb)
        q1.add(("need", [("w1", 1)] if nu == 6 else None, 0 if nu == 7 else (["yw", "tr", ("A", 7)] if gb > P.adl else ["yw"])), gb)
        if nu == 6:
            def chk(): assert S.vm.count(("w1", 1)) == 10
            q1.add(("call", chk), gb)
        q1.add("s_barrier", gb, gb)
        q1.add((f"ds_read_b64_tr_b16 {v(y,2)}, v{vYR} offset:{2304*(nu&1)}", "yr"), gb, gb)
        if nu == 7 and P.l0e:
            q1.addl(slcheck(tail, 0, 6, "c") + [("call", lambda: stamp(S.A, C, "g1_l0"))] + [x for d in lndma(0) for x in d], N)
        q1.addl([("need", None, ["yr"]),
            f"v_lshl_or_b32 v{y+2}, v{y}, 16, s{S_TAG16}", f"v_bfi_b32 v{y+3}, v{vM}, s{S_TAG16}, v{y}",
            f"v_lshl_or_b32 v{y+4}, v{y+1}, 16, s{S_TAG16}", f"v_bfi_b32 v{y+5}, v{vM}, s{S_TAG16}, v{y+1}",
            (f"buffer_store_dwordx4 {v(y+2,4)}, v{vYG}, {WS4}, s{sY} offen sc1", "yst"), f"s_add_u32 s{sY}, s{sY}, {32*P.YP}",
            ("call", lambda nu=nu: stamp(S.A, C, f"c_s{nu}"))], min(gb + d2, N))
        if nu == 6:
            q1.add(("need", [("w1", 2)], [("tr", 0)]), P.bx)
            def chk(): assert S.vm.count(("w1", 2)) == 10 and S.lg.count(("tr", 0)) == 20
            q1.add(("call", chk), P.bx); q1.add("s_barrier", P.bx, P.bx)
    trq = lambda qd, sl, t: [(x[0], ("tr", 0)) if (isinstance(x, tuple) and qd == 0) else x for x in w1_tr(qd, sl, t)]
    afree = lambda qd: max(alast[pp] for pp in range(8) if 32 * pp < 40 * (qd + 1))
    q3.addl(trq(0, 2, cT + 2), max(gbs[6] + 1, afree(0)), 1, dl=P.bx - 6)
    q3.addl(trq(1, 3, cT + 3), max(gbs[6] + 1, afree(1)), 1, dl=N - 1)
    assert P.bx >= afree(2)
    g = float(P.w1g0)
    for qd, sl in enumerate([2, 3, 1]):
        assert g > gbs[0] + 2
        if qd == 2: assert g > [b for b in gbs if b > P.adl][0] + 2, (g, gbs)
        g = q4.addl(w1_dma(qd, sl, P.q0e if qd == 0 else 0), g, (P.w1g1 - P.w1g0) / (30 - P.q0e), dl=(gbs[6] if qd < 2 else P.bx) - 1, stepon=isvm)
    q4.addl(w1_dma(3, 2), P.bx + 3, 2, dl=N - 1, stepon=isvm)
    ld, ck = w2_poll(tail if not P.xw2 else Asm(), "cw2", 234, 235)
    s48 = lambda L: [(x.replace("s30", "s48") if isinstance(x, str) else (x[0].replace("s30", "s48"), x[1])) for x in L]
    q6 = Seq(); q6.addl(g1_setup(), 150, 1); q6.addl(ld[:-2] if not P.xw2 else [], 230)
    if P.l0e: q6.addl(slpoll(0, 6), N - P.l0e, dl=N - 1)
    A.extend(schedule(mf, [q0, q1, q2, q7, q5, q4, q3, q6]))
    if not P.l0e: A.extend(slpoll(0, 6))
    A.extend(w1_tr(2, 1, cT + 2))
    if not P.l0e:
        A.need(None, 0); A.extend(slcheck(tail, 0, 6, "c"))
        stamp(S.A, C, "g1_l0")
        if not P.xw2: A.extend(ld[-2:])
        for d in lndma(0): A.extend(d)
    A.need([("w1", 3)]); A("s_barrier"); A.extend(w1_tr(3, 2, cT + 3))
    A.extend(ck if not P.xw2 else ck[-1:]); A.extend(w2load(0, P.npre)); A.extend(slpoll(1, 8))
    A.need([("ln", 0)], 0); A("s_barrier")

def conv6(S, C, tail):
    A = S; assert P.xw2
    order = [(0,0),(1,0),(2,0),(1,1),(2,1),(3,0),(2,2),(3,1),(3,2),(3,3)] + [(n, nu) for nu in range(4) for n in range(4, 8)]
    order += [(4,4),(7,4),(5,4),(5,5),(6,4),(6,5),(6,6),(7,5),(7,6),(7,7)]
    AI = lambda m: 32 * (7 - (m >> 3)) + 4 * (m & 7)
    def kload(nu): return [f"s_add_u32 s30, s{sKT}, {nu*160*P.KG}", (f"buffer_load_dwordx4 {v(cK+4*nu,4)}, v{vL16}, {WS4}, s30 offen sc1", ("k", nu))]
    def aread(m):
        o = 16 * (m % 16)
        return ([f"v_add_u32 v{vHA}, 1024, v{vHA}"] if (m and m % 16 == 0) else []) + [
            (f"ds_read2_b32 {a(AI(m),2)}, v{vHA} offset0:{o} offset1:{o+1}", ("A", m >> 3)), (f"ds_read2_b32 {a(AI(m)+2,2)}, v{vHA} offset0:{o+2} offset1:{o+3}", ("A", m >> 3))]
    MA = P.poll_at
    for m in range(MA if P.cv6 == 1 else P.m1):
        if m == 7:
            A(f"s_lshl_b32 s30, s{S_WAVE}, 4"); A("s_lshr_b64 s[58:59], s[58:59], s30"); A("s_and_b32 s58, s58, 0xffff")
            A(f"v_lshlrev_b32 v{cACC+1}, v{cACC+1}, s58")
            for j in range(4):
                A(f"v_cmp_eq_u32 vcc, {j}, v{cACC}"); A("s_nop 1"); A(f"v_cndmask_b32 v{vAD+j}, 0, v{cACC+1}, vcc")
        if m == P.m6 and P.cv6 == 1:
            stamp(S.A, C, "c_a1")
            for n2 in range(4): A.extend(kload(n2))
            A("s_barrier"); p0_loads(S, 1)
        A.extend(aread(m))
    if P.cv6 == 2:
        A.need([("p0", 1)]); A("s_barrier"); stamp(S.A, C, "c_b"); A.extend(p0_reads(1)); m = P.m1
        for n2 in range(4): A.extend(kload(n2))
        for i, chk in enumerate(p0_compute(1)):
            while i and m < P.m1 + ((MA - P.m1) * (i + 1)) // 8: A.extend(aread(m)); m += 1
            A.extend(chk)
    stamp(S.A, C, "c_ab")
    def kvin(nu):
        kd = cK + 4 * nu
        o = [("need", [("k", nu)])] + spin(tail, f"cv{nu}", kload(nu), tagcheck([kd, kd+1, kd+2, kd+3], cT))
        return o + [f"v_perm_b32 v{cT}, v{kd+2}, v{kd+3}, s{S_PM}", f"v_perm_b32 v{cT+1}, v{kd}, v{kd+1}, s{S_PM}", f"ds_write_b64 v{vXW}, {v(cT,2)} offset:{512*(7-nu)}"]
    def bread(nu): return [(f"ds_read_b128 {v(cB+32*(nu&3)+4*rho,4)}, v{vXR} offset:{512*(7-nu)+64*rho}", ("B", nu, rho)) for rho in range(8)]
    A.extend(kvin(0)); A.extend(bread(0))
    stamp(S.A, C, "c_kv0")
    mf = []; lfirst = {}; llast = {}; afirst = {}; alast = {}; done = {}; nfirst = {}
    for (n, nu) in order:
        acc = v(cACC + 4 * n, 4); bb = cB + 32 * (nu & 3)
        lfirst.setdefault(nu, len(mf)); afirst.setdefault(n - nu, len(mf)); new = n not in nfirst; nfirst.setdefault(n, len(mf))
        for rho in range(8):
            mf.append(f"v_mfma_f32_16x16x32_bf16 {acc}, {a(AI(8*(n-nu)+rho),4)}, {v(bb+4*rho,4)}, {0 if (new and rho == 0) else acc}")
        if n == nu: mf.append(f"v_mfma_f32_16x16x32_bf16 {acc}, {v(vAD,4)}, {v(bb,4)}, {acc}"); done[n] = len(mf)
        llast[nu] = len(mf); alast[7 - (n - nu)] = len(mf)
    N = len(mf)
    q1 = Seq(); q2 = Seq(); q3 = Seq(); q4 = Seq(); q5 = Seq(); ev = []
    ev += [(0, ("need", None, [("B", 0, 2)])), (3, ("need", None, [("B", 0, 5)])), (6, ("need", None, [("B", 0, 7)]))]
    for m in range(MA, 64):
        q3.addl(aread(m), 7 + P.astep * (m - MA), dl=min(afirst[m >> 3] - 5, 80))
        if m % 8 == 7: ev.append((afirst[m >> 3], ("need", None, [("A", m >> 3)])))
    for nu in range(1, 8):
        ev.append((lfirst[nu], ("need", None, [("B", nu, 7)])))
        rd0 = lfirst[nu] - (P.rl1 if nu == 1 else P.rl2 if nu < 4 else P.rl4 if nu == 4 else P.rl5)
        assert nu < 4 or rd0 >= llast[nu - 4]
        if nu >= 4: q5.addl([x.replace("s30", "s66") if isinstance(x, str) else (x[0].replace("s30", "s66"), x[1]) for x in kload(nu)], P.k6 + P.k6s * (nu - 4), dl=rd0 - 10)
        q2.addl(kvin(nu), max(0, rd0 - 8)); q2.addl(bread(nu), rd0, 1, dl=lfirst[nu] - 1)
    if C.diag and P.cs1:
        for gg in range(P.cs0, min(N, P.cs0 + 11 * P.cs1), P.cs1): ev += [(gg - 0.2, "s_nop 0"), (gg - 0.1, ("call", lambda gg=gg: stamp(S.A, C, f"b{gg}")))]
    q0 = Seq()
    for g, x in sorted(ev, key=lambda e: e[0]): q0.add(x, round(g), round(g))
    WS_ = [2, 1, 3, 2]
    bars = [(0, None), (1, None), (2, None), (3, None), (("p", P.b0), 0), (("p", P.b1), 1), (4, 2), (5, None), (6, 3), (7, None)]
    gbs = {}; y = cY + 2
    afree = lambda qd: max(alast[pp] for pp in range(8) if 32 * pp < 40 * (qd + 1))
    for bi, (nu, wq) in enumerate(bars):
        plain = isinstance(nu, tuple)
        if plain: gb = nu[1]
        else:
            an = cACC + 4 * nu
            q1.addl([f"v_cvt_pk_bf16_f32 v{cY}, v{an}, v{an+1}", f"v_cvt_pk_bf16_f32 v{cY+1}, v{an+2}, v{an+3}", (f"ds_write_b64 v{vYW}, {v(cY,2)} offset:{2304*(nu&1)}", "yw")], min(done[nu] + 3, N))
            d1, d2 = (P.e1, P.e2) if nu < 4 else (P.d61, P.d62)
            gb = min(done[nu] + 4 + d1, N)
        gbs[bi] = gb
        vt = [("p0", 1)] if (nu == 3 and P.cv6 == 1) else ([("w1", wq)] if wq is not None else None)
        q1.add(("need", vt, 0 if nu == P.l6 else ["yw", "tr", ("A", 7)] if bi >= 3 else ["yw"]), gb)
        if wq is not None:
            def chk(wq=wq): assert S.vm.count(("w1", wq)) == 10, wq
            q1.add(("call", chk), gb); assert gb >= afree(wq), (gb, wq)
        q1.add("s_barrier", gb, gb)
        if wq is not None: q3.addl(w1_tr(wq, WS_[wq], cT + 2), gb + 1, 1, dl=min(gb + 22, N - 1))
        if plain: continue
        q1.add((f"ds_read_b64_tr_b16 {v(y,2)}, v{vYR} offset:{2304*(nu&1)}", "yr"), gb, gb)
        pub = [("need", None, ["yr"]),
            f"v_lshl_or_b32 v{y+2}, v{y}, 16, s{S_TAG16}", f"v_bfi_b32 v{y+3}, v{vM}, s{S_TAG16}, v{y}",
            f"v_lshl_or_b32 v{y+4}, v{y+1}, 16, s{S_TAG16}", f"v_bfi_b32 v{y+5}, v{vM}, s{S_TAG16}, v{y+1}",
            (f"buffer_store_dwordx4 {v(y+2,4)}, v{vYG}, {WS4}, s{sY} offen sc1", "yst"), f"s_add_u32 s{sY}, s{sY}, {32*P.YP}",
            ("call", lambda nu=nu: stamp(S.A, C, f"c_s{nu}"))]
        if nu == 3 and P.cv6 == 1:
            gC = nfirst[6]; assert gb < gC
            q1.addl([("call", lambda: stamp(S.A, C, "c_b"))] + p0_reads(1), gb, dl=gC)
            q1.addl(pub + [x for c in p0_compute(1) for x in c] + [("call", lambda: stamp(S.A, C, "c_b2"))], gC, dl=gC)
        elif nu == 7 and P.l6 == 7:
            q1.addl(slcheck(tail, 0, 6, "c") + [("call", lambda: stamp(S.A, C, "g1_l0"))] + [x for d in lndma(0) for x in d] + pub, N)
        else: q1.addl(pub, min(gb + d2, N))
    assert all(gbs[i] + 22 < gbs[i + 1] for i in (4, 5, 6))
    g = float(P.w6g); lim = {0: gbs[4], 1: gbs[5], 2: gbs[6], 3: gbs[8]}
    for qd in range(4):
        g = max(g, {0: gbs[0], 1: gbs[3 if MA < 64 else 0], 2: gbs[4 if P.cv6 == 1 else 0], 3: gbs[5]}[qd] + 3)
        g = q4.addl(w1_dma(qd, WS_[qd]), g, P.w6s, dl=lim[qd] - 1, stepon=isvm)
    q6 = Seq(); q6.addl(g1_setup(), 150, 1)
    gl = gbs[P.l6 + 2]; q6.addl(slpoll(0, 6), gl - P.l6p, dl=gl - 1)
    if P.l6 < 7:
        q4.addl(slcheck(tail, 0, 6, "c") + [("call", lambda: stamp(S.A, C, "g1_l0"))], gl + 1)
        q4.addl([x for d in lndma(0) for x in d], gl + 3, 3, dl=N - 1, stepon=isvm)
    A.extend(schedule(mf, [q0, q1, q2, q5, q4, q3, q6]))
    A.extend(slpoll(1, 8)); A.need([("ln", 0)], 0); A("s_barrier")

def repack(A, more, nmore):
    srd(A, SRD_A, P_WD, NB_W)
    A(f"s_mul_i32 s48, s{S_ID}, 40960"); A(f"s_add_u32 s48, s48, s{sWb}")
    A("v_lshrrev_b32 v3, 4, v1"); A(f"s_and_b32 s50, s{S_WAVE}, 1"); A("s_lshl_b32 s50, s50, 2"); A("v_or_b32 v4, s50, v3"); A("v_lshlrev_b32 v4, 5, v4")
    A(f"v_and_b32 v2, 0xff, v{vL16}"); A("v_xor_b32 v2, v2, v4"); A("v_mul_u32_u24 v4, 1280, v3"); A("v_add_u32 v2, v2, v4")
    for i in range(10):
        A(f"s_add_u32 m0, s{sWb}, {1024*i}"); A(f"s_add_u32 s50, s48, {5120*(i//5)+256*(i%5)}")
        A(f"buffer_load_dwordx4 v2, {s(SRD_A,4)}, s50 offen lds")
    more()
    A("v_lshrrev_b32 v3, 4, v1"); A("v_mul_u32_u24 v3, 10240, v3"); A("v_bfe_u32 v4, v1, 2, 2"); A("v_lshl_add_u32 v3, v4, 8, v3")
    A("v_bfe_u32 v4, v1, 2, 3"); A("v_lshl_add_u32 v3, v4, 5, v3"); A("v_and_b32 v4, 3, v1"); A("v_lshl_add_u32 v3, v4, 3, v3")
    A(f"s_mul_i32 s49, s{S_WAVE}, 10")
    for i in range(10):
        A(f"s_add_u32 s50, s49, {i}"); A("s_and_b32 s51, s50, 7"); A("s_lshl_b32 s51, s51, 5"); A("s_lshr_b32 s50, s50, 3"); A("s_lshl_b32 s50, s50, 10")
        A(f"v_xor_b32 v{64+i}, s51, v3"); A(f"v_add_u32 v{64+i}, s50, v{64+i}")
    A(f"s_mul_i32 s50, s{S_WAVE}, {2*P.WC}"); A(f"s_mul_i32 s51, s{S_ID}, 5120"); A("s_add_u32 s50, s50, s51"); A(f"s_add_u32 s50, s50, {WS_W2F}")
    A(f"s_waitcnt vmcnt({nmore})"); A("s_barrier")
    for i in range(10):
        A(f"ds_read_b64_tr_b16 {v(12+4*i,2)}, v{64+i}"); A(f"ds_read_b64_tr_b16 {v(14+4*i,2)}, v{64+i} offset:5120")
    for i in range(10):
        if i == 4 or i == 9: A("s_add_u32 s50, s50, 4096")
        if i == 5: A(f"s_add_u32 s50, s50, {P.WC-4096}")
        A(f"s_waitcnt lgkmcnt({min(14, 18-2*i)})")
        A(f"buffer_store_dwordx4 {v(12+4*i,4)}, v{vL16}, {WS4}, s50 offen offset:{1024*((i%5)%4)} sc1")

R_XB = 69632; R_PX = 86016; R_ST = 91136; R_PM = 92160
def sums(xs, vS):
    o = [".p2align 3", f"v_pk_add_f32 {v(vS,2)}, {v(xs,2)}, {v(xs+2,2)}", f"v_pk_mul_f32 {v(vS+2,2)}, {v(xs,2)}, {v(xs,2)}",
         f"v_pk_fma_f32 {v(vS+2,2)}, {v(xs+2,2)}, {v(xs+2,2)}, {v(vS+2,2)}"]
    for i in range(2, 10):
        o += [f"v_pk_add_f32 {v(vS,2)}, {v(vS,2)}, {v(xs+2*i,2)}", f"v_pk_fma_f32 {v(vS+2,2)}, {v(xs+2*i,2)}, {v(xs+2*i,2)}, {v(vS+2,2)}"]
    o += [f"v_add_f32 v{vS}, v{vS}, v{vS+1}", f"v_add_f32 v{vS+1}, v{vS+2}, v{vS+3}",
          f"v_permlane16_swap_b32 v{vS}, v{vS+1}", f"v_add_f32 v{vS}, v{vS}, v{vS+1}",
          f"v_add_f32_dpp v{vS}, v{vS}, v{vS} row_ror:8 row_mask:0xf bank_mask:0xf"]
    return o
def finalize(vS, vP, vF=None):
    inv = struct.unpack("<I", struct.pack("<f", 1.0 / 640))[0]
    eps = struct.unpack("<I", struct.pack("<f", 1e-5))[0]
    o = []
    for b in (vP, vP + 8): o += [f"v_pk_add_f32 {v(b,2)}, {v(b,2)}, {v(b+2,2)}", f"v_pk_add_f32 {v(b+4,2)}, {v(b+4,2)}, {v(b+6,2)}"]
    for b in (vP, vP + 8): o += [f"v_pk_add_f32 {v(b,2)}, {v(b,2)}, {v(b+4,2)}"]
    o += [f"v_add_f32 v{vS}, v{vP}, v{vP+1}", f"v_add_f32 v{vS+1}, v{vP+8}, v{vP+9}",
          f"v_mul_f32 v{vS}, {inv:#x}, v{vS}", f"v_mul_f32 v{vS+1}, {inv:#x}, v{vS+1}",
          f"v_fma_f32 v{vS+1}, -v{vS}, v{vS}, v{vS+1}", f"v_max_f32 v{vS+1}, 0, v{vS+1}",
          f"v_cvt_pk_bf16_f32 v{vS+1}, 0, v{vS+1}", f"v_add_f32 v{vS+1}, {eps:#x}, v{vS+1}", f"v_cvt_pk_bf16_f32 v{vS+1}, 0, v{vS+1}",
          f"v_sqrt_f32 v{vS+1}, v{vS+1}", f"v_cvt_pk_bf16_f32 v{vF or vS}, 0, v{vS}", f"v_cvt_pk_bf16_f32 v{(vF or vS)+1}, 0, v{vS+1}", f"v_rcp_f32 v{vS+1}, v{(vF or vS)+1}",
          f"v_mul_f32 v{vS}, v{vF or vS}, v{vS+1}"]
    return o

def rworker(A, C, tail):
    NW = 40
    vYA, vYB, vLB, vLW, vLR, vFL, vFLn, vXA = range(2, 10)
    vXB, vSR, vrow, vq, vt = 12, 13, 14, 15, 16
    vXr = 20; vSX = 30; vX = 32; vQ = 52; vYr = 72; vS = 92; vPt = 96; vP = 112; vP2 = 124
    sYb, sL, sF, sCnt = 56, 57, 58, 59
    srd(A, 52, P_Q, NB_SD)
    A(f"v_lshrrev_b32 v{vt}, 4, v1"); A(f"v_and_b32 v{vt+1}, 15, v1"); A(f"v_lshlrev_b32 v{vt+2}, 1, v{vt}"); A(f"v_xor_b32 v{vt+1}, v{vt+1}, v{vt+2}")
    A(f"v_mul_u32_u24 v{vt}, 1280, v{vt}"); A(f"v_xor_b32 v{vt+2}, 8, v{vt+1}")
    A(f"v_lshl_add_u32 v{vt+1}, v{vt+1}, 4, v{vt}"); A(f"v_lshl_add_u32 v{vt+2}, v{vt+2}, 4, v{vt}")
    A(f"s_mul_i32 s60, s{S_ID}, 10240"); A(f"s_mul_i32 s61, s{S_WAVE}, {NW*10240}"); A("s_add_u32 s60, s60, s61")
    A(f"s_mul_i32 s61, s{S_WAVE}, 8704"); A(f"s_lshl_b32 s62, s{S_WAVE}, 11")
    def xdma(hf):
        for r in range(8):
            A(f"s_add_u32 m0, s61, {hf*4*8704+r*1088}"); A(f"s_add_u32 s30, s60, {hf*4*NW*10240+r*1280}")
            A(f"buffer_load_dwordx4 v{vL16}, s[52:55], s30 offen lds")
        for h in range(2):
            A(f"s_add_u32 m0, s62, {R_XB+hf*8192+h*1024}"); A(f"s_add_u32 s30, s60, {hf*4*NW*10240+h*5120+1024}")
            A(f"buffer_load_dwordx4 v{vt+1+h}, s[52:55], s30 offen lds")
    if P.rdel0: A(f"s_sleep {P.rdel0}")
    if P.rhold: common_setup(A, 'r'); epoch_finish(A)
    xdma(0)
    if not P.rhold: common_setup(A, 'r'); epoch_finish(A)
    A(f"v_and_b32 v{vrow}, 7, v0"); A(f"v_lshrrev_b32 v{vq}, 3, v0")
    A(f"v_lshlrev_b32 v{vYB}, 4, v{vrow}"); A(f"v_lshl_add_u32 v{vYA}, v{vq}, 8, v{vYB}"); A(f"v_lshl_add_u32 v{vYB}, v{vq}, 7, v{vYB}")
    A(f"v_and_b32 v{vt}, 8, v1"); A(f"v_cmp_eq_u32 vcc, 0, v{vt}"); A(f"v_bfrev_b32 v{vFL}, 1"); A("s_nop 0"); A(f"v_cndmask_b32 v{vLB}, v{vFL}, v{vYB}, vcc")
    A(f"v_cmp_gt_u32 vcc, 8, v1"); A(f"v_mul_u32_u24 v{vXA}, 1088, v{vrow}"); A(f"v_lshl_add_u32 v{vXA}, v{vq}, 4, v{vXA}"); A(f"v_cndmask_b32 v{vFLn}, v{vFL}, v{vL16}, vcc")
    for i in range(4): A(f"v_mov_b32 v{136+i}, v{vTag}")
    A(f"v_lshrrev_b32 v{vt}, 1, v{vq}"); A(f"v_lshlrev_b32 v{vt+3}, 1, v{vrow}"); A(f"v_xor_b32 v{vt}, v{vt}, v{vt+3}"); A(f"v_lshlrev_b32 v{vt}, 4, v{vt}")
    A(f"v_lshl_add_u32 v{vXB}, v{vrow}, 8, v{vt}"); A(f"v_and_b32 v{vt}, 1, v{vq}"); A(f"v_lshl_add_u32 v{vXB}, v{vt}, 3, v{vXB}"); A(f"v_add_u32 v{vXB}, {R_XB}, v{vXB}")
    A(f"v_mul_u32_u24 v{vLR}, 80, v{vrow}"); A(f"v_add_u32 v{vLR}, {R_PX}, v{vLR}")
    A(f"v_bfe_u32 v{vLW}, v1, 4, 1"); A(f"v_lshl_add_u32 v{vLW}, v{vLW}, 5, v{vLR}")
    A(f"v_lshrrev_b32 v{vt}, 5, v1"); A(f"v_lshl_add_u32 v{vLW}, v{vt}, 2, v{vLW}"); A(f"s_lshl_b32 s30, s{S_WAVE}, 3"); A(f"v_add_u32 v{vLW}, s30, v{vLW}")
    A(f"s_mul_i32 s{sYb}, s{S_ID}, {P.YP}"); A(f"s_add_u32 s{sYb}, s{sYb}, {WS_YT}")
    A(f"s_lshr_b32 s{sL}, s{S_ID}, 1"); A(f"s_mul_i32 s{sL}, s{sL}, {P.LS}"); A(f"s_and_b32 s30, s{S_ID}, 1"); A("s_lshl_b32 s30, s30, 7")
    A(f"s_add_u32 s{sL}, s{sL}, s30"); A(f"s_add_u32 s{sL}, s{sL}, {WS_LNF}")
    A(f"s_lshl_b32 s{sF}, s{S_ID}, 10"); A(f"s_add_u32 s{sF}, s{sF}, {FL_LN-NW*1024}")
    def prewrite():
        A(f"s_cmp_lg_u32 s{S_WAVE}, 0"); A("s_cbranch_scc1 L_rpw")
        for i in range(4): A(f"v_not_b32 v{vP+i}, v{vTag}")
        for k in range(7):
            A(f"s_add_u32 s30, s{sF}, {(k+1)*NW*1024}"); A(f"buffer_store_dwordx4 {v(vP,4)}, v{vL16}, {WS4}, s30 offen sc1")
        A.label("L_rpw")
    xread = [f"ds_read_b128 {v(vXr,4)}, v{vXA}", f"ds_read_b128 {v(vXr+4,4)}, v{vXA} offset:512", f"ds_read_b64 {v(vXr+8,2)}, v{vXB}"]
    xadv = [f"v_add_u32 v{vXA}, 8704, v{vXA}", f"v_add_u32 v{vXB}, 2048, v{vXB}"]
    for hf in range(2):
        nt = 2 if P.touch else 0
        if hf == 0 and P.xall:
            xdma(1)
            if P.touch: w1_touch(A)
        A(f"s_waitcnt vmcnt({nt + (P.rpre == 1) * (2 if P.r2 else 1) if hf else (10 + nt if P.xall else 0)})"); A("s_barrier"); stamp(A, C, f"r_x{hf}")
        if hf == 1 and P.pw & 1: prewrite()
        if hf == P.rpre - 1:
            A(f"v_lshlrev_b32 v{vP+8}, 7, v0"); A(f"v_min_u32 v{vP+8}, {159*128}, v{vP+8}"); A(f"buffer_load_dword v{vP+9}, v{vP+8}, {WS4}, s{sYb} offen sc1")
            if P.r2:
                A(f"s_cmp_lt_u32 s{S_ID}, {128 - 3*NW}"); A("s_cselect_b32 s68, 4, 3"); A(f"s_add_u32 s30, s68, {P.r2-0}"); A(f"s_mul_i32 s69, s30, {NW*P.YP}"); A(f"s_add_u32 s69, s69, s{sYb}")
                A("v_min_u32 v160, 3, v1"); A(f"s_lshl_b32 s30, s{S_WAVE}, 2"); A("v_add_u32 v160, s30, v160"); A("v_mul_u32_u24 v160, 1280, v160")
                A(f"s_lshr_b32 s30, s{S_ID}, 2"); A("s_lshl_b32 s30, s30, 7"); A("v_add_u32 v160, s30, v160")
                A(f"buffer_load_dword v161, v160, {WS4}, s69 offen sc1")
        if hf == 0 and not P.xall:
            xdma(1)
            if P.touch: w1_touch(A)
        A.extend(xread); A(f"s_mov_b32 s{sCnt}, {3-hf}"); A("s_waitcnt lgkmcnt(0)")
        A.label(f"L_rp{hf}")
        A.extend(xadv); A("s_waitcnt lgkmcnt(1)"); A.extend(unpk(vX, vXr, 10)); A.extend(xread); A.extend(sums(vX, vS))
        A(f"ds_write_b32 v{vLW}, v{vS}"); A(f"v_add_u32 v{vLW}, 640, v{vLW}")
        A(f"s_sub_u32 s{sCnt}, s{sCnt}, 1"); A(f"s_cbranch_scc0 L_rp{hf}")
        A("s_waitcnt lgkmcnt(0)")
    A("s_barrier")
    A(f"v_lshrrev_b32 v{vt}, 3, v1"); A(f"v_mul_u32_u24 v{vt}, 640, v{vt}"); A(f"v_add_u32 v{vt}, v{vt}, v{vLR}")
    for i in range(4): A(f"ds_read_b128 {v(vPt+4*i,4)}, v{vt} offset:{16*i}")
    A(f"v_subrev_u32 v{vXA}, {7*8704}, v{vXA}"); A(f"v_subrev_u32 v{vXB}, {7*2048}, v{vXB}"); A.extend(xread)
    A(f"v_add_u32 v{vLW}, {R_PM-R_PX-7*640}, v{vLW}"); A(f"v_add_u32 v{vLR}, {R_PM-R_PX}, v{vLR}")
    A(f"v_lshlrev_b32 v{vt}, 3, v1"); A(f"v_add_u32 v{vt}, {R_ST}, v{vt}"); A(f"v_lshlrev_b32 v{vSR}, 3, v{vrow}"); A(f"v_add_u32 v{vSR}, {R_ST}, v{vSR}")
    A("s_waitcnt lgkmcnt(3)"); A.extend(finalize(vS, vPt))
    A(f"ds_write_b64 v{vt}, {v(vS,2)}"); A(f"ds_read_b64 {v(vSX,2)}, v{vSR}")
    A(f"s_cmp_lt_u32 s{S_ID}, {256 - 6*NW}"); A(f"s_cselect_b32 s{sCnt}, 6, 5"); A(f"s_mov_b32 s65, 0")
    if P.r2: A(f"s_sub_u32 s67, s{sCnt}, s68"); A(f"s_sub_u32 s{sCnt}, s68, 1")
    stamp(A, C, "r_prep"); stamp_flush(A, C)
    NRM = "op_sel:[0,1,0] op_sel_hi:[1,1,0] neg_lo:[0,0,1] neg_hi:[0,0,1]"
    YS = [vYr, 140]
    def yl(par, i, sreg): return f"buffer_load_dwordx4 {v(YS[par]+4*i,4)}, v{vYA if i < 4 else vYB}, {WS4}, s{sreg} offen offset:{128*(i&1) if i < 4 else 0} sc1"
    def yload(par): return [f"s_add_u32 s30, s{sYb}, 8192", f"s_add_u32 s31, s{sYb}, 16384"] + [yl(par, i, (sYb, sYb, 30, 30, 31)[i]) for i in range(5)]
    def ycheck(par):
        Y = YS[par]
        o = [f"v_xor_b32 v{Y+i}, s{S_TAG16}, v{Y+i}" for i in range(20)]
        o += [f"v_or3_b32 v{vt}, v{Y}, v{Y+1}, v{Y+2}", f"v_or3_b32 v{vt+1}, v{Y+3}, v{Y+4}, v{Y+5}"]
        o += [f"v_or3_b32 v{vt+(i&1)}, v{Y+6+2*i}, v{Y+7+2*i}, v{vt+(i&1)}" for i in range(7)]
        return o + [f"v_or_b32 v{vt}, v{vt}, v{vt+1}", f"v_cmp_ne_u16 vcc, 0, v{vt}"]
    def flag(lbl): return ["s_cmp_lg_u32 s66, 0", f"s_cbranch_scc1 {lbl}", f"buffer_store_dwordx4 v[136:139], v{vL16}, {WS4}, s{sF} offen sc1", f"{lbl}:"]
    def nextx(l1=None, l2=None):
        if P.zz & 2 and l1: A("s_waitcnt lgkmcnt(0)"); A(l1); A(l2); return
        A("s_waitcnt lgkmcnt(0)"); u = unpk(vX, vXr, 10); A.extend(u[:12])
        if l1: A(l1)
        A.extend(u[12:]); A(".p2align 3")
        A.extend([f"v_pk_fma_f32 {v(vQ+2*i,2)}, {v(vX+2*i,2)}, {v(vSX,2)}, {v(vSX,2)} {NRM}" for i in range(8)])
        if l2: A(l2)
        A.extend([f"v_pk_fma_f32 {v(vQ+2*i,2)}, {v(vX+2*i,2)}, {v(vSX,2)}, {v(vSX,2)} {NRM}" for i in range(8, 10)])
        A.extend(xadv + [f"v_add_u32 v{vSR}, 64, v{vSR}"])
    D = NW * P.YP
    if P.nor: A("s_endpgm")
    if P.rdelay: A(f"s_sleep {P.rdelay}")
    if P.rhint:
        nextx()
        A(f"v_min_u32 v{vt+2}, {P.rhint-1}, v1"); A(f"s_mul_i32 s30, s{S_WAVE}, {P.rhint}"); A(f"v_add_u32 v{vt+2}, s30, v{vt+2}"); A(f"v_mul_u32_u24 v{vt+2}, {128*(40//P.rhint)}, v{vt+2}")
        A(f"s_mul_i32 s30, s{S_ID}, {128*(40//P.rhint)}"); A("s_mul_hi_u32 s30, s30, 107374183"); A("s_and_b32 s30, s30, 0xffffff80"); A(f"v_add_u32 v{vt+2}, s30, v{vt+2}")
        hl = [f"buffer_load_dword v{vYr}, v{vt+2}, {WS4}, s{sYb} offen sc1"]
        A.extend(hl); A("s_waitcnt vmcnt(0)")
        A.extend(spin(tail, "rh", hl, [f"v_xor_b32 v{vYr}, s{S_TAG16}, v{vYr}", f"v_cmp_ne_u16 vcc, 0, v{vYr}"], P.rsleep))
        stamp(A, C, "r_h0"); A("s_barrier"); stamp(A, C, "r_h1"); A.extend(yload(0)); stamp_flush(A, C)
    else: A.extend(yload(0)); nextx()
    A.label("L_rre")
    A("s_mov_b32 s66, 1")
    A(f"s_add_u32 s62, s{sYb}, {D}"); A("s_add_u32 s60, s62, 8192"); A("s_add_u32 s61, s62, 16384"); A("s_waitcnt vmcnt(0)")
    A.extend(spin(tail, "ry", yload(0), ycheck(0), P.rsleep))
    for i in range(4): A(yl(1, i, (62, 62, 60, 60)[i]))
    A("s_branch L_ry0b")
    for par in range(2):
        Y = YS[par]
        A.label(f"L_rtop{par}")
        if C.diag: rstamp(A, C, 65, "r_t", par)
        ck = spin(tail, f"ry{par}", yload(par), ycheck(par), P.rsleep)
        A.extend(ck[:8]); A(yl(1 - par, 2, 60)); A.extend(ck[8:24]); A(yl(1 - par, 3, 60)); A.extend(ck[24:])
        if C.diag: rstamp(A, C, 65, "r_y", par)
        A(".p2align 3")
        for i in range(10): A(f"v_pk_fma_f32 {v(vX+2*i,2)}, {v(vQ+2*i,2)}, {v(Y+2*i,2)}, {v(vX+2*i,2)}")
        A(yl(1 - par, 4, 61)); A.extend(sums(vX, vS)); A(f"ds_write_b32 v{vLW}, v{vS}")
        A(f"s_add_u32 s63, s{sL}, 8192"); A(f"s_add_u32 s64, s{sL}, 16384"); A(f"v_xor_b32 v{vLW}, 1024, v{vLW}")
        A(f"s_add_u32 s{sYb}, s{sYb}, {D}"); A(f"s_add_u32 s62, s{sYb}, {D}"); A(f"s_cmp_lt_u32 s{sCnt}, 2"); A(f"s_cselect_b32 s62, {OOB}, s62")
        A("s_add_u32 s60, s62, 8192"); A("s_add_u32 s61, s62, 16384")
        if C.diag: rstamp(A, C, 65, "r_a", par)
        A("s_waitcnt vmcnt(5) lgkmcnt(0)" if not P.zz & 8 else "s_waitcnt lgkmcnt(0)"); A("s_barrier")
        for i in range(4): A(f"ds_read_b128 {v(vPt+4*i,4)}, v{vLR} offset:{16*i}")
        A.extend(xread + [f"ds_read_b64 {v(vSX,2)}, v{vSR}"])
        A.extend(flag(f"L_rnf{par}_"))
        if C.diag: rstamp(A, C, 65, "r_f", par)
        A(f"v_xor_b32 v{vLR}, 1024, v{vLR}")
        A("s_waitcnt lgkmcnt(4)"); A.extend(finalize(vS, vPt, 137)); A(".p2align 3")
        lnv = lambda i: f"v_pk_fma_f32 {v(vQ+2*i,2)}, {v(vX+2*i,2)}, {v(vS,2)}, {v(vS,2)} {NRM}"
        cv = lambda i: f"v_cvt_pk_bf16_f32 v{vP+i}, v{vQ+2*i}, v{vQ+2*i+1}"
        A.extend([lnv(i) for i in range(4)] + [cv(i) for i in range(4)])
        A(f"buffer_store_dwordx4 {v(vP,4)}, v{vYA}, {WS4}, s{sL} offen sc1")
        A.extend([lnv(i) for i in range(4, 10)] + [cv(i) for i in (8, 9, 4, 5, 6, 7)])
        A(f"buffer_store_dwordx4 {v(vP+4,4)}, v{vYA}, {WS4}, s63 offen sc1")
        for k in range(2): A(f"v_mov_b32_dpp v{vP+10+k}, v{vP+8+k} row_shl:8 row_mask:0xf bank_mask:0xf bound_ctrl:0")
        A(f"s_add_u32 s{sL}, s{sL}, {NW//2*P.LS}"); A(f"s_add_u32 s{sF}, s{sF}, {NW*1024}"); A(f"s_mov_b32 s66, s{S_WAVE}")
        A(f"buffer_store_dwordx4 {v(vP+8,4)}, v{vLB}, {WS4}, s64 offen sc1")
        if C.diag: rstamp(A, C, 65, "r_l", par)
        nextx(yl(par, 0, 62), yl(par, 1, 62))
        if C.diag: rstamp(A, C, 65, "r_n", par); A("s_add_u32 s65, s65, 1")
        A(f"s_sub_u32 s{sCnt}, s{sCnt}, 1"); A("s_waitcnt vmcnt(5)")
        A("s_cbranch_scc1 L_rdone" if par == 0 else "s_cbranch_scc0 L_rtop0")
    A.label("L_rdone")
    hl2 = [f"buffer_load_dword v161, v160, {WS4}, s69 offen sc1"]
    if P.r2: A.extend(hl2)
    A("s_waitcnt vmcnt(0)"); A("s_barrier"); A.extend(flag("L_rnf2"))
    if P.r2:
        A("s_cmp_eq_u32 s67, 0"); A("s_cbranch_scc1 L_rfin")
        A(f"s_mov_b32 s{sCnt}, s67"); A("s_mov_b32 s67, 0")
        A.extend(spin(tail, "rh2", hl2, [f"v_xor_b32 v161, s{S_TAG16}, v161", "v_cmp_ne_u16 vcc, 0, v161"], P.rsleep))
        A("s_barrier"); stamp(A, C, "r_p2"); stamp_flush(A, C); A.extend(yload(0)); A("s_branch L_rre")
        A.label("L_rfin")
    stamp(A, C, "r_end"); stamp_flush(A, C)

def epoch_update(A, tail):
    A("s_sub_u32 s30, s2, 216"); A(f"s_or_b32 s30, s30, s{S_WAVE}"); A("s_cbranch_scc1 L_noep")
    A("v_and_b32 v20, 31, v1"); A("v_min_u32 v20, 26, v20"); A("v_lshlrev_b32 v20, 8, v20"); A("v_lshrrev_b32 v21, 5, v1"); A("v_lshl_add_u32 v20, v21, 13, v20")
    A("v_min_u32 v21, 39, v1"); A("v_lshlrev_b32 v21, 10, v21"); A("v_lshlrev_b32 v23, 2, v1")
    el = []
    for i in range(4): el += [f"s_mov_b32 s30, {FL_HH+16384*i}", f"buffer_load_dword v{24+i}, v20, {WS4}, s30 offen sc1"]
    el += [f"s_mov_b32 s30, {FL_LN}", f"buffer_load_dword v28, v21, {WS4}, s30 offen sc1"]
    ec = [f"v_xor_b32 v22, v{vTag}, v24"] + [f"v_bitop3_b32 v22, v{25+i}, v{vTag}, v22 bitop3:0xbe" for i in range(4)] + ["v_cmp_ne_u32 vcc, 0, v22"]
    A.extend(el); A("s_waitcnt vmcnt(0)"); A.extend(spin(tail, "ep", el, ec, 16))
    A(f"s_mov_b32 s30, {FL_E}"); A(f"buffer_store_dword v{vTag}, v23, {WS4}, s30 offen sc1")
    A.label("L_noep")

def rstamp(A, C, sCnt, nm, par):
    import re
    for j in (range(par, 8, 2) if P.cyc else range(8)):
        if re.fullmatch(C.want, f"{nm}{j}"):
            A(f"s_cmp_lg_u32 s{sCnt}, {j}"); A(f"s_cbranch_scc1 L_st_{nm}{j}_{par}")
            stamp(A, C, f"{nm}{j}")
            if not P.cyc: stamp_flush(A, C)
            A.label(f"L_st_{nm}{j}_{par}")

vFLa, vPoll, vPA, vLast, vST = 9, 8, 7, 6, 5
vRD = [2, 3, 4]; SL = [3, 1, 2]
sSrc, sSt, sNL, sLF, sHF = 50, 51, 52, 53, 54
aHH = 0; aWX = 56; aACC = 80
NU = 8; US = 8
def W2(f):
    if f < 40: return v(96 + 4 * f, 4)
    if f < 64: return a(160 + 4 * (f - 40), 4)
    return a(aWX + 4 * (f - 64), 4)
def g2_setup(A):
    if P.g2m == 0:
        A(f"s_lshr_b32 s{S_RT}, s{S_X}, 1"); A(f"s_lshl_b32 s{S_RT}, s{S_RT}, 3"); A(f"s_lshr_b32 s30, s{S_J}, 2"); A(f"s_add_u32 s{S_RT}, s{S_RT}, s30")
        A(f"s_and_b32 s{S_CB}, s{S_X}, 1"); A(f"s_lshl_b32 s{S_CB}, s{S_CB}, 2"); A(f"s_and_b32 s30, s{S_J}, 3"); A(f"s_add_u32 s{S_CB}, s{S_CB}, s30")
    elif P.g2m == 1:
        A(f"s_and_b32 s30, s{S_J}, 3"); A(f"s_lshl2_add_u32 s{S_RT}, s{S_X}, s30"); A(f"s_lshr_b32 s{S_CB}, s{S_J}, 2")
    elif P.g2m == 2:
        A(f"s_lshr_b32 s{S_RT}, s{S_X}, 1"); A(f"s_lshl_b32 s{S_RT}, s{S_RT}, 2"); A(f"s_bfe_u32 s30, s{S_J}, 0x20002"); A(f"s_add_u32 s{S_RT}, s{S_RT}, s30")
        A(f"s_and_b32 s30, s{S_J}, 16"); A(f"s_add_u32 s{S_RT}, s{S_RT}, s30")
        A(f"s_and_b32 s{S_CB}, s{S_X}, 1"); A(f"s_lshl_b32 s{S_CB}, s{S_CB}, 2"); A(f"s_and_b32 s30, s{S_J}, 3"); A(f"s_add_u32 s{S_CB}, s{S_CB}, s30")
    elif P.g2m == 3:
        A(f"s_lshr_b32 s{S_RT}, s{S_X}, 1"); A(f"s_lshl_b32 s{S_RT}, s{S_RT}, 2"); A(f"s_bfe_u32 s30, s{S_J}, 0x20002"); A(f"s_add_u32 s{S_RT}, s{S_RT}, s30")
        A(f"s_andn2_b32 s30, 16, s{S_J}"); A(f"s_add_u32 s{S_RT}, s{S_RT}, s30")
        A(f"s_and_b32 s{S_CB}, s{S_X}, 1"); A(f"s_lshl_b32 s{S_CB}, s{S_CB}, 2"); A(f"s_and_b32 s30, s{S_J}, 3"); A(f"s_add_u32 s{S_CB}, s{S_CB}, s30")
    A(f"s_mul_i32 s{sK0}, s{S_WAVE}, 14"); A(f"s_cmp_eq_u32 s{S_WAVE}, 3"); A(f"s_cselect_b32 s{sK0}, 41, s{sK0}")
    A(f"s_mul_i32 s{sW2}, s{S_CB}, {P.WC}"); A(f"s_mul_i32 s30, s{sK0}, 5120"); A(f"s_add_u32 s{sW2}, s{sW2}, s30"); A(f"s_add_u32 s{sW2}, s{sW2}, {WS_W2F}")
    A(f"s_mul_i32 s{sHH}, s{S_RT}, {P.HS}"); A(f"s_lshl_b32 s30, s{sK0}, 10"); A(f"s_add_u32 s{sHH}, s{sHH}, s30"); A(f"s_add_u32 s{sHH}, s{sHH}, {WS_HHF}")
def w2one(f, force=False):
    return ([f"s_add_u32 s31, s{sW2}, {1024*(f-f%4)}"] if (force or f % 4 == 0) else []) + [
        (f"buffer_load_dwordx4 {W2(f)}, v{vLast if f>=65 else vL16}, {WS4}, s31 offen offset:{1024*(f%4)} sc1", ("w2", f))]
def w2load(f0, f1): return [x for f in range(f0, f1) for x in w2one(f, f == f0)]
def HR(p, t):
    k = (14 * p + t) % P.ring
    return a(4 * k if k < 14 else 120 + 4 * (k - 14), 4)
def hload(p, t, force=False):
    return ([f"s_add_u32 s49, s{sHH}, {(p if not (P.zz & 1 and p == 3) else 1)*32*P.HS+1024*(t-t%4)}"] if (force or t % 4 == 0) else []) + [
        (f"buffer_load_dwordx4 {HR(p, t)}, v{vLast if t==13 else vL16}, {WS4}, s49 offen offset:{1024*(t%4)} sc1", ("h", p, t))]
CMP = lambda r: [f"v_cmp_ne_u32 vcc, v{vTag}, v{r}"]
def w2_poll(tail, name, reg, adr):
    ld = [f"s_mov_b32 s30, {FL_W2}", (f"buffer_load_dword v{reg}, v{adr}, {WS4}, s30 offen sc1", "pw")]
    pre = [f"v_min_u32 v{adr}, 13, v1", f"v_add_u32 v{adr}, s{sK0}, v{adr}", f"v_min_u32 v{adr}, 53, v{adr}", f"v_lshlrev_b32 v{adr}, 8, v{adr}"]
    return pre + ld, [("need", ["pw"])] + spin(tail, name, ld, CMP(reg), 8)
def hh_poll(p2, reg=vPoll):
    return [f"s_add_u32 s30, s59, {p2*16*8192}", (f"buffer_load_dword v{reg}, v{vPA}, {WS4}, s30 offen sc1", ("hp", p2))]
def hh_polladdr(t0):
    return [f"s_lshr_b32 s59, s{S_RT}, 1", "s_lshl_b32 s59, s59, 5", f"s_lshr_b32 s30, s{sK0}, 1", "s_add_u32 s59, s59, s30", "s_lshl_b32 s59, s59, 1", f"s_and_b32 s30, s{S_X}, 1", "s_add_u32 s59, s59, s30",
            "s_lshl_b32 s59, s59, 7", f"s_add_u32 s59, s59, {FL_HH}",
            f"v_min_u32 v{vPA}, 6, v1", f"v_lshlrev_b32 v{vPA}, 8, v{vPA}"]
def sspin(tail, name, load, pre, last, sload):
    if P.sglc:
        tail.label(f"L_{name}r"); tail(f"s_mov_b32 s{S_SPIN}, {P.spin}")
        import re
        if P.cnt and re.fullmatch(P.cnt, name): tail("s_add_u32 s94, s94, 1")
        tail.label(f"L_{name}l")
        for x in sload: tail(x + " glc")
        tail(f"s_sub_u32 s{S_SPIN}, s{S_SPIN}, 1"); tail("s_waitcnt lgkmcnt(0)"); tail(f"s_cbranch_scc1 L_{name}b")
        tail.extend(pre); tail(last); tail(f"s_cbranch_scc1 L_{name}l"); tail(f"s_branch L_{name}b")
    else: spin(tail, name, load, CMP(vPoll), 2)
    return pre + [last + (f"\ns_cbranch_scc1 L_{name}r" if not P.only else ""), f"L_{name}b:"]
def slpoll(u, r): return [f"s_buffer_load_dword s{r+k}, {WS4}, s{sLF} offset:{u*US*4096+1024*k}" for k in range(2)]
def slcheck(tail, u, r, sfx=""): return sspin(tail, f"g1l{u}{sfx}", lpoll(u), [], f"s_cmp_lg_u64 s[{r}:{r+1}], s[4:5]", slpoll(u, r))
def shpoll(p): return [f"s_buffer_load_dword s{6+k}, {WS4}, s59 offset:{(p if not (P.zz & 1 and p == 3) else 1)*16*8192+256*k}" for k in range(7)]
def shcheck(tail, p, sfx=""):
    pre = ["s_mov_b32 s13, s12"] + [f"s_xor_b64 s[{r}:{r+1}], s[{r}:{r+1}], s[4:5]" for r in (6, 8, 10, 12)] + ["s_or_b64 s[6:7], s[6:7], s[8:9]", "s_or_b64 s[10:11], s[10:11], s[12:13]"]
    return sspin(tail, f"g2p{p}{sfx}", hh_poll(p), pre, "s_or_b64 s[6:7], s[6:7], s[10:11]", shpoll(p))
def res_setup():
    return ["v_lshrrev_b32 v89, 2, v1", "v_and_b32 v88, 3, v1", f"s_lshl_b32 s63, s{S_WAVE}, 2", "v_add_u32 v88, s63, v88",
            "v_add_u32 v90, 24, v1", "v_lshrrev_b32 v90, 6, v90", "v_lshlrev_b32 v90, 31, v90", "v_lshl_or_b32 v90, v89, 8, v90", "v_lshl_add_u32 v90, v88, 4, v90",
            f"s_mul_i32 s61, s{S_RT}, {P.LS}", f"s_mul_i32 s63, s{S_CB}, 2560", "s_add_u32 s61, s61, s63", f"s_add_u32 s61, s61, {WS_LNF}",
            "v_and_b32 v91, 7, v88", "v_lshlrev_b32 v91, 4, v91", f"s_lshr_b32 s62, s{S_WAVE}, 1", f"s_lshl_b32 s63, s{S_RT}, 1", "s_add_u32 s62, s62, s63", "s_lshl_b32 s62, s62, 10",
            f"s_lshl_b32 s63, s{S_X}, 7", "s_add_u32 s62, s62, s63", f"s_add_u32 s62, s62, {FL_LN}"]
def vlast(): return [f"s_lshr_b32 s48, s{S_WAVE}, 1", "s_lshl_b32 s48, s48, 31", f"v_or_b32 v{vLast}, s48, v{vL16}"]
def lpoll(j): return [f"s_add_u32 s30, s{sLF}, {j*US*4096}", (f"buffer_load_dword v{vPoll}, v{vPA}, {WS4}, s30 offen sc1", ("lp", j))]
def lcheck(tail, j, sfx=""): return spin(tail, f"g1l{j}{sfx}", lpoll(j), CMP(vPoll), P.lsleep)
def lndma(j):
    o = []
    for i in range(10):
        pre = [f"s_add_u32 m0, s{sWb}, {SL[j%3]*SLOT+i*1024}", f"s_add_u32 s55, s{sSrc}, {j*US*2*P.LS+i*1024}"] if i % 4 == 0 else []
        o.append(pre + [(f"buffer_load_dwordx4 v{vL16}, {WS4}, s55 offen offset:{(i%4)*1024} sc1 lds", ("ln", j))])
    return o
def g1_setup():
    o = [f"s_lshl_b32 s{sLF}, s{S_I}, 12", f"s_lshr_b32 s48, s{S_WAVE}, 1", "s_lshl_b32 s48, s48, 11", f"s_add_u32 s{sLF}, s{sLF}, s48", f"s_add_u32 s{sLF}, s{sLF}, {FL_LN}",
         f"s_lshl_b32 s48, s{S_X}, 7", f"s_add_u32 s{sLF}, s{sLF}, s48", f"v_min_u32 v{vPA}, 1, v1", f"v_lshlrev_b32 v{vPA}, 10, v{vPA}",
         f"s_mul_i32 s{sSt}, s{S_I}, {2*P.HS}", f"s_lshl_b32 s48, s{S_C}, 11", f"s_add_u32 s{sSt}, s{sSt}, s48",
         f"s_lshl_b32 s48, s{S_WAVE}, 9", f"s_add_u32 s{sSt}, s{sSt}, s48", f"s_add_u32 s{sSt}, s{sSt}, {WS_HHF}",
         f"s_mul_i32 s{sSrc}, s{S_I}, {2*P.LS}", f"s_add_u32 s{sSrc}, s{sSrc}, s{sWb}", f"s_lshr_b32 s48, s{S_WAVE}, 1", f"s_mul_i32 s48, s48, {P.LS-20480}", f"s_add_u32 s{sSrc}, s{sSrc}, s48", f"s_add_u32 s{sSrc}, s{sSrc}, {WS_LNF}", f"s_mov_b32 s{sNL}, 0xbfb8aa3b",
         f"s_lshl_b32 s{sHF}, s{S_I}, 5", f"s_add_u32 s{sHF}, s{sHF}, s{S_C}", f"s_lshl_b32 s{sHF}, s{sHF}, 8", f"s_add_u32 s{sHF}, s{sHF}, {FL_HH}",
         f"v_bfe_u32 v{vLast}, v1, 4, 1", f"v_mul_u32_u24 v{vST}, {P.HS}, v{vLast}", f"v_lshrrev_b32 v{vLast}, 5, v1", f"v_lshl_add_u32 v{vST}, v{vLast}, 8, v{vST}",
         f"v_and_b32 v{vLast}, 15, v1", f"v_lshl_add_u32 v{vST}, v{vLast}, 4, v{vST}",
         f"v_lshrrev_b32 v{vLast}, {6 if P.fdw else 4}, v0", f"v_min_u32 v{vLast}, 1, v{vLast}", f"v_lshrrev_b32 v{vFLa}, {2 if P.fdw else 0}, v{vL16}", f"v_lshl_or_b32 v{vFLa}, v{vLast}, 31, v{vFLa}"]
    return o + [f"v_add_u32 v{vRD[k]}, {SL[k]*SLOT}, v{vL16}" for k in range(3)] + vlast()
TAG4 = [f"v_mov_b32 v{92+i}, v{vTag}" for i in range(4)]
def flagst(sr): return f"buffer_store_dword v{vTag}, v{vFLa}, {WS4}, s{sr} offen sc1" if P.fdw else f"buffer_store_dwordx4 v[92:95], v{vFLa}, {WS4}, s{sr} offen sc1"

def backend(S, C, tail):
    A = S
    vACC = 12; vE = 44; vP = 52; FR = 56
    depth = 8; grp = P.grp; ahead = depth - grp
    for i in range(ahead): A((f"ds_read_b128 {v(FR+4*i,4)}, v{vRD[0]} offset:{i*1024}", ("f", 0, i)))
    if P.nb1:
        A.extend(slcheck(tail, 1, 8))
        for d in lndma(1)[:P.nb1]: A.extend(d)
    stamp(S.A, C, "g1_go")
    mf = []; ev = []; gbs = []
    SB = {0: {}, 1: {j: j + 1 for j in range(NU - 1 - P.nfx)}, 2: {0: 2, 1: 2, 2: 4, 3: 4, 4: 5}, 3: {0: 2, 1: 2, 2: 4, 3: 4, 4: 6, 5: 6, 6: 7}, 4: {0: 2, 1: 2, 2: 4, 3: 4, 4: 5}, 5: {}}[P.mg]
    FB = {j: j + 2 for j in range(min(NU - 2, NU - 1 - P.nfx))}
    if P.mg == 2: FB.update({0: 4, 1: 4, 2: 5, 3: 5})
    if P.mg == 4: FB = {0: 4, 1: 4, 2: 5, 3: 5}
    if P.mg == 5: FB = {j: j + 2 for j in range(P.nx)}
    if P.mg == 3: FB.update({0: 4, 1: 4, 2: 6, 3: 6, 4: 7, 5: 7}); assert P.nfx == 0
    for j in range(NU):
        acc = vACC + 16 * (j & 1); last = j == NU - 1; g0 = len(mf); fr = []
        for st in range(2):
            for k0 in range(0, 20, grp):
                for gu in range(2):
                    for kk in range(k0, k0 + grp):
                        i = st * 20 + kk; ac = acc + 8 * st + 4 * gu
                        mf.append(f"v_mfma_f32_16x16x32_bf16 {v(ac,4)}, {a(8*kk+4*gu,4)}, {v(FR+4*(i%depth),4)}, {'0' if kk == 0 else v(ac,4)}"); fr.append(i)
        last_use = {f: idx for idx, f in enumerate(fr)}
        first_use = {f: idx for idx, f in reversed(list(enumerate(fr)))}
        lazy = (P.nolg and not (P.ud <= j + 3 < NU)) or (last and P.nb7)
        gb = last_use[40 - depth] + (P.gbl if lazy else P.gboff); gbs.append(g0 + gb)
        for nx in range(ahead, 40 if last else 40 + ahead):
            g = (last_use[nx - depth] + 1) if nx >= depth else nx - ahead
            if nx >= 40: g = max(g, gb + nx - 40)
            ev.append((g0 + g, 1, (f"ds_read_b128 {v(FR+4*(nx%depth),4)}, v{vRD[(j + nx // 40) % 3]} offset:{(nx%40)*1024}", ("f", j + nx // 40, nx % 40))))
        for f in range(0, 40, 2):
            if first_use[f] < gb or lazy: ev.append((g0 + first_use[f], 0.7, ("need", None, [("f", j, f + 1)])))
        ev.append((g0 + 80, 0.8, ("call", lambda j=j: stamp(S.A, C, f"g1_u{j}"))))
        if last and P.nb7:
            assert j not in FB.values(); continue
        ev.append((g0 + gb, 0, ("need", [("ln", j + 1), ("ln", j)] + [("hs", k) for k in range(NU) if FB.get(k) == j], None if lazy else 0)))
        def chk(j=j): assert (j + 1 == NU or S.vm.count(("ln", j + 1)) == 10) and all(("hs", k) in S.vm for k in range(NU) if FB.get(k) == j)
        ev.append((g0 + gb, 0.2, ("call", chk))); ev.append((g0 + gb, 0.5, "s_barrier"))
    G2 = len(mf); gstart = {}; gend = {}
    cuts = lambda p: sorted(set(c for c in range(0, 14, P.g2g) if p < 3 or c <= 14 - P.ntail) | ({14 - P.ntail} if p == 3 else set()) | {14})
    for p in range(4):
        acc = aACC + 20 * (p & 1)
        for t in range(14):
            tags = [("h", p, t)] + ([("w2", f) for f in range(min(5*t+5, 64 if P.wst else 70))] if p == 0 else [])
            ev.append((len(mf), 0.75, ("need", tags, ["wsr"] if (P.wst and p == 0 and t == 4) else None)))
            def chk(tags=tags): assert all(tg in S.vm for tg in tags), tags
            ev.append((len(mf), 0.76, ("call", chk)))
            m1 = lambda t, dt: f"v_mfma_f32_16x16x32_bf16 {a(acc+4*dt,4)}, {W2(5*t+dt)}, {HR(p, t)}, {'0' if t == 0 else a(acc+4*dt,4)}"
            gstart[(p, t)] = len(mf)
            if t + 1 in cuts(p):
                t0 = max(c for c in cuts(p) if c <= t)
                mf += [m1(tt, dt) for dt in range(5) for tt in range(t0, t + 1)]
                for tt in range(t0, t + 1): gend[(p, tt)] = len(mf) - (t - tt)
        if p < 3: ev.append((len(mf), 0.8, ("call", lambda p=p: stamp(S.A, C, f"g2_p{p}"))))
    N = len(mf)
    gF = G2 + P.gflag
    if C.diag and P.gs1:
        for gg in range(P.gs0, P.gs0 + 13 * P.gs1, P.gs1): ev += [(gg, -2, "s_nop 0"), (gg, -1, ("call", lambda gg=gg: stamp(S.A, C, f"b{gg}")))]
    gX = {j: 80 * (j + 1) + P.epidl + 2 + P.fd for j in range(NU - 1 - P.nfx, NU - 1)}; gX[NU - 1] = gF
    if P.mg == 5: gX = {j: 80 * (j + 2) + (P.epidl if j < 6 else P.epil) + 1 for j in range(P.nx, 7)}; gX[7] = gF
    if P.mg == 4: gX = {4: P.e4, 5: 560 + P.epidl + 1, 6: G2 + P.epil + 1, 7: gF}
    for j, gg in gX.items(): ev += [(gg, 0, ("need", [("hs", j)])), (gg, 0.5, "s_barrier")]
    assert sum(g < G2 for g in gX.values()) == sum(g < G2 - 3 for g in gX.values())
    for p in (2, 3): ev.append((G2 + 70 * (p - 1) + (P.c2, P.c3)[p - 2], 0.9, ("need", None, 0)))
    ev.sort(key=lambda e: (e[0], e[1]))
    q0 = Seq()
    for g, _, x in ev: q0.add(x, g, g)
    def epi(j):
        pacc = vACC + 16 * (j & 1); vP = (52, 92)[j & 1]
        G = lambda i: pacc + 8 * (i >> 2) + (i & 3)
        st = [lambda i: f"v_mul_f32 v{vE+i}, s{sNL}, v{G(i)}", lambda i: f"v_exp_f32 v{vE+i}, v{vE+i}", lambda i: f"v_add_f32 v{vE+i}, 1.0, v{vE+i}",
              lambda i: f"v_rcp_f32 v{vE+i}, v{vE+i}", lambda i: f"v_mul_f32 v{vE+i}, v{vE+i}, v{G(i)+4}"]
        prs = []
        for i0 in range(0, 8, 2):
            o = []
            for f in st: o += [f(i0), f(i0 + 1)]
            prs.append(o + [f"v_cvt_pk_bf16_f32 v{vP+i0//2}, v{vE+i0}, v{vE+i0+1}"])
        return prs, [f"v_permlane16_swap_b32 v{vP}, v{vP+2}", f"v_permlane16_swap_b32 v{vP+1}, v{vP+3}", f"s_add_u32 s56, s{sSt}, {j*US*2*P.HS}",
                     (f"buffer_store_dwordx4 {v(vP,4)}, v{vST}, {WS4}, s56 offen sc1", ("hs", j))]
    def hflag(j): return [f"s_add_u32 s57, s{sHF}, {j*US*8192}", (flagst(57), "hf")]
    qe = [Seq() for _ in range(4)]; q2 = Seq(); busy = set(); fl = []; st_at = {}
    for j in range(NU):
        prs, fin = epi(j); g0 = 80 * (j + 1)
        early = P.eearly and (j < 2 or st_at[j - 2] + 6 < g0 - 80 + 46)
        dl = g0 + ((P.epidl if early else P.epid2) if j < NU - 1 else P.epil)
        for k, o in enumerate(prs):
            r = g0 + 4 + 2 * k
            if k < 2 and early: r = g0 - 80 + 46 + 2 * k
            elif early: r -= 4
            assert j < 2 or r > st_at[j - 2] + 5
            qe[k].addl(o, r, dl=dl)
        st_at[j] = gbs[SB[j]] + 1 if j in SB else dl + 2
        if P.mg == 4 and j == 5: st_at[j] = max(st_at[j], P.e4 + 1)
        assert j not in gX or gX[j] > st_at[j] + 30
        fl += [(dl + 1, fin[:2], dl + 4), (st_at[j], fin[2:], st_at[j] + 5), ((gX[j] if j in gX else ((gbs[FB[j]] if P.mg != 5 else 80 * (j + 3) + P.epidl + 1) if j in FB else gF)) + 1.5, hflag(j), None)]
        b = (st_at[j] + 1) // 4
        while b in busy: b += 1
        busy.add(b)
        for k in range(P.quiet): busy.add(b + 1 + k)
    for gg, it, dl in sorted(fl, key=lambda e: e[0]): q2.addl(it, gg, dl=dl)
    q1 = Seq(); side = []
    X = {1: P.x1}; q5 = Seq(); sp = []
    if not P.nb1: side.append((max(X[1] - 2, 0), slcheck(tail, 1, 8)))
    for u in range(2, NU):
        b = u - 2 if u < P.ud else u - 3; r = 6 + 2 * (u & 1)
        X[u] = gbs[b] + 2; sp.append((gbs[b] - (P.pl if u > 3 else P.pl1), ([f"s_not_b64 s[{r}:{r+1}], s[4:5]"] if P.nolg else []) + [x + (" ;nowait" if P.nolg else "") for x in slpoll(u, r)], gbs[b] - 1)); side.append((gbs[b] + 1, slcheck(tail, u, r)))
    XH = G2 - 36
    if P.xw2:
        assert P.npre == 0 and (not P.wst or X[P.wst] > P.xw2)
        ld, ck = w2_poll(tail, "g1w2", 88, 89); side += [(max(0, P.xw2 - P.plw), ld), (P.xw2 - 2, ck)]
    assert P.sglc; sp.append((405, hh_polladdr(88), 430))
    cp = [XH - 4, G2 - 8, G2 + 70 + P.c2, G2 + 140 + P.c3]
    assert P.fdw
    for p in (0, 1):
        rg = (vPoll, 0)[p]
        side += [(cp[p] - P.plv, hh_poll(p, rg)), (cp[p], [("need", [("hp", p)])] + spin(tail, f"g2p{p}", hh_poll(p, rg), CMP(rg), 2))]
    for p in (2, 3): sp.append((cp[p] - (P.pl2, P.pl3)[p - 2], shpoll(p), cp[p] - 1)); side.append((cp[p] + 1, shcheck(tail, p)))
    for gg, it, dl in sorted(sp, key=lambda e: e[0]): q5.addl([x.replace("s30", "s48") for x in it], gg, dl=dl)
    side.sort(key=lambda e: e[0])
    lnq = [(X[u], d) for u in range(1, NU) for d in lndma(u)][P.nb1:]
    hq = [(XH + 4 * (t // 4) if p == 0 else max(gend[divmod(14 * p + t - P.ring, 14)] if 14 * p + t >= P.ring else G2 + 2, cp[p] + 2), p, t) for p in range(4) for t in range(14)]
    XE = X[NU - 1] + 44; nearly = 64 - P.npre - ((XH - XE) // 4 - P.wsp)
    wf = P.npre; g = 3; pre_h = []; first2 = True; nslot = 0
    WE = 70
    if P.wst:
        WE = 64
        stg = [([f"s_add_u32 m0, s{sWb}, {1024*(k-k%4)}", f"s_add_u32 s55, s{sW2}, {1024*(64+k-k%4)}"] if k % 4 == 0 else []) +
               [(f"buffer_load_dwordx4 v{vLast if k else vL16}, {WS4}, s55 offen offset:{1024*(k%4)} sc1 lds", "wst")] for k in range(6)]
        k0 = 10 * P.wst - P.nb1; lnq[k0:k0] = [(lnq[k0 - 1][0], d) for d in stg]
        q5.addl([f"v_add_u32 v2, s{sWb}, v{vL16}", ("need", ["wst"])], G2 - 24)
        q5.addl([(f"ds_read_b128 {W2(64+k)}, v2 offset:{1024*k}", "wsr") for k in range(6)], G2 - 14, 1, dl=G2 - 1)
        q5.items.sort(key=lambda e: e[1])
    free = []; k = 0
    for gg in range(3, XH - 1, 4):
        if gg // 4 in busy: continue
        if k < len(lnq) and lnq[k][0] <= gg: k += 1
        elif gg >= P.xw2: free.append(gg)
    extra = len(free) - (64 - P.npre); wslots = set(free)
    early = [gg for gg in free if gg < XE]
    for i in range(max(extra, 0)): wslots.discard(early[(i * len(early)) // extra])
    while lnq or hq or wf < WE:
        while side and side[0][0] <= g: gg, it = side.pop(0); q1.addl(it, gg, dl=(min(G2 - 1, gg + 20) if gg < G2 else gg + 8))
        force = g >= G2 and first2
        dlv = G2 - 1 if g < G2 else None
        if g // 4 in busy and g < G2: pass
        elif lnq and lnq[0][0] <= g: q1.addl(lnq.pop(0)[1], g, dl=dlv)
        elif hq and hq[0][0] <= g and (hq[0][1] == 0 or wf == WE):
            _, p, t = hq.pop(0); q1.addl(hload(p, t, g >= G2 and p == 0), g, dl=min(gstart[(p, t)] - 1, dlv or N))
            if g < G2: pre_h.append(t)
        elif wf < WE and (wf < 64 or g >= G2 - 16) and (g >= XH - 1 or g in wslots):
            q1.addl(w2one(wf, g >= G2 or wf == P.npre), g, dl=min(G2 + wf - 5, dlv or N)); wf += 1
            if g < G2: P.wdone = wf
        g += 4 if g < XH - 1 else (P.hstep if g < G2 + P.hext else P.g2step)
        if G2 <= g < G2 + 2: g = G2 + 2
    for gg, it in side: q1.addl(it, gg)
    P.pre_h = pre_h
    vRW, vRR, vO, vHR, vSA, vT0, vT1 = 2, 3, 4, 90, 91, 88, 89
    vR = 12; vSt = 60; vRes = 68; vTm = 76
    sO, sHR, sSA = 60, 61, 62
    RS = 288; WR = 20 * RS; BUF = 4 * WR
    T = Asm()
    T(f"v_min_u32 v{vRR}, 9, v{vT1}"); T(f"v_mul_u32_u24 v{vRR}, {2*RS}, v{vRR}"); T(f"v_lshl_add_u32 v{vRR}, v{vT0}, 4, v{vRR}")
    T(f"v_mul_u32_u24 v{vO}, 1280, v{vT0}"); T(f"v_lshl_add_u32 v{vO}, v{vT1}, 4, v{vO}"); T(f"v_and_b32 v{vT1}, 0x80000000, v{vHR}"); T(f"v_or_b32 v{vO}, v{vO}, v{vT1}")
    T(f"s_mul_i32 s{sO}, s{S_RT}, 20480"); T(f"s_mul_i32 s66, s{S_CB}, 160"); T(f"s_add_u32 s{sO}, s{sO}, s66")
    T(f"v_lshrrev_b32 v{vT0}, 4, v1"); T(f"v_mul_u32_u24 v{vRW}, {RS}, v{vT0}"); T(f"v_and_b32 v{vT0}, 15, v1"); T(f"v_lshl_add_u32 v{vRW}, v{vT0}, 4, v{vRW}")
    T(f"s_mul_i32 s66, s{S_WAVE}, {WR}"); T(f"v_add_u32 v{vRW}, s66, v{vRW}")
    srd(T, SRD_A, P_OUT, NB_SD)
    def wr(p):
        if P.w64 and p < 3: return [(f"ds_write_b64 v{vRW}, {a(aACC+20*(p&1)+2*k,2)} offset:{(p&1)*BUF+4*RS*(k>>1)+8*(k&1)}", "w") for k in range(10)]
        return [(f"ds_write_b128 v{vRW}, {a(aACC+20*(p&1)+4*dt,4)} offset:{(p&1)*BUF+4*RS*dt}", "w") for dt in range(5)]
    def rd(p): return [(f"ds_read_b128 {v(vR+8*w+4*j,4)}, v{vRR} offset:{(p&1)*BUF+WR*w+RS*j}", ("rd", w)) for w in range(4) for j in range(2)]
    def stload(p): return [f"s_add_u32 s64, s{sSA}, {p*65536}", (f"buffer_load_dwordx4 {v(vSt+4*(p&1),4)}, v{vSA}, {WS4}, s64 offen sc1", ("r", p))]
    def resload(p): return [f"s_add_u32 s63, s{sHR}, {p*32*P.LS}", (f"buffer_load_dwordx4 {v(vRes+4*(p&1),4)}, v{vHR}, {WS4}, s63 offen sc1", ("r", p))]
    TM = lambda p, j: (vTm + j) if p < 3 else (44 + j)
    def fin1(p):
        st = vSt + 4 * (p & 1); t0 = TM(p, 0)
        chk = [f"v_xor_b32 v{t0}, v{vTag}, v{st}", f"v_bitop3_b32 v{t0}, v{st+3}, v{vTag}, v{t0} bitop3:0xbe", f"v_cmp_ne_u32 vcc, 0, v{t0}"]
        return ([("need", [("r", p)])] + spin(tail, f"g2s{p}", stload(p), chk, 2) + unpk(t0, vRes + 4 * (p & 1), 4)
                + [f"v_fma_f32 v{t0+j}, v{t0+j}, v{st+2}, v{st+1}" for j in range(8)])
    def fin2(p):
        o = []; t0 = TM(p, 0)
        for w in range(4):
            o.append(("need", None, [("rd", w)]))
            if p < 3: o += [f"v_add_f32 v{t0+j}, v{t0+j}, v{vR+8*w+j}" for j in range(8)]
            else: o += [f"v_pk_add_f32 {v(t0+j,2)}, {v(t0+j,2)}, {v(vR+8*w+j,2)}" for j in range(0, 8, 2)]
        o += [f"v_cvt_pk_bf16_f32 v{vR+j}, v{t0+2*j}, v{t0+2*j+1}" for j in range(4)]
        return [f"s_add_u32 s65, s{sO}, {p*655360}"] + o + [(f"buffer_store_dwordx4 {v(vR,4)}, v{vFLa if p < P.xo else vO}, {s(SRD_A,4)}, s65 offen" + (P.om if p < 3 else ""), "st")]
    q3 = Seq(); q4 = Seq()
    q3.addl(res_setup(), XH - 30, dl=G2 - 1)
    for p in range(4):
        g0 = G2 + 70 * p
        q3.addl(resload(p) + stload(p), g0 + 3, 2, dl=g0 + 12)
        if p == 0: q3.addl(T.lines, G2 + 12, dl=G2 + 60)
        if p > 0:
            q3.addl(fin1(p - 1), g0 + 14, dl=g0 + 40)
            q4.addl(wr(p - 1), g0 + 4, 2 if P.w64 else 4); q4.add(("need", None, ["w"]), g0 + 28); q4.add("s_barrier", g0 + 28); q4.addl(rd(p - 1), g0 + 29, P.rdstep)
            q4.addl(fin2(p - 1), g0 + (42 if p < 3 else 38), dl=g0 + 69)
    q3.addl(fin1(3), N - 20)
    if P.wb >= 2:
        q3.addl([f"s_xor_b32 s66, s{S_J}, {P.wb}", f"s_or_b32 s66, s66, s{S_WAVE}\ns_cbranch_scc1 L_nowb\nbuffer_wbl2 sc1", "L_nowb:"], N - 8)
    for dt, x in enumerate(wr(3)): q2.add(x, N - 5 * P.ntail + P.ntail * (dt + 1) + 3)
    out = schedule(mf, [q0, q1, q5, q2, q4] + qe + [q3])
    k = [i for i, x in enumerate(out) if isinstance(x, str) and x.startswith("v_mfma")][G2 - 1] + 1
    A.extend(out[:k]); stamp_flush(S.A, C); A.label("L_g2"); A.extend(out[k:])
    stamp(S.A, C, "g2_p3")
    A.need(None, 0); A("s_barrier"); A.extend(rd(3)); A.extend(fin2(3))
    if P.wb == 1:
        A(f"s_cmp_lg_u32 s{S_WAVE}, 0"); A("s_cbranch_scc1 L_nowb"); S.A("buffer_wbl2 sc1"); A.label("L_nowb")
    stamp(S.A, C, "g2_end")

def build(diag):
    SL[:] = [1, 3, 2] if P.cv6 else [3, 1, 2]
    assert not P.touch
    assert P.xall or not P.rpre
    assert P.rpre == 1 or not P.r2
    P.npre = max(P.npre, P.npre0)
    C = Ctx(diag)
    A = Asm(); tail = Asm()
    start(A, C)
    S = Stream(A)
    p0(S, C)
    if diag: A("s_mov_b32 s101, 0")
    (conv6 if P.cv6 else conv)(S, C, tail)
    stamp_flush(A, C)
    A.label("L_g1")
    backend(S, C, tail)
    n0 = len(A.lines); stamps_out(A, C, "s101", 1 if P.lite else 15, "f")
    if P.lite: A.lines[n0:] = [l for l in A.lines[n0:] if "vmcnt" not in l]
    A.label("L_end"); A("s_endpgm")
    A.label("L_nc")
    A("s_and_b32 s53, s53, 0xffff"); A("s_mov_b32 s54, L_code_end-L_pc"); A("s_mov_b32 s55, 0x20000")
    A(f"s_sub_u32 s30, s{S_J}, 20"); A("s_and_b32 s30, s30, 15"); A("s_lshl_b32 s30, s30, 7"); A("v_mul_u32_u24 v9, 1536, v0")
    A("buffer_load_dword v253, v9, s[52:55], s30 offen")
    if P.norole: A("s_endpgm")
    if P.bt:
        A("v_cmp_gt_u32 vcc, 107, v0"); A("v_lshlrev_b32 v2, 7, v0"); A("s_sub_u32 s48, s2, 160"); A("v_cndmask_b32 v2, v8, v2, vcc")
        A(f"s_mul_i32 s48, s48, {107*128}"); A(f"s_add_u32 s48, s48, {1021*1280}")
    A("s_waitcnt lgkmcnt(0)"); stamp(A, C, -1)
    if P.bt:
        srd(A, SRD_A, P_K, NB_SD); A(f"buffer_load_dword v246, v2, {s(SRD_A,4)}, s48 offen")
        srd(A, SRD_B, P_V, NB_SD); A(f"buffer_load_dword v247, v2, {s(SRD_B,4)}, s48 offen")
    epoch_load(A)
    if P.hold == 1: A("s_waitcnt vmcnt(0)")
    A(f"s_cmp_ge_u32 s{S_J}, 27"); A("s_cbranch_scc1 L_nf")
    if diag: A("s_mov_b32 s101, 1")
    common_setup(A, 'f')
    if P.fdelay: A(f"s_sleep {P.fdelay}")
    if P.hold == 2: epoch_finish(A)
    A(f"s_sub_u32 s{S_ID}, s2, 160"); A(f"s_min_u32 s{S_ID}, s{S_ID}, 53")
    S = Stream(A)
    H = lambda qd, h: w1_dma(qd, (1, 0, 3, 2)[qd], 5 * h, 5 * h + 5)
    seqs = [[(0,0),(0,1),(2,0),(2,1),(3,0),(3,1)], [(2,1),(3,0),(3,1),(0,0),(0,1),(2,0)]]
    if not P.touch:
        H = lambda qd, h: w1_dma(qd, (1, 3, 2, 0)[qd], 5 * h, 5 * h + 5)
        seqs = [[(q, h) for q in o for h in (0, 1)] for o in ((0, 2, 1, 3), (1, 3, 0, 2))]
    def both(a0, a1, tag):
        if P.pair: A(f"s_bitcmp1_b32 s{S_I}, 2"); A(f"s_cbranch_scc1 L_fp{tag}")
        for q in seqs[0][a0:a1]: S.extend(H(*q))
        if P.pair:
            A.label(f"L_fq{tag}"); tail.label(f"L_fp{tag}")
            for q in seqs[1][a0:a1]: tail.extend([text(x) for x in H(*q)])
            tail(f"s_branch L_fq{tag}")
    ld, ck = w2_poll(tail if not P.xw2 else Asm(), "fw2", 88, 89)
    if P.xw2: ld = []; ck = ck[-1:]
    ld2 = ld; ld = []
    if not P.ford:
        def more():
            both(0, 2, "a")
            if P.hold != 2: epoch_finish(A)
        repack(A, more, 10)
        A.extend(g1_setup()); A(f"s_lshl_b32 s57, s{S_ID}, 8"); A(f"s_add_u32 s57, s57, {FL_W2}")
        A("s_barrier")
        both(2, 3, "b"); A("s_waitcnt vmcnt(5)"); A("s_barrier")
        S(flagst(57))
        stamp(A, C, "f_rp")
        both(3, 8, "c"); S.extend(ld)
        S.need([("w1", 1)]); A("s_barrier"); S.extend(w1_tr(1, 3, 12)); S.extend(w1_tr(0, 1, 13))
        S.need(0, 0); A("s_barrier"); S.extend(w1_tr(2, 2, 12)); S.extend(w1_tr(3, 0, 13))
    else:
        qs = ((0, 2, 1, 3), (1, 3, 0, 2))
        def par(fn, tag):
            A(f"s_bitcmp1_b32 s{S_I}, 2"); A(f"s_cbranch_scc1 L_fp{tag}"); S.extend(fn(qs[0]))
            A.label(f"L_fq{tag}"); tail.label(f"L_fp{tag}"); tail.extend([text(x) for x in fn(qs[1])]); tail(f"s_branch L_fq{tag}")
        par(lambda q: w1_dma(q[0], SL[1]) + w1_dma(q[1], SL[0]), "a")
        if P.hold != 2: epoch_finish(A)
        def more():
            A("s_waitcnt vmcnt(10)"); A("s_barrier")
            par(lambda q: w1_tr(q[0], SL[1], 60) + w1_dma(q[2], 2) + w1_tr(q[1], SL[0], 61), "b"); A("s_waitcnt lgkmcnt(0)")
        repack(A, more, 10)
        A.extend(g1_setup()); A(f"s_lshl_b32 s57, s{S_ID}, 8"); A(f"s_add_u32 s57, s57, {FL_W2}")
        par(lambda q: w1_dma(q[3], SL[1]), "c")
        A("s_waitcnt vmcnt(10)"); A("s_barrier")
        S(flagst(57))
        stamp(A, C, "f_rp")
        par(lambda q: w1_tr(q[2], 2, 60), "d"); A("s_waitcnt vmcnt(1)"); A("s_barrier"); S.extend(ld)
        par(lambda q: w1_tr(q[3], SL[1], 60), "e")
    stamp(A, C, "f_w1")
    S.extend(slpoll(0, 6)); S.need(None, 0)
    S.extend(slcheck(tail, 0, 6, "f"))
    stamp(A, C, "g1_l0")
    S.extend(ld2)
    for d in lndma(0): S.extend(d)
    if P.xw2: A("s_waitcnt vmcnt(4)")
    S.extend(ck); S.extend(w2load(0, P.npre)); S.extend(slpoll(1, 8)); S.need([("ln", 0)], 0); A("s_barrier")
    stamp_flush(A, C)
    A("s_branch L_g1")
    A.label("L_nf")
    if P.only: A("s_endpgm")
    if diag: A("s_mov_b32 s101, 2")
    A(f"s_sub_u32 s{S_ID}, s2, 216")
    rworker(A, C, tail)
    A("s_waitcnt vmcnt(0)")
    S = Stream(A)
    ld, chk = w2_poll(tail, "msw2", 88, 89)
    S.extend(ld); A.extend(vlast()); S.extend(chk)
    S.extend(w2load(0, 32)); A("s_waitcnt vmcnt(16)"); S.extend(w2load(32, P.wdone))
    if P.wst: S.extend(w2load(64, 70))
    A(f"v_bfrev_b32 v{vFLa}, 1"); A(f"v_bfrev_b32 v{vST}, 1"); A(f"s_mov_b32 s{sSt}, 0"); A(f"s_mov_b32 s{sHF}, 0"); A("s_mov_b32 s56, 0"); A("s_mov_b32 s57, 0")
    S.extend(hh_polladdr(88))
    if P.rg2 >= 0:
        A(f"s_cmp_lg_u32 s{S_WAVE}, 0"); A("s_cbranch_scc1 L_msh")
        A(f"s_mul_i32 s30, s{S_ID}, 2731"); A("s_lshr_b32 s30, s30, 12"); A("s_lshl_b32 s30, s30, 8"); A("v_mov_b32 v88, s30")
        hl = [f"s_add_u32 s30, s59, {P.rg2*16*8192}", f"buffer_load_dword v{vPoll}, v88, {WS4}, s30 offen sc1"]
        A.extend(hl); A("s_waitcnt vmcnt(0)"); A.extend(spin(tail, "msh", hl, CMP(vPoll), 8))
        A.label("L_msh"); A("s_barrier")
    A.extend(shpoll(0)); A("s_waitcnt lgkmcnt(0)"); A.extend(shcheck(tail, 0, "m"))
    for t in P.pre_h: S.extend(hload(0, t))
    A.extend(shpoll(1)); A("s_waitcnt lgkmcnt(0)"); A.extend(shcheck(tail, 1, "m"))
    A.extend(res_setup()); epoch_update(A, tail)
    A("s_waitcnt vmcnt(0)")
    A("s_branch L_g2")
    A.lines += tail.lines
    A.label("L_code_end")
    A.lines = hazcheck.autopad(A.lines, "f")
    errs = hazcheck.check(A.lines, "f")
    assert not errs or P.kill
    txt = module([], [(NAME, A, 256, 256)])
    if P.nt:
        import re
        L = txt.split("\n"); o = []; role = "c"
        for l in L:
            if l == "L_nc:": role = "f"
            if l == "L_nf:": role = "r"
            if l.endswith(" lds") and "sc1" not in l:
                kind = None
                if role == "c" and ("s[32:35]" in l or "s[36:39]" in l): kind = 1
                if role == "c" and "s[52:55]" in l: kind = 2
                if role == "r" and "s[52:55]" in l: kind = 4
                if role == "f" and "s[32:35]" in l: kind = 8
                if role == "c" and "s[40:43], s31" in l: kind = 16
                if kind and P.nt & kind: l = l[:-4] + " nt lds"
            if P.nt & 32 and role == "c" and re.search(r"buffer_load_dwordx4 v\[(188|192|196|200|204|208|212|216):.*s(30|66) offen sc1$", l): l += " nt"
            if P.nt & 64 and role == "r" and re.search(r"buffer_load_dwordx4 v\[\d+:\d+\], v[23], .* sc1$", l): l += " nt"
            o.append(l)
        txt = "\n".join(o)
    if P.ab:
        import re
        L = txt.split("\n"); o = []
        on = False
        for l in L:
            if P.ab & 4096 and re.search(r"s_cbranch_scc1 L_g1l0.r", l): l = "    s_nop 0"
            if l == "L_g1:": on = True
            if l == "L_end:": on = False
            if not on: o.append(l); continue
            if P.ab & 256 and re.search(r"s55 offen.*lds", l): l = l.replace("v10,", "v9,")
            if P.ab & 512 and re.search(r"buffer_store_dwordx4 .*s5[67] offen", l): l = "    buffer_load_dword v89, v9, s[44:47], 0 offen"
            if P.ab & 1024 and re.search(r"v_(exp|rcp|mul|add|cvt_pk_bf16|fma)_f32", l): continue
            if P.ab & 2048 and "s_barrier" in l: l = "    s_nop 0"
            if P.ab & 1 and re.search(r"buffer_load_dwordx4 .*s31 offen offset:\d+ sc1$", l): l = re.sub(r"v(10|6), s\[44:47\]", "v9, s[44:47]", l).replace("s31", "0")
            if P.ab & 2 and re.search(r"s_cbranch_(scc1|vccnz) L_g2p.r", l): l = "    s_nop 0"
            if P.ab & 4 and re.search(r"s_add_u32 s49, s73,", l): l = re.sub(r"s73, (\d+)", lambda m: f"s71, {WS_HHF + int(m.group(1)) % 327680}", l)
            if P.ab & 8 and re.search(r"s_add_u32 s55, s50,", l): l = re.sub(r"s50, (\d+)", lambda m: f"s50, {int(m.group(1)) % 40960}", l)
            if P.ab & 16 and "s56 offen sc1" in l: l = l.replace(" sc1", "")
            if P.ab & 32 and re.search(r"s_add_u32 s31, s72,", l): l = re.sub(r"s72, (\d+)", lambda m: f"s71, {WS_W2F + int(m.group(1))}", l)
            if P.ab & 64 and re.search(r"buffer_load_dwordx4 .*s49 offen offset:\d+ sc1$", l): l = re.sub(r"v(10|6), s\[44:47\]", "v9, s[44:47]", l).replace("s49", "0")
            if P.ab & 128 and re.search(r"s_cbranch_scc1 L_g1l[1-7]r", l): l = "    s_nop 0"
            o.append(l)
        txt = "\n".join(o)
    if P.sw: txt = txt.replace("s_cmp_lg_u32 s3, 0\n    s_cbranch_scc1 L_nost_f", f"s_cmp_lg_u32 s3, {P.sw}\n    s_cbranch_scc1 L_nost_f")
    if P.cyc: txt = txt.replace("s_memrealtime", "s_memtime")
    txt = txt.replace(" ;pad", "").replace(" ;nowait", "")
    return "; @launch grid=(256,1,1) block=(256,1,1) lds=163840\n" + ("" if diag else HEADER) + (f"; stamps: start {' '.join(C.names)}\n" if diag else "") + txt

HEADER = """; One persistent launch, one workgroup (4 waves, 512 registers each) per CU; generated by a script.
;   G1: 64 gate + 64 up columns held in AGPRs, 8 x 32 rows streamed through LDS, sigmoid(g)*u -> ws
; Hand-offs: write-through (sc1) stores; kv and y carry a 16-bit launch tag in every dword, the rest is published by
; tagged flag lines after the stores have drained.  The tag is derived from an epoch word in ws that the launch advances
"""
DIAGS = {"all": "p0_ld|c_kv0|c_s0|c_s7|r_y0|r_f1|r_end|f_rp|g1_l0|g1_go|g1_u7|g2_p3|g2_end",
         "cv": "p0_[ls].|c_[abk].*|c_s[0247]|g1_go", "r1": "r_prep|r_y[03]|r_f[1-6]|r_p2|r_end", "g1": "g1_[lgu].*|c_s7|f_.*", "g2": "g1_u7|g2_.*", "r3": "r_[a-w,y]3|r_end", "r0": "r_[a-w,y]0|r_end", "fe": "p0_ld|c_kv0|c_s[0367]|f_..|r_prep|r_y0|g1_l0|g1_go", "ch": "c_s[07]|r_x.|r_prep|r_[yl][01]|r_f[12]|g1_l0|g1_go", "y0": "c_kv0|c_s[07]|r_h1|r_[yl]0|r_f[123]|g1_l0|g1_go|g1_u[01]", "end": "g2_end", "st": "p0_ld|c_b|c_kv0|c_s[0356]|g1_l0|g1_go|g1_u[37]|g2_end", "c3": "c_kv0|c_s[0357]|g1_go", "bs": "b[0-9]+", "bc": "b[0-9]+|g1_l0|g1_go", "gu": "g1_[abu][3456]", "gg": "g1_go|g1_u[0-7]|g2_p.|g2_end"}
if __name__ == "__main__":
    pref = "k"; which = ""
    for o in sys.argv[1:]:
        k, val = o.split("=")
        if k == "pref": pref = val
        elif k == "which": which = val
        elif k in ("cnt", "tlbr"): setattr(P, k, val)
        elif k == "om": P.om = " " + val.replace("+", " ")
        else: setattr(P, k, float(val) if "." in val else int(val))
    for k, w in DIAGS.items():
        if which in ("", k): open(f"{pref}_{k}.s", "w").write(build(w))
    if which in ("", "rel"): open(f"{pref}.s", "w").write(build(False))
```
